```python
import torch

def _softmax(x, axis=-1):
    return torch.softmax(x, dim=axis)
def _gelu(x):
    return torch.nn.functional.gelu(x, approximate="tanh")
def _silu(x):
    return torch.nn.functional.silu(x)
def _sigmoid(x):
    return torch.sigmoid(x)
def _layernorm(x, axis=-1, eps=1e-5):
    m = x.mean(dim=axis, keepdim=True)
    v = x.var(dim=axis, keepdim=True, unbiased=False)
    return (x - m) / torch.sqrt(v + eps)
def _scatter_add(tgt, idx, src, axis=0):
    return tgt.clone().index_add_(axis, idx, src)
def _segment_sum(src, seg, n):
    out = torch.zeros((n,) + src.shape[1:], dtype=src.dtype)
    return out.index_add_(0, seg, src)
def _pad(x, pw):
    flat = tuple(v for pair in reversed(pw) for v in pair)
    return torch.nn.functional.pad(x, flat)

kernel_name = 'concat_heads__gqa_block_cached__gqa_block_cached__near_ridge'

def setup_inputs():

    _w = (lambda a: (lambda t: t.to(torch.bfloat16) if t.is_floating_point() else t)(torch.as_tensor(a)))
    def _A_setup():
        B, Sq, D = 16, 48, 576
        Hq, Hkv, Sk, Dh = 32, 16, 48, 128
        assert Hq % Hkv == 0, (Hq, Hkv)
        return {
            "x": _w((lambda *s: torch.randn(*s, dtype=torch.bfloat16) * 0.8)(B, Sq, D)),
            "k_cache": _w((lambda *s: torch.randn(*s, dtype=torch.bfloat16) * 0.8)(B, Hkv, Sk, Dh)),
            "v_cache": _w((lambda *s: torch.randn(*s, dtype=torch.bfloat16) * 0.05)(B, Hkv, Sk, Dh)),
            "wq": _w((lambda *s: torch.randn(*s, dtype=torch.bfloat16) * 0.8)(D, Hq * Dh) * (D ** -0.5)),
            "wo": _w((lambda *s: torch.randn(*s, dtype=torch.bfloat16) * 0.05)(Hq * Dh, D) * ((Hq * Dh) ** -0.5)),
        }
    _A_in = _A_setup()

    def _B_setup():
        B, Sq, D = 16, 48, 576
        Hq, Hkv, Sk, Dh = 32, 16, 48, 128
        assert Hq % Hkv == 0, (Hq, Hkv)
        return {
            "x": _w((lambda *s: torch.randn(*s, dtype=torch.bfloat16) * 0.8)(B, Sq, D)),
            "k_cache": _w((lambda *s: torch.randn(*s, dtype=torch.bfloat16) * 0.8)(B, Hkv, Sk, Dh)),
            "v_cache": _w((lambda *s: torch.randn(*s, dtype=torch.bfloat16) * 0.05)(B, Hkv, Sk, Dh)),
            "wq": _w((lambda *s: torch.randn(*s, dtype=torch.bfloat16) * 0.8)(D, Hq * Dh) * (D ** -0.5)),
            "wo": _w((lambda *s: torch.randn(*s, dtype=torch.bfloat16) * 0.05)(Hq * Dh, D) * ((Hq * Dh) ** -0.5)),
        }
    _B_in = _B_setup()

    return {
        "A_x": _A_in["x"],
        "A_k_cache": _A_in["k_cache"],
        "A_v_cache": _A_in["v_cache"],
        "A_wq": _A_in["wq"],
        "A_wo": _A_in["wo"],
        "B_x": _B_in["x"],
        "B_k_cache": _B_in["k_cache"],
        "B_v_cache": _B_in["v_cache"],
        "B_wq": _B_in["wq"],
        "B_wo": _B_in["wo"],
    }

def reference(A_x, A_k_cache, A_v_cache, A_wq, A_wo, B_x, B_k_cache, B_v_cache, B_wq, B_wo):
    def _A_ref(x, k_cache, v_cache, wq, wo):
        B, Sq, D = x.shape
        Hq, Dh = 32, 128
        Hkv = k_cache.shape[1]
        rep = Hq // Hkv
        q = (lambda x, *d: x.permute(*d))((x @ wq).reshape(B, Sq, Hq, Dh), 0, 2, 1, 3)
        k = (lambda x, n, axis: torch.repeat_interleave(x, n, dim=axis))(k_cache, rep, axis=1)
        v = (lambda x, n, axis: torch.repeat_interleave(x, n, dim=axis))(v_cache, rep, axis=1)
        scores = torch.einsum("bhqd,bhkd->bhqk", q, k) * (Dh ** -0.5)
        p = _softmax(scores, axis=-1)
        o = torch.einsum("bhqk,bhkd->bhqd", p, v)
        return (lambda x, *d: x.permute(*d))(o, 0, 2, 1, 3).reshape(B, Sq, Hq * Dh) @ wo

    def _B_ref(x, k_cache, v_cache, wq, wo):
        B, Sq, D = x.shape
        Hq, Dh = 32, 128
        Hkv = k_cache.shape[1]
        rep = Hq // Hkv
        q = (lambda x, *d: x.permute(*d))((x @ wq).reshape(B, Sq, Hq, Dh), 0, 2, 1, 3)
        k = (lambda x, n, axis: torch.repeat_interleave(x, n, dim=axis))(k_cache, rep, axis=1)
        v = (lambda x, n, axis: torch.repeat_interleave(x, n, dim=axis))(v_cache, rep, axis=1)
        scores = torch.einsum("bhqd,bhkd->bhqk", q, k) * (Dh ** -0.5)
        p = _softmax(scores, axis=-1)
        o = torch.einsum("bhqk,bhkd->bhqd", p, v)
        return (lambda x, *d: x.permute(*d))(o, 0, 2, 1, 3).reshape(B, Sq, Hq * Dh) @ wo

    a = _A_ref(A_x, A_k_cache, A_v_cache, A_wq, A_wo)
    b = _B_ref(B_x, B_k_cache, B_v_cache, B_wq, B_wo)
    return torch.concatenate([a, b], axis=-1)
```

```python
import re


def vr(base, n=1):
    return f"v{base}" if n == 1 else f"v[{base}:{base+n-1}]"


def sr(base, n=1):
    return f"s{base}" if n == 1 else f"s[{base}:{base+n-1}]"


def rng(base, n):
    return set(range(base, base + n))


class Ins:
    __slots__ = ("text", "kind", "rd", "wr", "srcc", "swr", "srd", "note")

    def __init__(self, text, kind, rd=(), wr=(), srcc=(), swr=(), srd=(), note=None):
        self.text = text
        self.kind = kind
        self.rd = set(rd)
        self.wr = set(wr)
        self.srcc = set(srcc)
        self.swr = set(swr)
        self.srd = set(srd)
        self.note = note


_VRE = re.compile(r"v\[(\d+):(\d+)\]|\bv(\d+)\b")
_SRE = re.compile(r"s\[(\d+):(\d+)\]|\bs(\d+)\b|\b(vcc|m0|exec)\b")


def vregs(s):
    out = set()
    for m in _VRE.finditer(s):
        if m.group(1) is not None:
            out |= set(range(int(m.group(1)), int(m.group(2)) + 1))
        else:
            out.add(int(m.group(3)))
    return out


def sregs(s):
    out = set()
    for m in _SRE.finditer(s):
        if m.group(1) is not None:
            out |= {f"s{i}" for i in range(int(m.group(1)), int(m.group(2)) + 1)}
        elif m.group(3) is not None:
            out.add(f"s{m.group(3)}")
        else:
            out.add(m.group(4))
    return out


TRANS = ("v_exp_f32", "v_log_f32", "v_rcp_f32", "v_rsq_f32", "v_sqrt_f32")


def split_ops(rest):
    ops, depth, cur = [], 0, ""
    for ch in rest:
        if ch == "[":
            depth += 1
        if ch == "]":
            depth -= 1
        if ch == "," and depth == 0:
            ops.append(cur.strip())
            cur = ""
        else:
            cur += ch
    ops.append(cur.strip())
    return ops


def I(text):
    t = text.strip()
    if t.endswith(":"):
        return Ins(t, "label")
    mn, _, rest = t.partition(" ")
    ops = split_ops(rest) if rest else []
    if mn.startswith("v_mfma"):
        d, a, b, c = ops[0], ops[1], ops[2], ops[3]
        return Ins(t, "mfma", rd=vregs(a) | vregs(b), wr=vregs(d), srcc=vregs(c))
    if mn.startswith("ds_read"):
        return Ins(t, "dsr", rd=vregs(ops[1]), wr=vregs(ops[0]))
    if mn.startswith("ds_write"):
        return Ins(t, "dsw", rd=vregs(rest))
    if mn.startswith("buffer_load") or mn.startswith("global_load"):
        if " lds" in t:
            return Ins(t, "vmem", rd=vregs(rest), srd=sregs(rest) | {"m0"})
        return Ins(t, "vmem", rd=vregs(",".join(ops[1:])), wr=vregs(ops[0]), srd=sregs(rest), note="load")
    if mn.startswith("buffer_store") or mn.startswith("global_store") or mn.startswith("buffer_atomic") or mn.startswith("global_atomic"):
        return Ins(t, "vmem", rd=vregs(rest), srd=sregs(rest), note="store")
    if mn == "s_barrier":
        return Ins(t, "bar")
    if mn == "s_waitcnt":
        return Ins(t, "wait")
    if mn == "s_nop":
        return Ins(t, "nop")
    if mn.startswith("s_load") or mn.startswith("s_mem") or mn.startswith("s_buffer_load"):
        return Ins(t, "smem", swr=sregs(ops[0]), srd=sregs(",".join(ops[1:])))
    if mn.startswith("s_"):
        if mn.startswith(("s_cmp", "s_cbranch", "s_branch", "s_sleep", "s_setprio", "s_endpgm", "s_bitcmp")):
            return Ins(t, "salu", srd=sregs(rest))
        swr = sregs(ops[0]) if ops else set()
        if "saveexec" in mn:
            swr |= {"exec"}
        return Ins(t, "salu", swr=swr, srd=sregs(",".join(ops[1:])))
    if mn.startswith("v_"):
        if mn.startswith("v_permlane"):
            rw = vregs(rest)
            return Ins(t, "perm", rd=rw, wr=rw)
        if mn.startswith(("v_readfirstlane", "v_readlane")):
            return Ins(t, "rdlane", rd=vregs(ops[1]), swr=sregs(ops[0]), srd=sregs(",".join(ops[2:])))
        if mn.startswith("v_cmp"):
            return Ins(t, "valu", rd=vregs(",".join(ops[1:])), swr=sregs(ops[0]), srd=sregs(",".join(ops[1:])))
        wr = vregs(ops[0])
        rd = vregs(",".join(ops[1:]))
        srd = sregs(",".join(ops[1:]))
        if mn.startswith(("v_fmac", "v_pk_fmac")):
            rd |= wr
        kind = "valu"
        if mn.replace("_e32", "").replace("_e64", "") in TRANS:
            kind = "trans"
        if "dpp" in mn or "row_" in t or "quad_perm" in t:
            kind = "dpp"
            rd |= wr
        return Ins(t, kind, rd=rd, wr=wr, srd=srd)
    raise ValueError("unknown instruction: " + t)


def states(ins):
    if ins.kind == "nop":
        return int(ins.text.split()[1], 0) + 1
    if ins.kind == "label":
        return 0
    return 1


VALU_KINDS = ("valu", "trans", "perm", "dpp", "rdlane")


def need_gap(p, c):
    n = 0
    if p.kind == "mfma":
        big = "32x32" in p.text
        d = 12 if big else 8
        if c.kind == "mfma":
            if c.rd & p.wr:
                n = max(n, d)
            if c.srcc & p.wr and c.srcc != p.wr:
                n = max(n, 10 if big else 6)
            if (c.wr & p.wr) and not (c.srcc == p.wr):
                n = max(n, d)
        else:
            if (c.rd | c.wr) & p.wr:
                n = max(n, d)
            if c.kind in VALU_KINDS and c.wr & p.srcc:
                n = max(n, 7 if big else 3)
    if p.kind in VALU_KINDS:
        if c.kind == "mfma" and (c.rd | c.srcc) & p.wr:
            n = max(n, 2)
        if c.kind in ("perm", "dpp") and c.rd & p.wr:
            n = max(n, 2)
        if c.kind == "rdlane" and c.rd & p.wr:
            n = max(n, 1)
        if p.kind == "trans" and c.kind in VALU_KINDS and c.kind != "trans" and c.rd & p.wr:
            n = max(n, 1)
        if p.kind == "trans" and c.kind == "trans" and c.rd & p.wr:
            n = max(n, 1)
        if p.swr:
            if c.kind == "vmem" and c.srd & p.swr:
                n = max(n, 5)
            if c.kind in VALU_KINDS and c.srd & p.swr:
                n = max(n, 4 if c.kind == "rdlane" else 2)
            if c.kind in ("salu", "smem") and c.srd & p.swr:
                n = max(n, 1)
    if p.kind == "salu" and "m0" in p.swr and c.kind == "vmem" and "m0" in c.srd:
        n = max(n, 1)
    if p.kind == "vmem" and p.note == "store" and ("x4" in p.text or "x3" in p.text):
        if c.wr & p.rd:
            n = max(n, 2)
    return n


def finalize(stream, auto_lgkm=True):
    out = []
    pend = []
    smem_out = False

    def emit(x):
        out.append(x)

    for ins in stream:
        if ins.kind == "wait":
            m = re.search(r"lgkmcnt\((\d+)\)", ins.text)
            if m:
                n = int(m.group(1))
                if n == 0:
                    pend = []
                    smem_out = False
                elif not smem_out:
                    pend = pend[len(pend) - n:] if n < len(pend) else pend
        elif auto_lgkm:
            touch = ins.rd | ins.wr | ins.srcc
            last = -1
            for i, (k, w) in enumerate(pend):
                if w & touch:
                    last = i
            if last >= 0:
                n = len(pend) - 1 - last
                if smem_out:
                    n = 0
                n = min(n, 15)
                emit(I(f"s_waitcnt lgkmcnt({n})"))
                pend = pend[len(pend) - n:] if n > 0 else []
                if n == 0:
                    smem_out = False
        if ins.kind not in ("label",):
            gap = 0
            need = 0
            for p in reversed(out):
                if gap >= 20:
                    break
                r = need_gap(p, ins)
                if r > gap:
                    need = max(need, r - gap)
                gap += states(p)
            while need > 0:
                k = min(need, 16)
                emit(I(f"s_nop {k-1}"))
                need -= k
        emit(ins)
        if ins.kind == "dsr":
            pend.append(("r", set(ins.wr)))
        elif ins.kind == "dsw":
            pend.append(("w", set()))
        elif ins.kind == "smem":
            smem_out = True
            pend.append(("s", set()))
    return out


def interleave(main, fill, per_gap=2, start=0, lead=0):
    out = []
    fill = list(fill)
    for _ in range(lead):
        if fill:
            out.append(fill.pop(0))
    for i, m in enumerate(main):
        out.append(m)
        if i >= start:
            k = per_gap[i] if isinstance(per_gap, (list, tuple)) else per_gap
            for _ in range(k):
                if fill:
                    out.append(fill.pop(0))
    out += fill
    return out


def text(stream):
    return "\n".join(("" if i.kind == "label" else "    ") + i.text for i in stream)
```

```python
import sys
from asmlib import *

NAME = "concat_heads__gqa_block_cached__gqa_block_cached__near_ridge_kernel"

class Opt:
    stamps = False
    stop_after_p1 = False
    pol_x = ""
    pol_wq = ""
    pol_k = "nt"
    pol_v = ""
    pol_wo = ""
    prefetch_code = True
    prio_loader = 0
    prio_compute = 0
    no_dma = False
    no_mfma = False
    no_reads = False
    rot = 1

SLOT = 45056
A_SLOT = [0, SLOT, 2 * SLOT]
K_LDS = 3 * SLOT
P_LDS = K_LDS
V_LDS = [0, 110592]
W_LDS = [24576, 45056, 61440, 77824, 94208]
LDS_BYTES = 163840

WS_P = 0
WS_PART = 256 * 18432
WS_FLAGP = WS_PART + 256 * 36864
WS_FLAGF = WS_FLAGP + 256 * 128
WS_STAMP = WS_FLAGF + 256 * 128
WS_USED = WS_STAMP + 256 * 512

S_X, S_K, S_V, S_WQ, S_WO = 4, 6, 8, 10, 12
S_OUT, S_DBG, S_WS = 14, 16, 18
R_X, R_WQ, R_K, R_V, R_WO, R_WS, R_OUT, R_DBG = 20, 24, 28, 32, 36, 40, 44, 48
S_BR, S_KQ, S_BP, S_JL, S_J, S_CQ, S_W, S_KC = 52, 53, 54, 55, 56, 57, 58, 59
S_T0, S_T1, S_T2, S_T3, S_T4, S_T5 = 60, 61, 62, 63, 64, 65
S_NON = 66
S_GRP = 68
S_CNT = 69
S_EX = 70
S_C0 = 72
S_ST = 76
NSTAMP = 12

SPIN_MAX = 400000


def L(s):
    return [I(x) for x in s.strip().split("\n") if x.strip()]


class Stamper:
    def __init__(self, on):
        self.on = on
        self.n = 0
        self.names = []

    def __call__(self, name):
        if not self.on:
            return []
        assert self.n < NSTAMP
        r = S_ST + 2 * self.n
        self.n += 1
        self.names.append(name)
        if name.startswith("cyc"):
            return [I(f"s_memtime {sr(r,2)}")]
        return [I(f"s_memrealtime {sr(r,2)}")]

    def dump(self, role):
        if not self.on:
            return []
        o = L(f"""
s_waitcnt lgkmcnt(0)
s_lshl_b32 s{S_T0}, s2, 9
s_add_u32 s{S_T0}, s{S_T0}, {WS_STAMP + role*256}
v_mov_b32 v1, 0
s_mov_b64 exec, 1
""")
        for i in range(self.n):
            o += L(f"""
v_mov_b32 v2, s{S_ST+2*i}
v_mov_b32 v3, s{S_ST+2*i+1}
buffer_store_dwordx2 v[2:3], v1, {sr(R_WS,4)}, s{S_T0} offen offset:{8*i}
s_nop 1
""")
        o += L("s_mov_b64 exec, -1")
        return o


def srd(r, ptr, size):
    return L(f"""
s_mov_b32 s{r}, s{ptr}
s_and_b32 s{r+1}, s{ptr+1}, 0xffff
s_mov_b32 s{r+2}, {size}
s_mov_b32 s{r+3}, 0x20000
""")


def srd_off(r, ptr, soff, total):
    return L(f"""
s_add_u32 s{r}, s{ptr}, s{soff}
s_addc_u32 s{r+1}, s{ptr+1}, 0
s_and_b32 s{r+1}, s{r+1}, 0xffff
s_sub_u32 s{r+2}, {total}, s{soff}
s_mov_b32 s{r+3}, 0x20000
""")


def prologue(o):
    c = L(f"""
s_cmp_ge_u32 s2, 256
s_cbranch_scc1 L_end
s_and_b32 s{S_T0}, s2, 7
s_lshr_b32 s{S_BR}, s{S_T0}, 2
s_mul_i32 s{S_T1}, s{S_BR}, 40
s_load_dwordx8 s[4:11], s[0:1], s{S_T1}
s_load_dwordx2 s[12:13], s[0:1], s{S_T1} offset:32
s_load_dwordx2 s[14:15], s[0:1], 80
s_load_dwordx4 s[16:19], s[0:1], 88
v_lshrrev_b32 v1, 6, v0
s_and_b32 s{S_KQ}, s{S_T0}, 3
s_lshr_b32 s{S_T2}, s2, 3
v_readfirstlane_b32 s{S_W}, v1
s_lshr_b32 s{S_BP}, s{S_T2}, 2
s_and_b32 s{S_JL}, s{S_T2}, 3
s_lshl_b32 s{S_J}, s{S_KQ}, 2
s_add_u32 s{S_J}, s{S_J}, s{S_JL}
s_add_u32 s{S_CQ}, s{S_JL}, s{S_BP}
s_and_b32 s{S_CQ}, s{S_CQ}, 3
s_lshl_b32 s{S_GRP}, s{S_BR}, 3
s_add_u32 s{S_GRP}, s{S_GRP}, s{S_BP}
s_lshl_b32 s{S_GRP}, s{S_GRP}, 4
v_and_b32 v0, 63, v0
s_cmp_lt_u32 s{S_W}, 4
s_cbranch_scc1 L_compute
""")
    return c


V_WQ = 8
V_XO = 16
V_KV = 19
V_WM = 25
V_WE = 29
V_LIN = 33
V_T = 34
V_PUB = 40
V_FL = 60


class Loader:
    def __init__(self, o):
        self.o = o
        self.c = []
        self.issued = []
        self.st = Stamper(o.stamps)

    def A(self, s):
        self.c += L(s)

    def dma(self, voff, rsrc, soff, lds_addr_expr, pol, tag, half=False):
        base, const = lds_addr_expr
        if half:
            self.A(f"s_mov_b32 exec_hi, 0")
        self.A(f"s_add_u32 m0, s{base}, {const}")
        self.A(f"buffer_load_dwordx4 v{voff}, {sr(rsrc,4)}, {soff} offen {pol} lds")
        if half:
            self.A(f"s_mov_b32 exec_hi, -1")
        self.issued.append(tag)

    def wait_for(self, tags):
        last = -1
        for i, t in enumerate(self.issued):
            if t in tags:
                last = i
        if last < 0:
            return
        n = len(self.issued) - 1 - last
        assert n <= 63
        self.A(f"s_waitcnt vmcnt({n})")
        self.issued = self.issued[last + 1:]

    def barrier(self, tags):
        self.wait_for(tags)
        assert len(self.issued) <= 63
        self.A("s_barrier")

    SB_WQ, SB_X, SB_KV, SB_W, SB_P0, SB_P12 = 72, 73, 74, 75, 100, 101

    def stage_p1(self, n):
        o = self.o
        slot = A_SLOT[n % 3]
        self.A(f"""
s_lshl_b32 s{S_T0}, s{S_KC}, 19
s_lshl_b32 s{S_T1}, s{S_KC}, 7
""")
        for u in range(8):
            if u == 4:
                for uu in range(3):
                    self.dma(V_XO + uu, R_X, f"s{S_T1}", (self.SB_X, slot + 32768 + uu * 1024), o.pol_x, f"S{n}")
            self.dma(V_WQ + u, R_WQ, f"s{S_T0}", (self.SB_WQ, slot + u * 1024), o.pol_wq, f"S{n}")
        self.A(f"""
s_add_u32 s{S_KC}, s{S_KC}, 1
s_cmp_eq_u32 s{S_KC}, 9
s_cselect_b32 s{S_KC}, 0, s{S_KC}
""")

    def load_k(self):
        for u in range(6):
            self.dma(V_KV + u, R_K, "0", (self.SB_KV, K_LDS + u * 1024), self.o.pol_k, "K")

    def jj(self, pos, dst):
        self.A(f"s_add_u32 s{dst}, s{S_JL}, {pos}\ns_and_b32 s{dst}, s{dst}, 3")

    def load_v(self, pos):
        self.jj(pos, S_T0)
        self.A(f"s_mul_i32 s{S_T0}, s{S_T0}, 12288")
        for u in range(6):
            self.dma(V_KV + u, R_V, f"s{S_T0}", (self.SB_KV, V_LDS[pos % 2] + u * 1024), self.o.pol_v, f"V{pos}")

    def load_w(self, q):
        slot = W_LDS[q % 5]
        if q < 2:
            self.A(f"s_mul_i32 s{S_T0}, s{S_JL}, {256*1152}\ns_add_u32 s{S_T0}, s{S_T0}, {q*128*1152 + 1024}")
            vb = V_WE
        else:
            pos, r = divmod(q - 2, 4)
            self.jj(pos, S_T0)
            self.A(f"""
s_mul_i32 s{S_T0}, s{S_T0}, {256*1152}
s_lshl_b32 s{S_T1}, s{S_CQ}, 8
s_add_u32 s{S_T0}, s{S_T0}, s{S_T1}
s_add_u32 s{S_T0}, s{S_T0}, {r*64*1152}
""")
            vb = V_WM
        for u in range(4):
            self.dma(vb + u, R_WO, f"s{S_T0}", (self.SB_W, slot + u * 1024), self.o.pol_wo, f"W{q}")

    def p_block_off(self, pos, dst):
        self.jj(pos, dst)
        self.A(f"""
s_lshl_b32 s{S_T3}, s{S_KQ}, 2
s_add_u32 s{dst}, s{dst}, s{S_T3}
s_add_u32 s{dst}, s{dst}, s{S_GRP}
s_mul_i32 s{dst}, s{dst}, 18432
""")

    def load_p0(self, pos):
        self.p_block_off(pos, S_T0)
        self.A(f"s_add_u32 s{S_T0}, s{S_T0}, s{self.SB_P0}")
        self.dma(V_LIN, R_WS, f"s{S_T0}", (self.SB_P0, P_LDS), "sc1", f"P{pos}a")
        self.A(f"s_add_u32 s{S_T0}, s{S_T0}, 1024")
        self.dma(V_LIN, R_WS, f"s{S_T0}", (self.SB_P0, P_LDS + 1024), "sc1", f"P{pos}a", half=True)

    def load_p12(self, pos):
        self.p_block_off(pos, S_T0)
        self.A(f"s_add_u32 s{S_T0}, s{S_T0}, s{self.SB_P12}\ns_add_u32 s{S_T0}, s{S_T0}, 6144")
        for u in range(3):
            self.dma(V_LIN, R_WS, f"s{S_T0}", (self.SB_P12, P_LDS + 6144 + u * 1024), "sc1", f"P{pos}b")
            if u < 2:
                self.A(f"s_add_u32 s{S_T0}, s{S_T0}, 1024")

    def nonce_issue(self):
        self.A(f"""
v_mov_b32 v{V_FL}, 0
buffer_load_dwordx2 v[{V_FL+2}:{V_FL+3}], v{V_FL}, {sr(R_DBG,4)}, 0 offen sc1
""")
        self.issued.append("non")

    def nonce_check(self):
        self.wait_for(["non"])
        self.A(f"""
s_mov_b32 s{S_CNT}, {SPIN_MAX}
L_nonce:
v_readfirstlane_b32 s{S_NON}, v{V_FL+2}
v_readfirstlane_b32 s{S_NON+1}, v{V_FL+3}
s_sub_u32 s{S_CNT}, s{S_CNT}, 1
s_cmp_eq_u32 s{S_CNT}, 0
s_cbranch_scc1 L_nonce_done
s_cmp_lg_u32 s{S_NON}, 0
s_cbranch_scc1 L_nonce_done
buffer_load_dwordx2 v[{V_FL+2}:{V_FL+3}], v{V_FL}, {sr(R_DBG,4)}, 0 offen sc1
s_waitcnt vmcnt(0)
s_branch L_nonce
L_nonce_done:
""")

    def publish_p(self):
        self.p_block_off(0, S_T0)
        self.A(f"""
s_mul_i32 s{S_T1}, s{S_W}, 4608
s_add_u32 s{S_T0}, s{S_T0}, s{S_T1}
s_add_u32 s{S_T1}, s{S_T1}, {P_LDS}
v_add_u32 v{V_T}, s{S_T1}, v{V_LIN}
""")
        for u in range(5):
            self.A(f"ds_read_b128 {vr(V_PUB+4*u,4)}, v{V_T} offset:{u*1024}")
        for u in range(5):
            if u == 4:
                self.A(f"s_add_u32 s{S_T0}, s{S_T0}, 4096\ns_waitcnt lgkmcnt(0)\ns_mov_b32 exec_hi, 0")
                self.A(f"buffer_store_dwordx4 {vr(V_PUB+4*u,4)}, v{V_LIN}, {sr(R_WS,4)}, s{S_T0} offen sc1")
                self.A("s_mov_b64 exec, -1")
            else:
                self.A(f"buffer_store_dwordx4 {vr(V_PUB+4*u,4)}, v{V_LIN}, {sr(R_WS,4)}, s{S_T0} offen offset:{u*1024} sc1")
            self.issued.append("pub")
        self.wait_for(["pub"])
        self.A(f"""
s_add_u32 s{S_T0}, s{S_GRP}, s{S_J}
s_lshl_b32 s{S_T0}, s{S_T0}, 7
s_lshl_b32 s{S_T1}, s{S_W}, 3
s_add_u32 s{S_T0}, s{S_T0}, s{S_T1}
s_add_u32 s{S_T0}, s{S_T0}, {WS_FLAGP}
v_mov_b32 v{V_FL}, 0
v_mov_b32 v{V_FL+2}, s{S_NON}
v_mov_b32 v{V_FL+3}, s{S_NON+1}
s_mov_b64 exec, 1
buffer_store_dwordx2 v[{V_FL+2}:{V_FL+3}], v{V_FL}, {sr(R_WS,4)}, s{S_T0} offen sc1
s_mov_b64 exec, -1
""")
        self.issued.append("flag")

    def poll(self, label, voff, soff):
        self.A(f"""
s_mov_b32 s{S_CNT}, {SPIN_MAX}
{label}:
buffer_load_dwordx2 v[{V_FL+2}:{V_FL+3}], v{voff}, {sr(R_WS,4)}, s{soff} offen sc1
s_waitcnt vmcnt(0)
v_cmp_ne_u64 vcc, {sr(S_NON,2)}, v[{V_FL+2}:{V_FL+3}]
s_sub_u32 s{S_CNT}, s{S_CNT}, 1
s_cmp_eq_u32 s{S_CNT}, 0
s_cbranch_scc1 {label}_done
s_cbranch_vccnz {label}
{label}_done:
""")
        self.issued = []

    def poll_p(self):
        self.A(f"""
v_bfe_u32 v{V_T}, v0, 2, 2
v_lshlrev_b32 v{V_T}, 7, v{V_T}
v_and_b32 v{V_T+1}, 3, v0
v_lshl_add_u32 v{V_T}, v{V_T+1}, 3, v{V_T}
s_lshl_b32 s{S_T0}, s{S_KQ}, 2
s_add_u32 s{S_T0}, s{S_T0}, s{S_GRP}
s_lshl_b32 s{S_T0}, s{S_T0}, 7
s_add_u32 s{S_T0}, s{S_T0}, {WS_FLAGP}
""")
        self.poll("L_pollp", V_T, S_T0)

    def gen(self):
        o = self.o
        A = self.A
        self.c += self.st("start")
        if o.prio_loader:
            A(f"s_setprio {o.prio_loader}")
        A(f"""
s_sub_u32 s{S_W}, s{S_W}, 4
v_lshrrev_b32 v1, 5, v0
v_and_b32 v2, 31, v0
v_lshlrev_b32 v2, 4, v2
v_lshlrev_b32 v3, 5, v1
v_xor_b32 v2, v2, v3
v_lshl_add_u32 v2, v1, 13, v2
s_lshl_b32 s{S_T0}, s{S_W}, 17
v_add_u32 v{V_WQ}, s{S_T0}, v2
""")
        for u in range(1, 8):
            cu = ((2 * (u & 1)) | (4 * (u >> 2))) << 5
            if cu:
                A(f"v_xor_b32 v{V_WQ+u}, {cu}, v{V_WQ}\nv_add_u32 v{V_WQ+u}, {u*16384}, v{V_WQ+u}")
            else:
                A(f"v_add_u32 v{V_WQ+u}, {u*16384}, v{V_WQ}")
        A(f"""
v_lshrrev_b32 v4, 4, v0
v_and_b32 v5, 7, v0
v_xor_b32 v5, v5, v4
v_lshlrev_b32 v5, 4, v5
s_and_b32 s{S_T1}, s{S_W}, 1
s_lshl_b32 s{S_T2}, s{S_T1}, 6
v_xor_b32 v5, s{S_T2}, v5
v_lshrrev_b32 v6, 3, v0
v_mul_u32_u24 v6, 1152, v6
s_mul_i32 s{S_T3}, s{S_W}, 27648
v_add_u32 v6, s{S_T3}, v6
v_add_u32 v{V_XO}, v5, v6
v_add_u32 v{V_XO+2}, 18432, v{V_XO}
v_xor_b32 v5, 64, v5
v_add_u32 v{V_XO+1}, v5, v6
v_add_u32 v{V_XO+1}, 9216, v{V_XO+1}
s_lshl_b32 s{self.SB_WQ}, s{S_W}, 13
s_mul_i32 s{self.SB_X}, s{S_W}, 3072
s_mul_i32 s{self.SB_KV}, s{S_W}, 6144
s_lshl_b32 s{S_T4}, s{S_JL}, 1
s_add_u32 s{S_KC}, s{S_BP}, s{S_T4}
s_cmp_ge_u32 s{S_KC}, 9
s_cselect_b32 s{S_T4}, 9, 0
s_sub_u32 s{S_KC}, s{S_KC}, s{S_T4}
s_mul_i32 s{S_T4}, s{S_BP}, 110592
s_lshl_b32 s{S_T5}, s{S_J}, 9
s_waitcnt lgkmcnt(0)
""")
        self.c += srd_off(R_X, S_X, S_T4, 884736)
        self.c += srd_off(R_WQ, S_WQ, S_T5, 4718592)
        if o.rot == 0:
            A(f"s_mov_b32 s{S_KC}, 0")
        self.c += self.st("karg")
        self.stage_p1(0)
        self.c += self.st("S0iss")
        A(f"""
v_and_b32 v5, 15, v0
v_xor_b32 v5, v5, v4
v_lshlrev_b32 v5, 4, v5
s_and_b32 s{S_T1}, s{S_W}, 1
s_lshl_b32 s{S_T2}, s{S_T1}, 7
v_xor_b32 v5, s{S_T2}, v5
s_mul_i32 s{S_T2}, s{S_T1}, 6144
s_lshr_b32 s{S_T3}, s{S_W}, 1
s_mul_i32 s{S_T3}, s{S_T3}, 196608
s_add_u32 s{S_T2}, s{S_T2}, s{S_T3}
v_lshl_add_u32 v6, v4, 8, s{S_T2}
""")
        for u in range(6):
            cu = (u & 3) << 6
            if cu:
                A(f"v_xor_b32 v7, {cu}, v5\nv_add_u32 v7, v7, v6")
            else:
                A(f"v_add_u32 v7, v5, v6")
            A(f"v_add_u32 v{V_KV+u}, {u*1024}, v7")
        self.stage_p1(1)
        self.stage_p1(2)
        A(f"""
s_lshl_b32 s{S_T0}, s{S_BP}, 5
s_add_u32 s{S_T1}, s{S_T0}, s{S_J}
s_mul_i32 s{S_T1}, s{S_T1}, 12288
s_lshl_b32 s{S_T2}, s{S_KQ}, 2
s_add_u32 s{S_T2}, s{S_T2}, s{S_T0}
s_mul_i32 s{S_T2}, s{S_T2}, 12288
s_mul_i32 s{S_T3}, s{S_KQ}, {1024*1152}
""")
        self.c += srd_off(R_K, S_K, S_T1, 3145728)
        self.load_k()
        self.c += srd_off(R_V, S_V, S_T2, 3145728)
        self.c += srd_off(R_WO, S_WO, S_T3, 4718592)
        self.c += srd(R_WS, S_WS, WS_USED)
        self.c += srd(R_DBG, S_DBG, 256)
        A(f"""
v_and_b32 v5, 15, v0
v_lshlrev_b32 v6, 1, v4
v_xor_b32 v5, v5, v6
v_lshlrev_b32 v5, 4, v5
v_mul_u32_u24 v6, 1152, v4
s_mul_i32 s{S_T0}, s{S_W}, {16*1152}
v_add_u32 v6, s{S_T0}, v6
v_add_u32 v{V_WM}, v5, v6
v_add_u32 v{V_WM+1}, {4*1152}, v{V_WM}
v_xor_b32 v5, 128, v5
v_add_u32 v{V_WM+2}, v5, v6
v_add_u32 v{V_WM+2}, {8*1152}, v{V_WM+2}
v_add_u32 v{V_WM+3}, {4*1152}, v{V_WM+2}
v_and_b32 v5, 7, v0
v_and_b32 v6, 1, v4
v_lshlrev_b32 v6, 1, v6
v_xor_b32 v5, v5, v6
v_lshlrev_b32 v5, 4, v5
v_lshrrev_b32 v6, 3, v0
v_mul_u32_u24 v6, 1152, v6
s_mul_i32 s{S_T0}, s{S_W}, {32*1152}
v_add_u32 v6, s{S_T0}, v6
v_add_u32 v{V_WE}, v5, v6
v_add_u32 v{V_WE+2}, {16*1152}, v{V_WE}
v_xor_b32 v5, 64, v5
v_add_u32 v{V_WE+1}, v5, v6
v_add_u32 v{V_WE+1}, {8*1152}, v{V_WE+1}
v_add_u32 v{V_WE+3}, {16*1152}, v{V_WE+1}
v_lshlrev_b32 v{V_LIN}, 4, v0
s_lshl_b32 s{self.SB_W}, s{S_W}, 12
s_mul_i32 s{self.SB_P0}, s{S_W}, 1536
s_mul_i32 s{self.SB_P12}, s{S_W}, 3072
""")
        self.barrier(["S0"])
        self.c += self.st("B0")
        for n in range(0, 9):
            need = [f"S{n+1}"] if n < 8 else ["K"]
            self.barrier(need)
            if n == 3:
                self.nonce_issue()
            if n + 3 <= 8 and not o.no_dma:
                self.stage_p1(n + 3)
            if n == 6:
                self.nonce_check()
            if n == 6:
                self.load_v(0)
                self.load_w(0)
            if n == 7:
                self.load_w(1)
                self.load_w(2)
            if n == 8:
                self.load_w(3)
                self.load_w(4)
                self.load_v(1)
        self.c += self.st("B9")
        self.barrier(["V0", "W0"])
        A("s_barrier")
        self.c += self.st("B11")
        self.publish_p()
        self.c += self.st("pub")
        if o.stop_after_p1:
            A("s_waitcnt vmcnt(0)")
            self.c += self.dump_stamps()
            A("s_endpgm")
            return self.c
        for q in range(0, 18):
            cq1 = q + 1
            need = []
            if cq1 <= 17:
                need.append(f"W{cq1}")
            if cq1 in (6, 10, 14):
                need.append(f"V{(cq1-2)//4}")
            if cq1 in (9, 13, 17):
                need.append(f"P{(cq1-5)//4}a")
            if cq1 in (10, 14, 18):
                need.append(f"P{(cq1-6)//4}b")
            self.barrier(need)
            if cq1 == 7:
                self.c += self.st("C7")
                self.poll_p()
                self.c += self.st("polled")
                self.load_p0(1)
            if cq1 in (10, 14):
                self.load_p0((cq1 - 6) // 4 + 1)
            if cq1 in (8, 12, 16):
                self.load_p12((cq1 - 8) // 4 + 1)
            if q + 5 <= 17:
                self.load_w(q + 5)
            if cq1 in (6, 10):
                self.load_v((cq1 - 2) // 4 + 1)
        self.c += self.st("C18")
        self.c += final_gather(o, loader=self)
        return self.c

    def dump_stamps(self):
        if not self.o.stamps:
            return []
        return L(f"s_cmp_lg_u32 s{S_W}, 0\ns_cbranch_scc1 L_nostamp_l") + self.st.dump(1) + L("L_nostamp_l:")


C_WA = 8
C_XA = 16
C_T = 18
C_AF = [64, 96]
C_BF = [128, 140]
C_ACC = 160


def acc(t, st):
    return C_ACC + (t * 3 + st) * 4


D_VA = 2
D_WA = 8
D_EA = 12
D_PA = 14
D_OUTM = 16
D_OUTE = 64
D_VW = 88
D_F01 = 136
D_F2 = 152
D_V = [168, 180]
D_P = [192, 204]
D_W = [216, 232]


def mfma(d, a, b, c):
    cc = "0" if c is None else vr(c, 4)
    return I(f"v_mfma_f32_16x16x32_bf16 {vr(d,4)}, {vr(a,4)}, {vr(b,4)}, {cc}")


class Compute:
    def __init__(self, o):
        self.o = o
        self.c = []
        self.st = Stamper(o.stamps)

    def A(self, s):
        self.c += L(s)

    def p1_reads(self, kb, s):
        r = []
        if self.o.no_reads:
            return [I("s_nop 0") for _ in range(19)]
        for st in range(3):
            r.append(I(f"ds_read_b128 {vr(C_BF[s]+4*st,4)}, v{C_XA+kb} offset:{st*2048}"))
        for t in range(8):
            for i in range(2):
                r.append(I(f"ds_read_b64_tr_b16 {vr(C_AF[s]+4*t+2*i,2)}, v{C_WA+t} offset:{kb*16384+i*2048}"))
        return r

    def p1_mfmas(self, s, first):
        if self.o.no_mfma:
            return [I("s_nop 0") for _ in range(24)]
        return [mfma(acc(t, st), C_AF[s] + 4 * t, C_BF[s] + 4 * st, None if first else acc(t, st))
                for t in range(8) for st in range(3)]

    def kfrag(self, kt, p):
        i = kt * 4 + p
        if i < 8:
            return C_AF[0] + 4 * i
        if i < 11:
            return C_BF[0] + 4 * (i - 8)
        return 152

    def gen(self):
        o = self.o
        A = self.A
        A("L_compute:")
        self.c += self.st("start")
        if o.prio_compute:
            A(f"s_setprio {o.prio_compute}")
        if o.prefetch_code:
            A(f"""
s_cmp_ge_u32 s2, 8
s_cbranch_scc1 L_no_pf
s_getpc_b64 s[{S_EX}:{S_EX+1}]
L_pc:
s_sub_u32 s{S_EX}, s{S_EX}, L_pc-{NAME}
s_subb_u32 s{S_EX+1}, s{S_EX+1}, 0
s_lshl_b32 s{S_T0}, s{S_W}, 13
v_lshlrev_b32 v60, 7, v0
v_add_u32 v60, s{S_T0}, v60
v_min_u32 v60, L_end-{NAME}, v60
global_load_dword v61, v60, s[{S_EX}:{S_EX+1}]
L_no_pf:
""")
        A(f"""
s_lshr_b32 s{S_T0}, s{S_W}, 1
s_and_b32 s{S_T1}, s{S_W}, 1
v_lshrrev_b32 v1, 4, v0
v_bfe_u32 v2, v0, 2, 2
v_and_b32 v3, 3, v0
v_and_b32 v4, 15, v0
v_and_b32 v5, 1, v1
v_lshl_or_b32 v5, v5, 2, v2
v_lshl_add_u32 v6, v1, 3, v2
v_lshlrev_b32 v7, 9, v6
v_lshl_add_u32 v7, v5, 5, v7
v_lshl_add_u32 v7, v3, 3, v7
s_lshl_b32 s{S_T2}, s{S_T1}, 8
v_add_u32 v{C_WA}, s{S_T2}, v7
""")
        for t in range(1, 8):
            A(f"v_xor_b32 v{C_WA+t}, {t<<5}, v{C_WA}")
        A(f"""
v_lshrrev_b32 v7, 1, v4
v_xor_b32 v7, v7, v1
v_lshlrev_b32 v7, 4, v7
v_lshl_add_u32 v7, v4, 7, v7
s_mul_i32 s{S_T2}, s{S_T0}, 6144
s_add_u32 s{S_T2}, s{S_T2}, 32768
v_add_u32 v{C_XA}, s{S_T2}, v7
v_xor_b32 v{C_XA+1}, 64, v{C_XA}
""")
        A(f"""
v_lshrrev_b32 v7, 1, v1
v_xor_b32 v7, v7, v4
v_lshlrev_b32 v7, 4, v7
v_lshl_add_u32 v7, v4, 8, v7
v_and_b32 v18, 1, v1
v_lshl_add_u32 v7, v18, 3, v7
s_mul_i32 s{S_T2}, s{S_T0}, 12288
s_add_u32 s{S_T2}, s{S_T2}, {K_LDS}
v_add_u32 v18, s{S_T2}, v7
s_mul_i32 s{S_T2}, s{S_T0}, 3072
s_add_u32 s{S_T2}, s{S_T2}, {P_LDS}
v_lshl_add_u32 v20, v0, 4, s{S_T2}
s_mul_i32 s{S_T3}, s{S_T1}, 6144
v_add_u32 v19, s{S_T3}, v20
s_lshl_b32 s{S_T3}, s{S_T1}, 3
v_add_u32 v20, s{S_T3}, v20
s_mov_b32 s{S_C0}, 0x3e0293ee
s_mov_b32 s{S_C0+1}, 0x3e0293ee
s_waitcnt lgkmcnt(0)
""")
        self.c += srd(R_WS, S_WS, WS_USED)
        self.c += srd(R_DBG, S_DBG, 256)
        A(f"""
s_or_b32 s{S_T0}, s2, s{S_W}
s_cmp_lg_u32 s{S_T0}, 0
s_cbranch_scc1 L_no_nonce
s_memrealtime {sr(S_NON,2)}
s_waitcnt lgkmcnt(0)
s_or_b32 s{S_NON}, s{S_NON}, 1
v_mov_b32 v60, 0
v_mov_b32 v62, s{S_NON}
v_mov_b32 v63, s{S_NON+1}
s_mov_b64 exec, 1
buffer_store_dwordx2 v[62:63], v60, {sr(R_DBG,4)}, 0 offen sc1
s_mov_b64 exec, -1
L_no_nonce:
""")
        A("s_barrier")
        self.c += self.st("B0")
        self.c += self.st("cyc0")
        self.c += self.p1_reads(0, 0)
        for n in range(9):
            self.c += interleave(self.p1_mfmas(0, n == 0), self.p1_reads(1, 1), per_gap=1)
            A("s_waitcnt lgkmcnt(0)\ns_barrier")
            if n < 8:
                d = A_SLOT[(n + 1) % 3] - A_SLOT[n % 3]
                upd = [I(f"v_add_u32 v{C_XA}, {d & 0xffffffff}, v{C_XA}")]
                fill = upd + self.p1_reads(0, 0)[:3]
                rest = self.p1_reads(0, 0)[3:]
                for t in range(8):
                    fill.append(I(f"v_add_u32 v{C_WA+t}, {d & 0xffffffff}, v{C_WA+t}"))
                    fill += rest[2 * t:2 * t + 2]
                fill.append(I(f"v_add_u32 v{C_XA+1}, {d & 0xffffffff}, v{C_XA+1}"))
                pg = [2] * 5 + [1] * 19
                self.c += interleave(self.p1_mfmas(1, False), fill, per_gap=pg)
            else:
                fill = []
                for pe in range(1, 8):
                    fill.append(I(f"v_xor_b32 v{21+pe}, {pe<<5}, v18"))
                fill.append(I("v_mov_b32 v21, v18"))
                for p in range(4):
                    for kt in range(3):
                        for e in range(2):
                            fill.append(I(f"ds_read_b64 {vr(self.kfrag(kt,p)+2*e,2)}, v{21+2*p+e} offset:{kt*4096}"))
                main = self.p1_mfmas(1, False)
                self.c += interleave(main, fill, per_gap=2)
        self.c += self.st("Qdone")
        self.c += self.st("cyc1")
        def cvtq(p):
            r = []
            for st in range(3):
                a, b = acc(2 * p, st), acc(2 * p + 1, st)
                r += L(f"""
v_cvt_pk_bf16_f32 v{a}, v{a}, v{a+1}
v_cvt_pk_bf16_f32 v{a+1}, v{a+2}, v{a+3}
v_cvt_pk_bf16_f32 v{a+2}, v{b}, v{b+1}
v_cvt_pk_bf16_f32 v{a+3}, v{b+2}, v{b+3}
""")
            return r
        def sacc(kt, st):
            i = kt * 3 + st
            return C_AF[1] + 4 * i if i < 8 else C_BF[1]
        self.c += cvtq(0)
        for p in range(4):
            m = [mfma(sacc(kt, st), self.kfrag(kt, p), acc(2 * p, st), None if p == 0 else sacc(kt, st))
                 for st in range(3) for kt in range(3)]
            self.c += interleave(m, cvtq(p + 1) if p < 3 else [], per_gap=2)
        A("s_waitcnt lgkmcnt(0)\ns_barrier")
        pre = []
        if not o.stop_after_p1:
            pre += self.p2_setup()
        self.c += pre
        self.softmax(sacc)
        self.c += self.st("Pw")
        A("s_waitcnt lgkmcnt(0)\ns_barrier")
        if o.stop_after_p1:
            self.c += self.dump_stamps()
            A("s_endpgm")
            return self.c
        self.p2()
        self.c += self.st("P2done")
        self.c += self.st("cyc2")
        self.epilogue()
        return self.c

    def softmax(self, sacc):
        A = self.A
        M, T, U = 32, 36, 40
        vals = [[sacc(kt, st) + r for kt in range(3) for r in range(4)] for st in range(3)]
        for st in range(3):
            v = vals[st]
            A(f"""
v_max3_f32 v{M+st}, v{v[0]}, v{v[1]}, v{v[2]}
v_max3_f32 v{T+st}, v{v[3]}, v{v[4]}, v{v[5]}
v_max3_f32 v{M+st}, v{M+st}, v{v[6]}, v{v[7]}
v_max3_f32 v{T+st}, v{T+st}, v{v[8]}, v{v[9]}
v_max3_f32 v{M+st}, v{M+st}, v{v[10]}, v{v[11]}
v_max_f32 v{M+st}, v{M+st}, v{T+st}
""")
        def xreduce(op, base, T=T):
            for sw in ("v_permlane32_swap_b32", "v_permlane16_swap_b32"):
                for st in range(3):
                    A(f"v_mov_b32 v{T+st}, v{base+st}")
                for st in range(3):
                    A(f"{sw} v{T+st}, v{base+st}")
                for st in range(3):
                    A(f"{op} v{base+st}, v{base+st}, v{T+st}")
        xreduce("v_max_f32", M)
        for st in range(3):
            A(f"v_mul_f32 v{M+st}, s{S_C0}, v{M+st}")
        for st in range(3):
            v = vals[st]
            for x in v:
                A(f"v_fma_f32 v{x}, v{x}, s{S_C0}, -v{M+st}")
            for x in v:
                A(f"v_exp_f32 v{x}, v{x}")
        for st in range(3):
            v = vals[st]
            A(f"v_add_f32 v{U+st}, v{v[0]}, v{v[1]}\nv_add_f32 v{U+4+st}, v{v[2]}, v{v[3]}")
            for i in range(4, 12, 2):
                A(f"v_add_f32 v{U+st}, v{U+st}, v{v[i]}\nv_add_f32 v{U+4+st}, v{U+4+st}, v{v[i+1]}")
            A(f"v_add_f32 v{U+st}, v{U+st}, v{U+4+st}")
        xreduce("v_add_f32", U)
        for st in range(3):
            A(f"v_rcp_f32 v{U+st}, v{U+st}")
        for st in range(3):
            v = vals[st]
            for x in v:
                A(f"v_mul_f32 v{x}, v{x}, v{U+st}")
            pk = 48 + 4 * st
            for i in range(4):
                A(f"v_cvt_pk_bf16_f32 v{pk+i}, v{v[2*i]}, v{v[2*i+1]}")
            pk2 = 24 + 2 * st
            for i in range(2):
                A(f"v_cvt_pk_bf16_f32 v{pk2+i}, v{v[8+2*i]}, v{v[9+2*i]}")
            A(f"ds_write_b128 v19, {vr(pk,4)} offset:{st*1024}")
            A(f"ds_write_b64 v20, {vr(pk2,2)} offset:{12288+st*1024}")

    def v_reads(self, ks, dst):
        return [I(f"ds_read_b128 {vr(dst+4*kt,4)}, v{D_VA+ks} offset:{kt*4096}") for kt in range(3)]

    def w_reads_main(self, step, s):
        return [I(f"ds_read_b64_tr_b16 {vr(D_W[s]+4*t+2*i,2)}, v{D_WA+t} offset:{step*8192+i*1024}")
                for t in range(4) for i in range(2)]

    def w_reads_extra(self, q, step, s):
        so = W_LDS[q] - W_LDS[0]
        return [I(f"ds_read_b64_tr_b16 {vr(D_W[s]+4*(2*kk+t)+2*i,2)}, v{D_EA+t} offset:{so+(2*step+kk)*4096+i*512}")
                for kk in range(2) for t in range(2) for i in range(2)]

    def p_reads(self, f, s):
        return [I(f"ds_read_b128 {vr(D_P[s]+4*st,4)}, v{D_PA} offset:{f*6144+st*1024}") for st in range(3)]

    VHOLD = [D_P[0], D_P[1], D_V[0], D_V[1]]

    def p2_setup(self):
        r = L(f"""
s_lshr_b32 s{S_T0}, s{S_W}, 1
s_and_b32 s{S_T1}, s{S_W}, 1
v_lshl_add_u32 v6, v1, 3, v2
v_lshlrev_b32 v7, 8, v6
v_lshl_add_u32 v7, v3, 3, v7
s_lshl_b32 s{S_T2}, s{S_T1}, 2
v_xor_b32 v8, s{S_T2}, v5
v_lshl_add_u32 v8, v8, 5, v7
v_add_u32 v8, {W_LDS[2]}, v8
v_xor_b32 v9, 32, v8
v_xor_b32 v10, 64, v8
v_xor_b32 v11, 96, v8
v_lshlrev_b32 v7, 7, v6
v_lshl_add_u32 v7, v3, 3, v7
v_and_b32 v12, 1, v1
v_lshlrev_b32 v12, 1, v12
v_lshrrev_b32 v13, 1, v2
v_or_b32 v12, v12, v13
s_lshl_b32 s{S_T2}, s{S_T1}, 1
v_xor_b32 v12, s{S_T2}, v12
v_lshl_add_u32 v12, v12, 5, v7
v_add_u32 v12, {W_LDS[0]}, v12
v_xor_b32 v13, 32, v12
s_mul_i32 s{S_T2}, s{S_T0}, 3072
s_add_u32 s{S_T2}, s{S_T2}, {P_LDS}
v_lshl_add_u32 v14, v0, 4, s{S_T2}
v_xor_b32 v7, v1, v4
v_lshlrev_b32 v7, 4, v7
v_lshl_add_u32 v7, v4, 8, v7
s_mul_i32 s{S_T2}, s{S_T0}, 12288
v_add_u32 v2, s{S_T2}, v7
v_xor_b32 v3, 64, v2
v_xor_b32 v4, 128, v2
v_xor_b32 v5, 192, v2
""")
        assert W_LDS[2] % 256 == 0 and W_LDS[0] % 256 == 0
        for ks in range(4):
            r += self.v_reads(ks, self.VHOLD[ks])
        r += self.w_reads_extra(0, 0, 0)
        return r

    def vw(self, t, kt):
        return D_VW + (t * 3 + kt) * 4

    def cvt_tile(self, t, f01, f2, h):
        r = []
        for kt in range(3):
            s = self.vw(t, kt)
            d = f01 + 2 * kt if kt < 2 else f2 + 2 * h
            r.append(I(f"v_cvt_pk_bf16_f32 v{d}, v{s}, v{s+1}"))
            r.append(I(f"v_cvt_pk_bf16_f32 v{d+1}, v{s+2}, v{s+3}"))
        return r

    def finals(self, outb, fb, ps, nt, first=False):
        return [[mfma(outb + (t * 3 + st) * 4, fb + 4 * t, D_P[ps] + 4 * st, None if first else outb + (t * 3 + st) * 4)
                 for st in range(3)] for t in range(nt)]

    def p2(self):
        A = self.A
        EF = [D_OUTM, D_OUTM + 8, D_OUTM + 16]
        carry = []
        wslot = 2
        for q in range(18):
            for step in range(2):
                s = step
                fill = []
                if q < 2:
                    vwm = [[mfma(self.vw(2 * q + t, kt), self.VHOLD[2 * step + kk] + 4 * kt, D_W[s] + 4 * (2 * kk + t),
                                 None if (step == 0 and kk == 0) else self.vw(2 * q + t, kt))
                            for kt in range(3)] for kk in range(2) for t in range(2)]
                    pos, r4 = 0, -1
                else:
                    pos, r4 = divmod(q - 2, 4)
                    ks = 2 * (r4 & 1) + step
                    vb = self.VHOLD[ks] if q in (2, 3) else D_V[step]
                    vwm = [[mfma(self.vw(t, kt), vb + 4 * kt, D_W[s] + 4 * t, None if ks == 0 else self.vw(t, kt))
                            for kt in range(3)] for t in range(4)]
                fin = []
                if (q, step) == (3, 1):
                    fin = self.finals(D_OUTE, EF[0], 0, 2, first=True)
                elif (q, step) == (4, 0):
                    fin = self.finals(D_OUTE, EF[1], 1, 2)
                elif (q, step) == (4, 1):
                    fin = self.finals(D_OUTE, EF[2], 0, 2)
                elif q >= 2 and step == 0 and r4 == 3:
                    fin = self.finals(D_OUTM, D_F01, 1, 4, first=(pos == 0))
                elif q >= 6 and step == 0 and r4 == 0:
                    fin = self.finals(D_OUTM, D_F01, 0, 4)
                elif q >= 6 and step == 0 and r4 == 1:
                    fin = self.finals(D_OUTM, D_F2, 1, 4)
                main = []
                for i in range(4):
                    if i < len(fin):
                        main += fin[i]
                    main += vwm[i]
                nq, nstep = (q, 1) if step == 0 else (q + 1, 0)
                rd = []
                if nq < 18:
                    if nq < 2:
                        rd += self.w_reads_extra(nq, nstep, 1 - s)
                    else:
                        npos, nr4 = divmod(nq - 2, 4)
                        if nstep == 0 and nq != wslot:
                            d = W_LDS[nq % 5] - W_LDS[wslot % 5]
                            wslot = nq
                            rd += [I(f"v_add_u32 v{D_WA+t}, {d & 0xffffffff}, v{D_WA+t}") for t in range(4)]
                        if nq >= 4:
                            if nstep == 0 and nr4 == 0:
                                d = V_LDS[npos % 2] - V_LDS[(npos - 1) % 2]
                                rd += [I(f"v_add_u32 v{D_VA+k}, {d & 0xffffffff}, v{D_VA+k}") for k in range(4)]
                            rd += self.v_reads(2 * (nr4 & 1) + nstep, D_V[nstep])
                        rd += self.w_reads_main(nstep, 1 - s)
                pr = []
                if (q, step) == (3, 0):
                    pr = self.p_reads(0, 0)
                elif (q, step) == (3, 1):
                    pr = self.p_reads(1, 1)
                elif (q, step) == (4, 0):
                    pr = self.p_reads(2, 0)
                elif q >= 2 and step == 1 and r4 == 2:
                    pr = self.p_reads(0, 1)
                elif q >= 2 and step == 1 and r4 == 3:
                    pr = self.p_reads(1, 0)
                elif q >= 6 and step == 1 and r4 == 0:
                    pr = self.p_reads(2, 1)
                if q == 17 and step == 1:
                    pr = pr + self.p_reads(2, 1)
                cv = []
                if step == 1 and q < 2:
                    for t in range(2):
                        cv += self.cvt_tile(2 * q + t, EF[q] + 4 * t, EF[2] + 4 * t, q)
                elif step == 1 and q >= 2 and (r4 & 1) == 1:
                    h = r4 >> 1
                    for t in range(4):
                        cv += self.cvt_tile(t, D_F01 + 4 * t, D_F2 + 4 * t, h)
                n = len(main)
                gaps = [[] for _ in range(n)]
                early = carry + rd + pr
                carry = []
                if cv and q >= 2:
                    tail = cv[:12]
                    carry = cv[12:]
                    for i, x in enumerate(tail):
                        gaps[n - 6 + i // 2].append(x)
                    room = n - 6
                elif cv:
                    carry = cv
                    room = n
                else:
                    room = n
                gi = 0
                per = 2
                if len(early) > 2 * room:
                    per = 3
                for i, x in enumerate(early):
                    gaps[min(i // per, n - 1)].append(x)
                for m, g in zip(main, gaps):
                    self.c.append(m)
                    self.c += g
                if step == 0:
                    if q in (8,):
                        self.c += self.st(f"C{q+1}")
                    A("s_waitcnt lgkmcnt(0)\ns_barrier")
        f1 = self.finals(D_OUTM, D_F01, 0, 4)
        f2 = self.finals(D_OUTM, D_F2, 1, 4)
        main = f1[0] + f2[0] + f1[1] + f2[1] + f1[2] + f2[2] + f1[3] + f2[3]
        self.c += interleave(main, carry, per_gap=2)

    def epilogue(self):
        A = self.A
        A(f"""
s_add_u32 s{S_T0}, s{S_GRP}, s{S_J}
s_mul_i32 s{S_T0}, s{S_T0}, 36864
s_add_u32 s{S_T0}, s{S_T0}, {WS_PART}
s_mul_i32 s{S_T1}, s{S_W}, 6144
s_add_u32 s{S_T1}, s{S_T1}, s{S_T0}
s_add_u32 s{S_T2}, s{S_T1}, 3072
s_mul_i32 s{S_T3}, s{S_W}, 3072
s_add_u32 s{S_T3}, s{S_T3}, s{S_T0}
s_add_u32 s{S_T3}, s{S_T3}, 24576
v_lshlrev_b32 v1, 4, v0
v_mov_b32 v2, 0
buffer_load_dwordx2 v[4:5], v2, {sr(R_DBG,4)}, 0 offen sc1
""")
        k = 0
        def pack_store(a, b, soff, st):
            nonlocal k
            d = D_VW + 4 * k
            k += 1
            A(f"""
v_cvt_pk_bf16_f32 v{d}, v{a}, v{a+1}
v_cvt_pk_bf16_f32 v{d+1}, v{a+2}, v{a+3}
v_cvt_pk_bf16_f32 v{d+2}, v{b}, v{b+1}
v_cvt_pk_bf16_f32 v{d+3}, v{b+2}, v{b+3}
buffer_store_dwordx4 {vr(d,4)}, v1, {sr(R_WS,4)}, s{soff} offen offset:{st*1024} sc1
""")
        for st in range(3):
            pack_store(D_OUTE + st * 4, D_OUTE + (3 + st) * 4, S_T3, st)
        for tp in range(2):
            for st in range(3):
                pack_store(D_OUTM + (2 * tp * 3 + st) * 4, D_OUTM + ((2 * tp + 1) * 3 + st) * 4, S_T1 + tp, st)
        A(f"""
s_add_u32 s{S_T0}, s{S_GRP}, s{S_J}
s_lshl_b32 s{S_T0}, s{S_T0}, 7
s_lshl_b32 s{S_T1}, s{S_W}, 3
s_add_u32 s{S_T0}, s{S_T0}, s{S_T1}
s_add_u32 s{S_T0}, s{S_T0}, {WS_FLAGF}
s_waitcnt vmcnt(0)
s_mov_b64 exec, 1
buffer_store_dwordx2 v[4:5], v2, {sr(R_WS,4)}, s{S_T0} offen sc1
s_mov_b64 exec, -1
v_readfirstlane_b32 s{S_NON}, v4
v_readfirstlane_b32 s{S_NON+1}, v5
""")
        self.c += self.st("stored")
        self.c += final_gather(self.o, comp=self)

    def dump_stamps(self):
        if not self.o.stamps:
            return []
        return L(f"s_cmp_lg_u32 s{S_W}, 0\ns_cbranch_scc1 L_nostamp_c") + self.st.dump(0) + L("L_nostamp_c:")


def unpack_add(dst, src, first):
    r = []
    for i in range(4):
        if first:
            r += L(f"v_lshlrev_b32 v{dst+2*i}, 16, v{src+i}\nv_and_b32 v{dst+2*i+1}, 0xffff0000, v{src+i}")
        else:
            r += L(f"""
v_lshlrev_b32 v{src+4}, 16, v{src+i}
v_and_b32 v{src+i}, 0xffff0000, v{src+i}
v_add_f32 v{dst+2*i}, v{dst+2*i}, v{src+4}
v_add_f32 v{dst+2*i+1}, v{dst+2*i+1}, v{src+i}
""")
    return r


def final_gather(o, loader=None, comp=None):
    c = []
    tag = "l" if loader else "c"
    me = loader or comp
    def A(s):
        c.extend(L(s))
    if loader:
        A(f"s_cmp_eq_u32 s{S_W}, 3\ns_cbranch_scc1 L_fin_l")
    A(f"s_mul_i32 s{S_T0}, s{S_BR}, 1152")
    c += srd_off(R_OUT, S_OUT, S_T0, 1769472)
    A(f"""
v_lshrrev_b32 v8, 2, v0
v_lshlrev_b32 v8, 7, v8
v_and_b32 v9, 3, v0
v_lshl_add_u32 v8, v9, 3, v8
s_lshl_b32 s{S_T5}, s{S_GRP}, 7
s_add_u32 s{S_T5}, s{S_T5}, {WS_FLAGF}
""")
    if loader:
        A(f"s_cmp_eq_u32 s{S_W}, 2\ns_cbranch_scc1 L_extra")
        A(f"s_add_u32 s{S_T4}, s{S_W}, 4")
    else:
        A(f"s_mov_b32 s{S_T4}, s{S_W}")
    A(f"""
s_mul_i32 s{S_T0}, s{S_KQ}, 6
s_add_u32 s{S_T0}, s{S_T0}, s{S_T4}
s_lshl_b32 s{S_T0}, s{S_T0}, 10
s_add_u32 s{S_T1}, s{S_GRP}, s{S_JL}
s_mul_i32 s{S_T1}, s{S_T1}, 36864
s_add_u32 s{S_T0}, s{S_T0}, s{S_T1}
s_add_u32 s{S_T0}, s{S_T0}, {WS_PART}
s_cmp_ge_u32 s{S_T4}, 3
s_cselect_b32 s{S_T1}, 1, 0
s_mul_i32 s{S_T2}, s{S_T1}, 3
s_sub_u32 s{S_T2}, s{S_T4}, s{S_T2}
s_lshr_b32 s{S_T3}, s{S_KQ}, 1
s_lshl_b32 s{S_CNT}, s{S_BP}, 1
s_add_u32 s{S_T3}, s{S_T3}, s{S_CNT}
s_mul_i32 s{S_T3}, s{S_T3}, 48
s_lshl_b32 s{S_T2}, s{S_T2}, 4
s_add_u32 s{S_T3}, s{S_T3}, s{S_T2}
s_mul_i32 s{S_T3}, s{S_T3}, 2304
s_lshl_b32 s{S_T2}, s{S_CQ}, 8
s_add_u32 s{S_T3}, s{S_T3}, s{S_T2}
s_and_b32 s{S_T2}, s{S_KQ}, 1
s_lshl_b32 s{S_T2}, s{S_T2}, 7
s_add_u32 s{S_T3}, s{S_T3}, s{S_T2}
s_lshl_b32 s{S_T1}, s{S_T1}, 6
s_add_u32 s{S_T3}, s{S_T3}, s{S_T1}
v_lshlrev_b32 v1, 4, v0
v_and_b32 v10, 15, v0
v_mul_u32_u24 v10, 2304, v10
v_lshrrev_b32 v11, 4, v0
v_and_b32 v12, 1, v11
v_lshlrev_b32 v12, 5, v12
v_lshrrev_b32 v11, 1, v11
v_lshl_add_u32 v12, v11, 4, v12
v_add_u32 v10, v10, v12
""")
    def poll(label):
        A(f"""
s_mov_b32 s{S_CNT}, {SPIN_MAX}
{label}:
buffer_load_dwordx2 v[14:15], v8, {sr(R_WS,4)}, s{S_T5} offen sc1
s_waitcnt vmcnt(0)
v_cmp_ne_u64 vcc, {sr(S_NON,2)}, v[14:15]
s_sub_u32 s{S_CNT}, s{S_CNT}, 1
s_cmp_eq_u32 s{S_CNT}, 0
s_cbranch_scc1 {label}_done
s_cbranch_vccnz {label}
{label}_done:
""")
    poll(f"L_pollf_{tag}")
    c += me.st("fpolled")
    for k in range(4):
        A(f"buffer_load_dwordx4 {vr(16+8*k,4)}, v1, {sr(R_WS,4)}, s{S_T0} offen sc1")
        if k < 3:
            A(f"s_add_u32 s{S_T0}, s{S_T0}, {4*36864}")
    for k in range(4):
        A(f"s_waitcnt vmcnt({3-k})")
        c += unpack_add(48, 16 + 8 * k, k == 0)
    A(f"""
v_cvt_pk_bf16_f32 v56, v48, v49
v_cvt_pk_bf16_f32 v57, v50, v51
v_cvt_pk_bf16_f32 v58, v52, v53
v_cvt_pk_bf16_f32 v59, v54, v55
v_permlane16_swap_b32 v56, v58
v_permlane16_swap_b32 v57, v59
buffer_store_dwordx4 v[56:59], v10, {sr(R_OUT,4)}, s{S_T3} offen
""")
    if loader:
        A("s_branch L_fin_l")
        A(f"""
L_extra:
s_mul_i32 s{S_T0}, s{S_J}, 48
v_add_u32 v1, s{S_T0}, v0
v_lshrrev_b32 v2, 6, v1
v_and_b32 v3, 63, v1
v_mul_u32_u24 v4, 0x56, v2
v_lshrrev_b32 v4, 8, v4
v_mul_u32_u24 v5, 3, v4
v_sub_u32 v5, v2, v5
v_lshrrev_b32 v6, 1, v4
v_mul_u32_u24 v6, 48, v6
v_lshl_add_u32 v6, v5, 4, v6
v_and_b32 v7, 15, v3
v_add_u32 v6, v6, v7
v_mul_u32_u24 v10, 2304, v6
v_and_b32 v7, 1, v4
v_lshl_add_u32 v10, v7, 6, v10
v_lshrrev_b32 v7, 4, v3
v_lshl_add_u32 v10, v7, 3, v10
s_mul_i32 s{S_T3}, s{S_BP}, {96*2304}
s_add_u32 s{S_T3}, s{S_T3}, 1024
v_lshlrev_b32 v1, 4, v1
s_mul_i32 s{S_T0}, s{S_GRP}, 36864
s_add_u32 s{S_T0}, s{S_T0}, {WS_PART + 24576}
""")
        poll("L_pollf_e")
        A("s_mov_b32 exec_hi, 0xffff")
        for k in range(16):
            A(f"buffer_load_dwordx4 {vr(64+8*k,4)}, v1, {sr(R_WS,4)}, s{S_T0} offen sc1")
            if k < 15:
                A(f"s_add_u32 s{S_T0}, s{S_T0}, 36864")
        for k in range(16):
            A(f"s_waitcnt vmcnt({15-k})")
            c += unpack_add(48, 64 + 8 * k, k == 0)
        A(f"""
v_cvt_pk_bf16_f32 v56, v48, v49
v_cvt_pk_bf16_f32 v57, v50, v51
v_cvt_pk_bf16_f32 v58, v52, v53
v_cvt_pk_bf16_f32 v59, v54, v55
buffer_store_dwordx2 v[56:57], v10, {sr(R_OUT,4)}, s{S_T3} offen
buffer_store_dwordx2 v[58:59], v10, {sr(R_OUT,4)}, s{S_T3} offen offset:32
s_mov_b64 exec, -1
L_fin_l:
""")
    if o.stamps:
        A("s_waitcnt vmcnt(0)")
        c += me.st("end")
        c += me.dump_stamps()
    A("s_endpgm")
    return c


def generate(o):
    ld = Loader(o)
    cp = Compute(o)
    body = finalize(prologue(o)) + finalize(ld.gen()) + finalize(cp.gen())
    hdr = open("concat_heads__gqa_block_cached__gqa_block_cached__near_ridge.s.ref").read().split("\n")
    head = [l for l in hdr if l.startswith(";") and "@launch" not in l]
    s = "\n".join(head) + f"\n; @launch grid=(256,1,1) block=(512,1,1) lds={LDS_BYTES}\n"
    s += f'.amdgcn_target "amdgcn-amd-amdhsa--gfx950"\n.text\n.globl {NAME}\n.p2align 8\n.type {NAME},@function\n{NAME}:\n'
    s += text(body) + "\nL_end:\n    s_endpgm\n"
    s += f""".section .rodata,"a"
.p2align 6
.amdhsa_kernel {NAME}
  .amdhsa_next_free_vgpr 256
  .amdhsa_next_free_sgpr 102
  .amdhsa_accum_offset 256
  .amdhsa_group_segment_fixed_size 0
  .amdhsa_kernarg_size 104
  .amdhsa_user_sgpr_count 2
  .amdhsa_user_sgpr_kernarg_segment_ptr 1
  .amdhsa_system_sgpr_workgroup_id_x 1
.end_amdhsa_kernel
"""
    return s, ld.st.names, cp.st.names


if __name__ == "__main__":
    o = Opt()
    out = sys.argv[1]
    for a in sys.argv[2:]:
        k, v = a.split("=")
        cur = getattr(o, k)
        setattr(o, k, (v == "1") if isinstance(cur, bool) else type(cur)(v))
    s, ln, cn = generate(o)
    open(out, "w").write(s)
    if o.stamps:
        open(out + ".names", "w").write(repr((cn, ln)))
    print("generated", out, len(s.splitlines()), "lines")
```

```python
import sys,re
src=open(sys.argv[1]).read()
NAME="concat_heads__gqa_block_cached__gqa_block_cached__near_ridge_kernel"
m=re.search(r"; @launch (grid=\S+ block=\S+ lds=\d+)",src); geo=m.group(1)
KD=lambda n: f""".section .rodata,"a"
.p2align 6
.amdhsa_kernel {n}
  .amdhsa_next_free_vgpr 16
  .amdhsa_next_free_sgpr 48
  .amdhsa_accum_offset 16
  .amdhsa_group_segment_fixed_size 0
  .amdhsa_kernarg_size 104
  .amdhsa_user_sgpr_count 2
  .amdhsa_user_sgpr_kernarg_segment_ptr 1
  .amdhsa_system_sgpr_workgroup_id_x 1
.end_amdhsa_kernel
"""
OFF=0x2000000
S=f""".text
.globl s_kernel
.p2align 8
.type s_kernel,@function
s_kernel:
    s_memrealtime s[14:15]
    s_cmp_lg_u32 s2, 0
    s_cbranch_scc1 Ls_end
    s_load_dwordx2 s[4:5], s[0:1], 96
    v_mov_b32 v1, {OFF}
    s_waitcnt lgkmcnt(0)
    v_mov_b32 v2, s14
    global_store_dword v1, v2, s[4:5]
Ls_end:
    s_endpgm
"""+KD("s_kernel")
def Z(k): return f""".text
.globl z_kernel
.p2align 8
.type z_kernel,@function
z_kernel:
    s_memrealtime s[14:15]
    s_cmp_lg_u32 s2, 0
    s_cbranch_scc1 Lz_end
    s_load_dwordx2 s[4:5], s[0:1], 96
    v_mov_b32 v1, {OFF}
    s_waitcnt lgkmcnt(0)
    global_load_dword v2, v1, s[4:5] sc1
    s_waitcnt vmcnt(0)
    v_readfirstlane_b32 s10, v2
    s_nop 1
    s_sub_u32 s12, s14, s10
    s_mul_i32 s12, s12, {k}
    s_min_u32 s12, s12, 100000
Lz_spin:
    s_memrealtime s[16:17]
    s_waitcnt lgkmcnt(0)
    s_sub_u32 s18, s16, s14
    s_cmp_lt_u32 s18, s12
    s_cbranch_scc1 Lz_spin
Lz_end:
    s_endpgm
"""+KD("z_kernel")
for seq,k in (("SXZ",0),("SXZ",10),("XSZ",0),("XSZ",10)):
    lines=[]
    for c in seq:
        lines.append({"X":f"; @launch kernel={NAME} {geo}","S":"; @launch kernel=s_kernel grid=(1,1,1) block=(64,1,1) lds=0","Z":"; @launch kernel=z_kernel grid=(1,1,1) block=(64,1,1) lds=0"}[c])
    open(f"p2_{seq}{k}.s","w").write(src.replace(m.group(0),"\n".join(lines))+S+Z(k))
```

```python
import re


def vr(base, n=1):
    return f"v{base}" if n == 1 else f"v[{base}:{base+n-1}]"


def sr(base, n=1):
    return f"s{base}" if n == 1 else f"s[{base}:{base+n-1}]"


def rng(base, n):
    return set(range(base, base + n))


class Ins:
    __slots__ = ("text", "kind", "rd", "wr", "srcc", "swr", "srd", "note")

    def __init__(self, text, kind, rd=(), wr=(), srcc=(), swr=(), srd=(), note=None):
        self.text = text
        self.kind = kind
        self.rd = set(rd)
        self.wr = set(wr)
        self.srcc = set(srcc)
        self.swr = set(swr)
        self.srd = set(srd)
        self.note = note


_VRE = re.compile(r"v\[(\d+):(\d+)\]|\bv(\d+)\b")
_SRE = re.compile(r"s\[(\d+):(\d+)\]|\bs(\d+)\b|\b(vcc|m0|exec)\b")


def vregs(s):
    out = set()
    for m in _VRE.finditer(s):
        if m.group(1) is not None:
            out |= set(range(int(m.group(1)), int(m.group(2)) + 1))
        else:
            out.add(int(m.group(3)))
    return out


def sregs(s):
    out = set()
    for m in _SRE.finditer(s):
        if m.group(1) is not None:
            out |= {f"s{i}" for i in range(int(m.group(1)), int(m.group(2)) + 1)}
        elif m.group(3) is not None:
            out.add(f"s{m.group(3)}")
        else:
            out.add(m.group(4))
    return out


TRANS = ("v_exp_f32", "v_log_f32", "v_rcp_f32", "v_rsq_f32", "v_sqrt_f32")


def split_ops(rest):
    ops, depth, cur = [], 0, ""
    for ch in rest:
        if ch == "[":
            depth += 1
        if ch == "]":
            depth -= 1
        if ch == "," and depth == 0:
            ops.append(cur.strip())
            cur = ""
        else:
            cur += ch
    ops.append(cur.strip())
    return ops


def I(text):
    t = text.strip()
    if t.endswith(":"):
        return Ins(t, "label")
    mn, _, rest = t.partition(" ")
    ops = split_ops(rest) if rest else []
    if mn.startswith("v_mfma"):
        d, a, b, c = ops[0], ops[1], ops[2], ops[3]
        return Ins(t, "mfma", rd=vregs(a) | vregs(b), wr=vregs(d), srcc=vregs(c))
    if mn.startswith("ds_read"):
        return Ins(t, "dsr", rd=vregs(ops[1]), wr=vregs(ops[0]))
    if mn.startswith("ds_append"):
        return Ins(t, "dsr", wr=vregs(rest))
    if mn.startswith("ds_write") or mn.startswith("ds_add"):
        return Ins(t, "dsw", rd=vregs(rest))
    if mn.startswith("buffer_load") or mn.startswith("global_load"):
        if " lds" in t:
            return Ins(t, "vmem", rd=vregs(rest), srd=sregs(rest) | {"m0"})
        return Ins(t, "vmem", rd=vregs(",".join(ops[1:])), wr=vregs(ops[0]), srd=sregs(rest), note="load")
    if mn.startswith("buffer_store") or mn.startswith("global_store") or mn.startswith("buffer_atomic") or mn.startswith("global_atomic"):
        return Ins(t, "vmem", rd=vregs(rest), srd=sregs(rest), note="store")
    if mn == "s_barrier":
        return Ins(t, "bar")
    if mn == "s_waitcnt":
        return Ins(t, "wait")
    if mn == "s_nop":
        return Ins(t, "nop")
    if mn.startswith("s_load") or mn.startswith("s_mem") or mn.startswith("s_buffer_load"):
        return Ins(t, "smem", swr=sregs(ops[0]), srd=sregs(",".join(ops[1:])))
    if mn.startswith("s_"):
        if mn.startswith(("s_cmp", "s_cbranch", "s_branch", "s_sleep", "s_setprio", "s_endpgm", "s_bitcmp")):
            return Ins(t, "salu", srd=sregs(rest))
        swr = sregs(ops[0]) if ops else set()
        if "saveexec" in mn:
            swr |= {"exec"}
        return Ins(t, "salu", swr=swr, srd=sregs(",".join(ops[1:])))
    if mn.startswith("v_"):
        if mn.startswith("v_permlane"):
            rw = vregs(rest)
            return Ins(t, "perm", rd=rw, wr=rw)
        if mn.startswith(("v_readfirstlane", "v_readlane")):
            return Ins(t, "rdlane", rd=vregs(ops[1]), swr=sregs(ops[0]), srd=sregs(",".join(ops[2:])))
        if mn.startswith("v_cmp"):
            return Ins(t, "valu", rd=vregs(",".join(ops[1:])), swr=sregs(ops[0]), srd=sregs(",".join(ops[1:])))
        wr = vregs(ops[0])
        rd = vregs(",".join(ops[1:]))
        srd = sregs(",".join(ops[1:]))
        if mn.startswith(("v_fmac", "v_pk_fmac")):
            rd |= wr
        kind = "valu"
        if mn.replace("_e32", "").replace("_e64", "") in TRANS:
            kind = "trans"
        if "dpp" in mn or "row_" in t or "quad_perm" in t:
            kind = "dpp"
            rd |= wr
        return Ins(t, kind, rd=rd, wr=wr, srd=srd)
    raise ValueError("unknown instruction: " + t)


def states(ins):
    if ins.kind == "nop":
        return int(ins.text.split()[1], 0) + 1
    if ins.kind == "label":
        return 0
    return 1


VALU_KINDS = ("valu", "trans", "perm", "dpp", "rdlane")


def need_gap(p, c):
    n = 0
    if p.kind == "mfma":
        big = "32x32" in p.text
        d = 12 if big else 8
        if c.kind == "mfma":
            if c.rd & p.wr:
                n = max(n, d)
            if c.srcc & p.wr and c.srcc != p.wr:
                n = max(n, 10 if big else 6)
            if (c.wr & p.wr) and not (c.srcc == p.wr):
                n = max(n, d)
        else:
            if (c.rd | c.wr) & p.wr:
                n = max(n, d)
            if c.kind in VALU_KINDS and c.wr & p.srcc:
                n = max(n, 7 if big else 3)
    if p.kind in VALU_KINDS:
        if c.kind == "mfma" and (c.rd | c.srcc) & p.wr:
            n = max(n, 2)
        if c.kind in ("perm", "dpp") and c.rd & p.wr:
            n = max(n, 2)
        if c.kind == "rdlane" and c.rd & p.wr:
            n = max(n, 1)
        if p.kind == "trans" and c.kind in VALU_KINDS and c.kind != "trans" and c.rd & p.wr:
            n = max(n, 1)
        if p.kind == "trans" and c.kind == "trans" and c.rd & p.wr:
            n = max(n, 1)
        if p.swr:
            if c.kind == "vmem" and c.srd & p.swr:
                n = max(n, 5)
            if c.kind in VALU_KINDS and c.srd & p.swr:
                n = max(n, 4 if c.kind == "rdlane" else 2)
            if c.kind in ("salu", "smem") and c.srd & p.swr:
                n = max(n, 1)
    if p.kind == "salu" and "m0" in p.swr and c.kind == "vmem" and "m0" in c.srd:
        n = max(n, 1)
    if p.kind == "vmem" and p.note == "store" and ("x4" in p.text or "x3" in p.text):
        if c.wr & p.rd:
            n = max(n, 2)
    return n


def finalize(stream, auto_lgkm=True):
    out = []
    pend = []
    smem_out = False

    def emit(x):
        out.append(x)

    for ins in stream:
        if ins.kind == "wait":
            m = re.search(r"lgkmcnt\((\d+)\)", ins.text)
            if m:
                n = int(m.group(1))
                if n == 0:
                    pend = []
                    smem_out = False
                elif not smem_out:
                    pend = pend[len(pend) - n:] if n < len(pend) else pend
        elif auto_lgkm:
            touch = ins.rd | ins.wr | ins.srcc
            last = -1
            for i, (k, w) in enumerate(pend):
                if w & touch:
                    last = i
            if last >= 0:
                n = len(pend) - 1 - last
                if smem_out:
                    n = 0
                n = min(n, 15)
                emit(I(f"s_waitcnt lgkmcnt({n})"))
                pend = pend[len(pend) - n:] if n > 0 else []
                if n == 0:
                    smem_out = False
        if ins.kind not in ("label",):
            gap = 0
            need = 0
            for p in reversed(out):
                if gap >= 20:
                    break
                r = need_gap(p, ins)
                if r > gap:
                    need = max(need, r - gap)
                gap += states(p)
            while need > 0:
                k = min(need, 16)
                emit(I(f"s_nop {k-1}"))
                need -= k
        emit(ins)
        if ins.kind == "dsr":
            pend.append(("r", set(ins.wr)))
        elif ins.kind == "dsw":
            pend.append(("w", set()))
        elif ins.kind == "smem":
            smem_out = True
            pend.append(("s", set()))
    return out


def interleave(main, fill, per_gap=2, start=0, lead=0):
    out = []
    fill = list(fill)
    for _ in range(lead):
        if fill:
            out.append(fill.pop(0))
    for i, m in enumerate(main):
        out.append(m)
        if i >= start:
            k = per_gap[i] if isinstance(per_gap, (list, tuple)) else per_gap
            for _ in range(k):
                if fill:
                    out.append(fill.pop(0))
    out += fill
    return out


def text(stream):
    return "\n".join(("" if i.kind == "label" else "    ") + i.text for i in stream)


import subprocess, tempfile, os


def sizes_of(stream, prefix=""):
    src = '.amdgcn_target "amdgcn-amd-amdhsa--gfx950"\n.text\n' + prefix + text(stream) + "\nL_end:\n s_endpgm\n"
    d = tempfile.mkdtemp()
    open(d + "/a.s", "w").write(src)
    r = subprocess.run(["clang", "-x", "assembler", "-target", "amdgcn-amd-amdhsa", "-mcpu=gfx950",
                        "-c", d + "/a.s", "-o", d + "/a.o"], capture_output=True, text=True)
    assert r.returncode == 0, r.stderr
    r = subprocess.run(["llvm-objdump", "-d", "--mcpu=gfx950", d + "/a.o"], capture_output=True, text=True)
    addrs = [int(m.group(1), 16) for m in re.finditer(r"// ([0-9A-F]{12}):", r.stdout)]
    sz = [b - a for a, b in zip(addrs, addrs[1:])]
    out, k = [], 0
    for ins in stream:
        if ins.kind == "label":
            out.append(0)
        else:
            out.append(sz[k])
            k += 1
    assert k == len(sz), (k, len(sz))
    return out


def add_stubs(stream, regions, prefix=""):
    pre = prefix
    tmp = list(stream)
    for (_, _, tag, nw, _) in regions:
        tmp += [I(f"{tag}_w{w}:") for w in range(nw)]
    sz = sizes_of(tmp, pre)[:len(stream)]
    out, off, cur, have = [], 0, None, -1
    stubs = {r[2]: [] for r in regions}
    for ins, s in zip(stream, sz):
        if ins.kind == "label":
            nm = ins.text[:-1]
            for r in regions:
                if nm == r[0]:
                    cur = r
                if nm == r[1]:
                    cur = None
            out.append(ins)
            continue
        if cur is not None and off // 64 != have:
            st = Ins("", "salu")
            lab = Ins("", "label")
            out += [lab, st]
            stubs[cur[2]].append((lab, st))
            have = off // 64
            off += 4
        out.append(ins)
        off += s
    for (_, _, tag, nw, ret) in regions:
        ss = stubs[tag]
        per = -(-len(ss) // nw)
        for i, (lab, st) in enumerate(ss):
            lab.text = f"{tag}_w{i//per}:" if i % per == 0 else f"{tag}_s{i}:"
        for i, (lab, st) in enumerate(ss):
            last = (i + 1) % per == 0 or i + 1 == len(ss)
            st.text = f"s_cbranch_execz {ret if last else ss[i+1][0].text[:-1]}"
        assert (len(ss) - 1) // per == nw - 1
    return out


class Sched:
    FILL = 5
    DS_LAT = 120
    MFMA_LAT = 36
    WAR_MEM = 160
    WAR_DS = 40
    DS_SCALE = 1.15


def ds_cost(ins):
    t = ins.text
    if "b128" in t:
        c = 4 if ins.kind == "dsr" else 8
    elif "b64" in t:
        c = 2 if ins.kind == "dsr" else 4
    else:
        c = 2
    return c * 4 * Sched.DS_SCALE


def schedule(block, P=Sched):
    n = len(block)
    succ = [[] for _ in range(n)]
    npred = [0] * n
    lastw, readers = {}, {}
    chain_prev = None

    def edge(a, b, lat):
        succ[a].append((b, lat))
        npred[b] += 1

    def lat_raw(p, c):
        if p.kind == "dsr":
            return P.DS_LAT
        if p.kind == "mfma":
            if c.kind == "mfma" and c.srcc == p.wr and not (c.rd & p.wr):
                return 16
            return P.MFMA_LAT
        if p.kind == "trans":
            return 12
        if c.kind in ("mfma", "perm", "dpp"):
            return 12
        return 4

    for i, ins in enumerate(block):
        rds = {("v", r) for r in ins.rd | ins.srcc} | {("s", r) for r in ins.srd}
        wrs = {("v", r) for r in ins.wr} | {("s", r) for r in ins.swr}
        if ins.kind == "salu":
            mn = ins.text.split()[0]
            if mn.startswith(("s_cbranch_scc", "s_cselect", "s_addc", "s_subb")):
                rds.add(("s", "scc"))
            if mn.startswith("s_cbranch_vcc"):
                rds.add(("s", "vcc"))
            if not mn.startswith(("s_mov", "s_cbranch", "s_branch", "s_cselect", "s_sleep", "s_setprio", "s_mul")):
                wrs.add(("s", "scc"))
        seen = {}
        for r in rds:
            if r in lastw:
                p = lastw[r]
                seen[p] = max(seen.get(p, 0), lat_raw(block[p], ins))
        for r in wrs:
            if r in lastw:
                p = lastw[r]
                pl = block[p]
                l = 4
                if pl.kind == "mfma" and not (ins.kind == "mfma" and ins.srcc == pl.wr):
                    l = P.MFMA_LAT
                if pl.kind == "dsr":
                    l = P.DS_LAT
                seen[p] = max(seen.get(p, 0), l)
            for p in readers.get(r, ()):
                if p != i:
                    l = 1
                    if block[p].kind == "mfma":
                        l = 16 if r[1] in block[p].srcc else (P.WAR_DS if ins.kind == "dsr" else 1)
                    if block[p].kind in ("dsr", "dsw", "vmem") and r[0] == "v":
                        l = P.WAR_MEM
                    seen[p] = max(seen.get(p, 0), l)
        is_chain = ins.kind in ("dsr", "dsw", "vmem", "bar", "label", "wait", "smem") or ins.note == "chain" \
            or (ins.kind == "salu" and ins.text.startswith(("s_cbranch", "s_branch")))
        if is_chain:
            if chain_prev is not None:
                seen[chain_prev] = max(seen.get(chain_prev, 0), 0)
            chain_prev = i
        for p, l in seen.items():
            edge(p, i, l)
        for r in wrs:
            lastw[r] = i
            readers[r] = []
        for r in rds:
            readers.setdefault(r, []).append(i)
    prio = [0] * n
    for i in range(n - 1, -1, -1):
        own = 16 if block[i].kind == "mfma" else 4
        prio[i] = own + max([l + prio[j] for j, l in succ[i]], default=0)
    ready_t = [0] * n
    avail = [i for i in range(n) if npred[i] == 0]
    t, pipe, lds = 0, 0, 0
    out = []
    while avail:
        cand = [i for i in avail if ready_t[i] <= t]
        mf = [i for i in cand if block[i].kind == "mfma"]
        pick = None
        if mf and pipe <= t + 1:
            pick = min(mf)
        else:
            ot = [i for i in cand if block[i].kind != "mfma" and not (block[i].kind in ("dsr", "dsw") and lds > t)]
            if ot:
                pick = max(ot, key=lambda i: (prio[i], -i))
                if mf and block[pick].kind != "label" and pipe <= t + 2:
                    pick = min(mf)
        if pick is None:
            nxt = [ready_t[i] for i in avail if ready_t[i] > t]
            if mf:
                nxt.append(pipe)
            if any(block[i].kind in ("dsr", "dsw") for i in cand):
                nxt.append(int(lds) + 1)
            t = max(t + 1, min(nxt))
            continue
        ins = block[pick]
        if ins.kind == "mfma":
            t = max(t, pipe)
            pipe = t + 16
            cost = 4
        elif ins.kind == "label":
            cost = 0
        elif ins.kind == "trans":
            cost = P.FILL + 4
        else:
            cost = P.FILL
        if ins.kind in ("dsr", "dsw"):
            lds = max(lds, t) + ds_cost(ins)
        out.append(ins)
        avail.remove(pick)
        for j, l in succ[pick]:
            ready_t[j] = max(ready_t[j], t + max(l, 0))
            npred[j] -= 1
            if npred[j] == 0:
                avail.append(j)
        t += cost
    assert len(out) == n
    schedule.last_time = t
    return out
```

```python
import sys
from asmlib import *

NAME = "concat_heads__gqa_block_cached__gqa_block_cached__near_ridge_kernel"


class Opt:
    stamps = False
    pol_x = ""
    pol_wq = ""
    pol_k = ""
    pol_v = ""
    pol_wo = ""
    prefetch_code = True
    walk = True
    l2pf = 0
    rot = 2
    rotoff = 4
    tries = 2
    mlat = 56
    v1at = 3
    dpos = 13
    prio_loader = 0
    prio_compute = 0
    fill = 5
    dslat = 120
    dsscale = 1.15
    wards = 8
    warmem = 160
    ck1 = 22
    stp1 = False
    stp2 = False
    ldexit = False
    tlb = False


SLOT = 45056
A_SLOT = [0, SLOT, 2 * SLOT]
K_LDS = 3 * SLOT
P_LDS = K_LDS
V_LDS = [0, 110592]
W_LDS = [24576, 45056, 61440, 77824, 94208]
LDS_BYTES = 163840

WS_P = 0
WS_PM = 256 * 18432
WS_PE = WS_PM + 256 * 24576
WS_FLAG = WS_PE + 256 * 12288
WS_STAMP = 256 * 18432 + 256 * 36864 + 2 * 256 * 128
WS_USED = WS_STAMP + 256 * 512
assert WS_FLAG + 256 * 128 <= WS_STAMP

S_X, S_K, S_V, S_WQ, S_WO = 4, 6, 8, 10, 12
S_OUT, S_DBG, S_WS = 14, 16, 18
R_X, R_WQ, R_K, R_V, R_WO, R_WS, R_OUT, R_DBG = 20, 24, 28, 32, 36, 40, 44, 48
S_BR, S_KQ, S_BP, S_JL, S_J, S_CQ, S_W, S_KC = 52, 53, 54, 55, 56, 57, 58, 59
S_T0, S_T1, S_T2, S_T3, S_T4, S_T5 = 60, 61, 62, 63, 64, 65
S_NON = 66
S_GRP = 68
S_CNT = 69
S_EX = 70
S_C0 = 72
S_ES, S_EF, S_MS = 74, 75, 100
S_EI, S_EO = 70, 71
S_ST = 76
NSTAMP = 12
SPIN_MAX = 200000


def L(s):
    return [I(x) for x in s.strip().split("\n") if x.strip()]


class Stamper:
    def __init__(self, on):
        self.on, self.n, self.names, self.only = on, 0, [], None

    def __call__(self, name):
        if not self.on or (self.only and not name.startswith(self.only) and name not in ("start", "cyc0")):
            return []
        assert self.n < NSTAMP
        r = S_ST + 2 * self.n
        self.n += 1
        self.names.append(name)
        return [I(f"{'s_memtime' if name.startswith('cyc') else 's_memrealtime'} {sr(r,2)}")]

    def dump(self, role):
        if not self.on:
            return []
        tag = "cl"[role]
        o = L(f"""
s_cmp_lg_u32 s{S_W}, 0
s_cbranch_scc1 L_nostamp_{tag}
s_waitcnt lgkmcnt(0)
s_lshl_b32 s{S_T0}, s2, 9
s_add_u32 s{S_T0}, s{S_T0}, {WS_STAMP + role*256}
v_mov_b32 v1, 0
s_mov_b64 exec, 1
""")
        for i in range(self.n):
            o += L(f"""
v_mov_b32 v2, s{S_ST+2*i}
v_mov_b32 v3, s{S_ST+2*i+1}
buffer_store_dwordx2 v[2:3], v1, {sr(R_WS,4)}, s{S_T0} offen offset:{8*i}
s_nop 1
""")
        o += L(f"s_mov_b64 exec, -1\nL_nostamp_{tag}:")
        return o


def srd(r, ptr, size):
    return L(f"""
s_mov_b32 s{r}, s{ptr}
s_and_b32 s{r+1}, s{ptr+1}, 0xffff
s_mov_b32 s{r+2}, {size}
s_mov_b32 s{r+3}, 0x20000
""")


def srd_off(r, ptr, soff, total):
    return L(f"""
s_add_u32 s{r}, s{ptr}, s{soff}
s_addc_u32 s{r+1}, s{ptr+1}, 0
s_and_b32 s{r+1}, s{r+1}, 0xffff
s_sub_u32 s{r+2}, {total}, s{soff}
s_mov_b32 s{r+3}, 0x20000
""")


def walk_entry(tag):
    c = L("s_mov_b64 exec, 0")
    for w in range(3):
        c += L(f"s_cmp_eq_u32 s{S_W}, {w}\ns_cbranch_scc1 {tag}_w{w}")
    c += L(f"s_branch {tag}_w3\n{tag}_ret:\ns_mov_b64 exec, -1")
    return c


def prologue(o):
    return L(f"""
s_and_b32 s{S_T0}, s2, 7
s_lshr_b32 s{S_BR}, s{S_T0}, 2
s_mul_i32 s{S_T1}, s{S_BR}, 40
s_load_dwordx8 s[4:11], s[0:1], s{S_T1}
s_load_dwordx2 s[12:13], s[0:1], s{S_T1} offset:32
s_load_dwordx2 s[14:15], s[0:1], 80
s_load_dwordx4 s[16:19], s[0:1], 88
s_cmp_ge_u32 s2, 256
s_cbranch_scc1 L_end
v_lshrrev_b32 v1, 6, v0
s_and_b32 s{S_KQ}, s{S_T0}, 3
s_lshr_b32 s{S_T2}, s2, 3
v_readfirstlane_b32 s{S_W}, v1
s_lshr_b32 s{S_BP}, s{S_T2}, 2
s_and_b32 s{S_JL}, s{S_T2}, 3
s_lshl_b32 s{S_J}, s{S_KQ}, 2
s_add_u32 s{S_J}, s{S_J}, s{S_JL}
v_and_b32 v0, 63, v0
s_cmp_lt_u32 s{S_W}, 4
s_cbranch_scc1 L_compute
""")


def common_scalars():
    return L(f"""
s_add_u32 s{S_CQ}, s{S_JL}, s{S_BP}
s_and_b32 s{S_CQ}, s{S_CQ}, 3
s_lshl_b32 s{S_GRP}, s{S_BR}, 3
s_add_u32 s{S_GRP}, s{S_GRP}, s{S_BP}
s_lshl_b32 s{S_GRP}, s{S_GRP}, 4
s_mul_i32 s{S_T0}, s{S_BR}, 1152
""") + srd_off(R_OUT, S_OUT, S_T0, 1769472) + srd(R_WS, S_WS, WS_USED) + srd(R_DBG, S_DBG, 256)


V_WQ = 8
V_XO = 16
V_KV = 19
V_WM = 25
V_WE = 29
V_LIN = 33
V_T = 34
V_PUB = 40
V_FL = 60
V_LW = 64
V_PR = 65
V_SV = 66
V_ONE = 68


class Loader:
    SB_WQ, SB_X, SB_KV, SB_W, SB_P0, SB_P12 = 72, 73, 74, 75, 100, 101

    def __init__(self, o):
        self.o, self.c, self.issued = o, [], []
        self.st = Stamper(o.stamps)
        self.nl = 0

    def A(self, s):
        self.c += L(s)

    def group(self, items, rsrc, pol, tag, base, lds0):
        for i, (voff, soff, half) in enumerate(items):
            if i == 0:
                self.A(f"s_add_u32 m0, s{base}, {lds0}")
            else:
                self.A("s_addk_i32 m0, 0x400")
            if half:
                self.A("s_mov_b32 exec_hi, 0")
            self.A(f"buffer_load_dwordx4 v{voff}, {sr(rsrc,4)}, {soff} offen {pol} lds")
            if half:
                self.A("s_mov_b32 exec_hi, -1")
            self.issued.append(tag)
        assert len(self.issued) <= 63

    def wait_for(self, tags):
        last = max([i for i, t in enumerate(self.issued) if t in tags], default=-1)
        if last < 0:
            return
        n = len(self.issued) - 1 - last
        self.A(f"s_waitcnt vmcnt({n})")
        self.issued = self.issued[last + 1:]

    def barrier(self, tags):
        self.wait_for(tags)
        self.A("s_barrier")

    def stage_p1(self, n):
        o = self.o
        slot = A_SLOT[n % 3]
        if o.rot:
            self.A(f"s_lshl_b32 s{S_T0}, s{S_KC}, 19\ns_lshl_b32 s{S_T1}, s{S_KC}, 7")
            sw, sx = f"s{S_T0}", f"s{S_T1}"
        elif n == 0:
            sw = sx = "0"
        else:
            self.A(f"s_mov_b32 s{S_T0}, {n << 19}\ns_movk_i32 s{S_T1}, {n << 7}")
            sw, sx = f"s{S_T0}", f"s{S_T1}"
        self.group([(V_XO + u, sx, False) for u in range(3)], R_X, o.pol_x, f"S{n}", self.SB_X, slot + 32768)
        self.group([(V_WQ + u, sw, False) for u in range(8)], R_WQ, o.pol_wq, f"S{n}", self.SB_WQ, slot)
        if o.rot:
            self.A(f"s_add_u32 s{S_KC}, s{S_KC}, 1\ns_cmp_eq_u32 s{S_KC}, 9\ns_cselect_b32 s{S_KC}, 0, s{S_KC}")

    def touch(self, c0, nc):
        self.A(f"s_mov_b32 exec_hi, 0\ns_mov_b32 exec_lo, {(1 << (8 * nc)) - 1}")
        if c0:
            self.A(f"s_mov_b32 s{S_T0}, {c0 << 19}\ns_movk_i32 s{S_T1}, {c0 << 7}")
        self.A(f"""
buffer_load_dword v{V_T+2}, v{V_T}, {sr(R_WQ,4)}, {f's{S_T0}' if c0 else '0'} offen
buffer_load_dword v{V_T+3}, v{V_T+1}, {sr(R_X,4)}, {f's{S_T1}' if c0 else '0'} offen
s_mov_b64 exec, -1
""")
        self.issued += ["pf", "pf"]

    def jj(self, pos, dst):
        self.A(f"s_add_u32 s{dst}, s{S_JL}, {pos}\ns_and_b32 s{dst}, s{dst}, 3")

    def load_v(self, pos):
        self.jj(pos, S_T0)
        self.A(f"s_mul_i32 s{S_T0}, s{S_T0}, 12288")
        self.group([(V_KV + u, f"s{S_T0}", False) for u in range(6)], R_V, self.o.pol_v, f"V{pos}", self.SB_KV, V_LDS[pos % 2])

    def load_w(self, q):
        if q < 2:
            self.A(f"s_mul_i32 s{S_T0}, s{S_JL}, {256*1152}\ns_add_u32 s{S_T0}, s{S_T0}, {q*128*1152 + 1024}")
            vb = V_WE
        else:
            pos, r = divmod(q - 2, 4)
            self.jj(pos, S_T0)
            self.A(f"""
s_mul_i32 s{S_T0}, s{S_T0}, {256*1152}
s_lshl_b32 s{S_T1}, s{S_CQ}, 8
s_add_u32 s{S_T0}, s{S_T0}, s{S_T1}
s_add_u32 s{S_T0}, s{S_T0}, {r*64*1152}
""")
            vb = V_WM
        self.group([(vb + u, f"s{S_T0}", False) for u in range(4)], R_WO, self.o.pol_wo, f"W{q}", self.SB_W, W_LDS[q % 5])

    def p_block_off(self, pos, dst):
        self.jj(pos, dst)
        self.A(f"""
s_lshl_b32 s{S_T3}, s{S_KQ}, 2
s_add_u32 s{dst}, s{dst}, s{S_T3}
s_add_u32 s{dst}, s{dst}, s{S_GRP}
s_mul_i32 s{dst}, s{dst}, 18432
""")

    def load_p(self, pos, f0, nf, tag, lds):
        self.p_block_off(pos, S_T0)
        sb = self.SB_P0 if nf == 1 else self.SB_P12
        self.A(f"""
s_add_u32 s{S_T0}, s{S_T0}, s{sb}
s_add_u32 s{S_T0}, s{S_T0}, {f0*6144}
s_add_u32 s{S_T1}, s{S_T0}, 1024
s_add_u32 s{S_T2}, s{S_T0}, 2048
""")
        items = [(V_LIN, f"s{S_T0}", False), (V_LIN, f"s{S_T1}", True)] if nf == 1 else [(V_LIN, f"s{S_T0+u}", False) for u in range(3)]
        self.group(items, R_WS, "sc1", tag, sb, lds)

    def nonce_issue(self):
        self.A(f"v_mov_b32 v{V_FL}, 0\nbuffer_load_dwordx2 v[{V_FL+2}:{V_FL+3}], v{V_FL}, {sr(R_DBG,4)}, 0 offen sc1")
        self.issued.append("non")

    def nonce_check(self):
        self.wait_for(["non"])
        self.A(f"""
s_mov_b32 s{S_CNT}, {SPIN_MAX}
L_nonce:
v_readfirstlane_b32 s{S_NON}, v{V_FL+2}
v_readfirstlane_b32 s{S_NON+1}, v{V_FL+3}
s_sub_u32 s{S_CNT}, s{S_CNT}, 1
s_cmp_eq_u32 s{S_CNT}, 0
s_cbranch_scc1 L_nonce_done
s_cmp_lg_u32 s{S_NON}, 0
s_cbranch_scc1 L_nonce_done
buffer_load_dwordx2 v[{V_FL+2}:{V_FL+3}], v{V_FL}, {sr(R_DBG,4)}, 0 offen sc1
s_waitcnt vmcnt(0)
s_branch L_nonce
L_nonce_done:
""")

    def flag(self, off):
        self.A(f"""
s_add_u32 s{S_T0}, s{S_GRP}, s{S_J}
s_lshl_b32 s{S_T0}, s{S_T0}, 7
s_lshl_b32 s{S_T1}, s{S_W}, 3
s_add_u32 s{S_T0}, s{S_T0}, s{S_T1}
s_add_u32 s{S_T0}, s{S_T0}, {WS_FLAG + off}
s_mov_b64 exec, 1
buffer_store_dwordx2 v[{V_FL+2}:{V_FL+3}], v{V_FL}, {sr(R_WS,4)}, s{S_T0} offen sc1
s_mov_b64 exec, -1
""")
        self.issued.append("flag")

    def clear_slots(self):
        self.A(f"""
s_add_u32 s{S_T0}, s{S_GRP}, s{S_J}
s_mul_i32 s{S_T0}, s{S_T0}, 24576
s_add_u32 s{S_T0}, s{S_T0}, s{self.SB_KV}
s_add_u32 s{S_T0}, s{S_T0}, {WS_PM}
s_add_u32 s{S_T1}, s{S_T0}, 3072
""")
        for u in range(6):
            self.A(f"buffer_store_dwordx4 {vr(V_ONE,4)}, v{V_LIN}, {sr(R_WS,4)}, s{S_T0+u//3} offen offset:{(u%3)*1024} sc1")
            self.issued.append("clr")

    def publish_p(self):
        self.p_block_off(0, S_T0)
        self.A(f"""
s_mul_i32 s{S_T1}, s{S_W}, 4608
s_add_u32 s{S_T0}, s{S_T0}, s{S_T1}
s_add_u32 s{S_T1}, s{S_T1}, {P_LDS}
v_add_u32 v{V_T}, s{S_T1}, v{V_LIN}
s_add_u32 s{S_T2}, s{S_T0}, 4096
""")

    def publish_p2(self):
        for u in range(5):
            self.A(f"ds_read_b128 {vr(V_PUB+4*u,4)}, v{V_T} offset:{u*1024}")
        for u in range(5):
            if u == 4:
                self.A(f"s_waitcnt lgkmcnt(0)\ns_mov_b32 exec_hi, 0")
                self.A(f"buffer_store_dwordx4 {vr(V_PUB+4*u,4)}, v{V_LIN}, {sr(R_WS,4)}, s{S_T2} offen sc1")
                self.A("s_mov_b32 exec_hi, -1")
            else:
                self.A(f"buffer_store_dwordx4 {vr(V_PUB+4*u,4)}, v{V_LIN}, {sr(R_WS,4)}, s{S_T0} offen offset:{u*1024} sc1")
            self.issued.append("pub")

    def poll(self, label, voff, soff, tries=SPIN_MAX):
        self.A(f"""
s_mov_b32 s{S_CNT}, {tries}
{label}:
buffer_load_dwordx2 v[{V_T+4}:{V_T+5}], v{voff}, {sr(R_WS,4)}, s{soff} offen sc1
s_sub_u32 s{S_CNT}, s{S_CNT}, 1
s_waitcnt vmcnt(0)
v_cmp_ne_u64 vcc, {sr(S_NON,2)}, v[{V_T+4}:{V_T+5}]
s_cbranch_vccz {label}_done
s_sleep 2
s_cmp_lg_u32 s{S_CNT}, 0
s_cbranch_scc1 {label}
{label}_done:
""")
        self.issued = []

    def poll_pc(self):
        self.A(f"""
v_bfe_u32 v{V_T}, v0, 2, 2
v_and_b32 v{V_T+1}, 3, v0
s_lshl_b32 s{S_T0}, s{S_KQ}, 2
v_add_u32 v{V_T+2}, s{S_T0}, v{V_T}
v_lshlrev_b32 v{V_T+2}, 7, v{V_T+2}
v_lshl_add_u32 v{V_T+3}, v{V_T}, 2, s{S_JL}
v_lshlrev_b32 v{V_T+3}, 7, v{V_T+3}
v_and_b32 v{V_T}, 16, v0
v_cmp_eq_u32 vcc, 0, v{V_T}
v_cndmask_b32 v{V_T}, v{V_T+3}, v{V_T+2}, vcc
v_lshl_add_u32 v{V_T}, v{V_T+1}, 3, v{V_T}
s_lshl_b32 s{S_T5}, s{S_GRP}, 7
s_add_u32 s{S_T5}, s{S_T5}, {WS_FLAG}
""")

    def gen(self):
        o = self.o
        A = self.A
        self.c += self.st("start")
        if o.prio_loader:
            A(f"s_setprio {o.prio_loader}")
        A(f"""
s_sub_u32 s{S_W}, s{S_W}, 4
v_lshrrev_b32 v1, 5, v0
v_and_b32 v2, 31, v0
v_lshlrev_b32 v2, 4, v2
v_lshlrev_b32 v3, 5, v1
v_xor_b32 v2, v2, v3
v_lshl_add_u32 v2, v1, 13, v2
s_lshl_b32 s{S_T0}, s{S_W}, 17
v_add_u32 v{V_WQ}, s{S_T0}, v2
s_movk_i32 s{S_T1}, 0x4000
v_xad_u32 v{V_WQ+1}, v{V_WQ}, 64, s{S_T1}
v_lshrrev_b32 v4, 4, v0
v_and_b32 v5, 7, v0
s_mov_b32 s{S_T2}, 0x8000
v_add_u32 v{V_WQ+2}, s{S_T2}, v{V_WQ}
v_add_u32 v{V_WQ+3}, s{S_T2}, v{V_WQ+1}
v_xor_b32 v{V_WQ+4}, 0x10080, v{V_WQ}
v_xor_b32 v{V_WQ+5}, 0x10080, v{V_WQ+1}
v_add_u32 v{V_WQ+6}, s{S_T2}, v{V_WQ+4}
v_add_u32 v{V_WQ+7}, s{S_T2}, v{V_WQ+5}
v_xor_b32 v5, v5, v4
v_lshlrev_b32 v5, 4, v5
s_and_b32 s{S_T1}, s{S_W}, 1
s_lshl_b32 s{S_T2}, s{S_T1}, 6
v_xor_b32 v5, s{S_T2}, v5
v_lshrrev_b32 v6, 3, v0
v_mul_u32_u24 v6, 1152, v6
s_mul_i32 s{S_T3}, s{S_W}, 27648
v_add3_u32 v{V_XO}, v5, v6, s{S_T3}
v_add_u32 v{V_XO+2}, 18432, v{V_XO}
v_xor_b32 v5, 64, v5
s_add_u32 s{S_T3}, s{S_T3}, 9216
v_add3_u32 v{V_XO+1}, v5, v6, s{S_T3}
s_lshl_b32 s{self.SB_WQ}, s{S_W}, 13
s_mul_i32 s{self.SB_X}, s{S_W}, 3072
s_mul_i32 s{S_T4}, s{S_BP}, 110592
s_lshl_b32 s{S_T5}, s{S_J}, 9
""")
        if o.rot == 1:
            A(f"""
s_lshl_b32 s{S_T1}, s{S_JL}, 1
s_add_u32 s{S_KC}, s{S_BP}, s{S_T1}
s_cmp_ge_u32 s{S_KC}, 9
s_cselect_b32 s{S_T1}, 9, 0
s_sub_u32 s{S_KC}, s{S_KC}, s{S_T1}
""")
        if o.rot == 2:
            A(f"s_add_u32 s{S_KC}, s{S_BP}, s{S_JL}\ns_and_b32 s{S_KC}, s{S_KC}, 1\ns_mul_i32 s{S_KC}, s{S_KC}, {o.rotoff}")
        if o.rot == 3:
            A(f"""
s_add_u32 s{S_KC}, s{S_BP}, s{S_JL}
s_mul_i32 s{S_T1}, s{S_KC}, 0x56
s_lshr_b32 s{S_T1}, s{S_T1}, 8
s_mul_i32 s{S_T1}, s{S_T1}, 3
s_sub_u32 s{S_KC}, s{S_KC}, s{S_T1}
s_mul_i32 s{S_KC}, s{S_KC}, 3
""")
        if o.l2pf:
            A(f"""
v_lshrrev_b32 v5, 3, v0
v_bfe_u32 v6, v0, 2, 1
s_lshl_b32 s{S_T0}, s{S_BP}, 3
s_lshl_b32 s{S_T1}, s{S_W}, 1
s_add_u32 s{S_T0}, s{S_T0}, s{S_T1}
v_lshl_add_u32 v6, v5, 6, v6
v_add_u32 v6, s{S_T0}, v6
v_lshlrev_b32 v6, 13, v6
v_and_b32 v7, 3, v0
v_lshl_add_u32 v{V_T}, v7, 7, v6
v_and_b32 v6, 7, v0
v_min_u32 v6, 5, v6
s_mul_i32 s{S_T0}, s{S_JL}, 24
s_mul_i32 s{S_T1}, s{S_W}, 6
s_add_u32 s{S_T0}, s{S_T0}, s{S_T1}
v_add_u32 v6, s{S_T0}, v6
v_mul_u32_u24 v6, 1152, v6
v_lshl_add_u32 v{V_T+1}, v5, 7, v6
""")
        A("s_waitcnt lgkmcnt(0)")
        self.c += srd_off(R_WQ, S_WQ, S_T5, 4718592)
        self.c += srd_off(R_X, S_X, S_T4, 884736)
        self.c += self.st("karg")
        if o.l2pf:
            self.touch(0, 2)
        self.stage_p1(0)
        self.c += self.st("S0iss")
        if o.l2pf:
            self.touch(2, 2)
        self.stage_p1(1)
        if o.l2pf:
            self.touch(4, 2)
        self.stage_p1(2)
        if o.l2pf:
            self.touch(6, 3)
        A(f"""
v_and_b32 v5, 15, v0
v_xor_b32 v5, v5, v4
v_lshlrev_b32 v5, 4, v5
s_and_b32 s{S_T1}, s{S_W}, 1
s_lshl_b32 s{S_T2}, s{S_T1}, 7
v_xor_b32 v5, s{S_T2}, v5
s_mul_i32 s{S_T2}, s{S_T1}, 6144
s_lshr_b32 s{S_T3}, s{S_W}, 1
s_mul_i32 s{S_T3}, s{S_T3}, 196608
s_add_u32 s{S_T2}, s{S_T2}, s{S_T3}
v_lshl_add_u32 v6, v4, 8, s{S_T2}
""")
        for u in range(6):
            cu = (u & 3) << 6
            A(f"v_xor_b32 v7, {cu}, v5\nv_add_u32 v7, v7, v6" if cu else "v_add_u32 v7, v5, v6")
            A(f"v_add_u32 v{V_KV+u}, {u*1024}, v7")
        A(f"""
s_mul_i32 s{self.SB_KV}, s{S_W}, 6144
s_lshl_b32 s{S_T0}, s{S_BP}, 5
s_add_u32 s{S_T1}, s{S_T0}, s{S_J}
s_mul_i32 s{S_T1}, s{S_T1}, 12288
s_lshl_b32 s{S_T2}, s{S_KQ}, 2
s_add_u32 s{S_T2}, s{S_T2}, s{S_T0}
s_mul_i32 s{S_T2}, s{S_T2}, 12288
s_mul_i32 s{S_T3}, s{S_KQ}, {1024*1152}
""")
        self.c += srd_off(R_K, S_K, S_T1, 3145728)
        self.group([(V_KV + u, "0", False) for u in range(6)], R_K, o.pol_k, "K", self.SB_KV, K_LDS)
        self.c += srd_off(R_V, S_V, S_T2, 3145728)
        self.c += srd_off(R_WO, S_WO, S_T3, 4718592)
        self.c += common_scalars()
        A(f"""
v_and_b32 v5, 15, v0
v_lshlrev_b32 v6, 1, v4
v_xor_b32 v5, v5, v6
v_lshlrev_b32 v5, 4, v5
v_mul_u32_u24 v6, 1152, v4
s_mul_i32 s{S_T0}, s{S_W}, {16*1152}
v_add_u32 v6, s{S_T0}, v6
v_add_u32 v{V_WM}, v5, v6
v_add_u32 v{V_WM+1}, {4*1152}, v{V_WM}
v_xor_b32 v5, 128, v5
v_add_u32 v{V_WM+2}, v5, v6
v_add_u32 v{V_WM+2}, {8*1152}, v{V_WM+2}
v_add_u32 v{V_WM+3}, {4*1152}, v{V_WM+2}
v_and_b32 v5, 7, v0
v_and_b32 v6, 1, v4
v_lshlrev_b32 v6, 1, v6
v_xor_b32 v5, v5, v6
v_lshlrev_b32 v5, 4, v5
v_lshrrev_b32 v6, 3, v0
v_mul_u32_u24 v6, 1152, v6
s_mul_i32 s{S_T0}, s{S_W}, {32*1152}
v_add_u32 v6, s{S_T0}, v6
v_add_u32 v{V_WE}, v5, v6
v_add_u32 v{V_WE+2}, {16*1152}, v{V_WE}
v_xor_b32 v5, 64, v5
v_add_u32 v{V_WE+1}, v5, v6
v_add_u32 v{V_WE+1}, {8*1152}, v{V_WE+1}
v_add_u32 v{V_WE+3}, {16*1152}, v{V_WE+1}
v_lshlrev_b32 v{V_LIN}, 4, v0
s_lshl_b32 s{self.SB_W}, s{S_W}, 12
s_mul_i32 s{self.SB_P0}, s{S_W}, 1536
s_mul_i32 s{self.SB_P12}, s{S_W}, 3072
v_mov_b32 v{V_ONE}, -1
v_mov_b32 v{V_ONE+1}, -1
v_mov_b32 v{V_ONE+2}, -1
v_mov_b32 v{V_ONE+3}, -1
""")
        if o.walk:
            self.c += walk_entry("Wl")
        A("Wl_begin:")
        self.barrier(["S0"])
        self.c += self.st("B0")
        if o.ldexit:
            A("s_endpgm")
        for n in range(0, 9):
            self.barrier([f"S{n+1}"] if n < 8 else ["K"])
            if n == 3:
                self.nonce_issue()
            if n + 3 <= 8:
                self.stage_p1(n + 3)
            if n == 6:
                self.load_v(0)
                self.load_w(0)
            if n == 7:
                self.load_w(1)
                self.load_w(2)
            if n == 8:
                self.load_w(3)
        self.c += self.st("B9")
        self.nonce_check()
        self.barrier(["V0", "W0", "W1"])
        self.clear_slots()
        self.load_w(4)
        self.publish_p()
        self.barrier([])
        self.c += self.st("B11")
        self.publish_p2()
        self.poll_pc()
        for d in range(1, 18, 2):
            need = [f"W{d+1}", f"W{d+2}"]
            if d % 4 == 1:
                need += [f"V{(d-1)//4}", f"P{(d-5)//4}b"]
            else:
                need += [f"P{(d-3)//4}a"]
            self.barrier(need)
            if d == 5:
                self.c += self.st("D5")
                A("s_cbranch_vccz L_seen")
                keep = list(self.issued)
                self.poll("L_pollp", V_T, S_T5)
                self.issued = keep
                A("L_seen:")
                self.c += self.st("polled")
            if d in (5, 9, 13):
                self.load_p((d - 1) // 4, 0, 1, f"P{(d-1)//4}a", P_LDS)
            if d in (7, 11, 15):
                self.load_p((d - 3) // 4, 1, 2, f"P{(d-3)//4}b", P_LDS + 6144)
            for q in (d + 4, d + 5):
                if q <= 17:
                    self.load_w(q)
            if d in (5, 9):
                self.load_v((d - 5) // 4 + 2)
            if d == o.v1at:
                self.load_v(1)
            if d == 1:
                self.wait_for(["pub"])
                self.flag(0)
                self.c += self.st("pub")
            if d == 3:
                self.poll("L_pollq", V_T, S_T5, tries=o.tries)
            if d == 13:
                self.extra_setup()
            if d == 15:
                self.extra_loads()
        self.c += self.st("D17")
        self.extra_sum()
        self.c += self.st("edone")
        A(f"s_cmp_ge_u32 s{S_W}, 2\ns_cbranch_scc1 L_fin_l\ns_add_u32 s{S_T4}, s{S_W}, 4")
        self.c += gather_setup()
        self.c += gather_main("l")
        A("L_fin_l:")
        if o.stamps:
            A("s_waitcnt vmcnt(0)")
            self.c += self.st("end")
            self.c += self.st.dump(1)
        A("s_endpgm")
        return self.c

    def extra_setup(self):
        A = self.A
        A(f"""
v_lshrrev_b32 v148, 2, v0
v_lshlrev_b32 v148, 7, v148
v_and_b32 v149, 3, v0
v_lshl_add_u32 v148, v149, 3, v148
s_lshl_b32 s{S_T4}, s{S_GRP}, 7
s_add_u32 s{S_T4}, s{S_T4}, {WS_FLAG + 64}
s_mul_i32 s{S_T0}, s{S_J}, 48
s_mul_i32 s{S_T1}, s{S_W}, 12
s_add_u32 s{S_T0}, s{S_T0}, s{S_T1}
v_and_b32 v149, 15, v0
v_min_u32 v141, 11, v149
v_add_u32 v141, s{S_T0}, v141
v_lshrrev_b32 v142, 6, v141
v_and_b32 v143, 63, v141
v_mul_u32_u24 v144, 0x56, v142
v_lshrrev_b32 v144, 8, v144
v_mul_u32_u24 v145, 3, v144
v_sub_u32 v145, v142, v145
v_lshrrev_b32 v146, 1, v144
v_mul_u32_u24 v146, 48, v146
v_lshl_add_u32 v146, v145, 4, v146
v_and_b32 v147, 15, v143
v_add_u32 v146, v146, v147
v_mul_u32_u24 v150, 2304, v146
v_and_b32 v147, 1, v144
v_lshl_add_u32 v150, v147, 6, v150
v_lshrrev_b32 v147, 4, v143
v_lshl_add_u32 v150, v147, 3, v150
v_lshrrev_b32 v147, 4, v0
v_and_b32 v151, 1, v147
v_lshl_add_u32 v150, v151, 2, v150
v_lshrrev_b32 v151, 1, v147
v_lshl_add_u32 v150, v151, 5, v150
v_cmp_gt_u32 vcc, 12, v149
v_mov_b32 v151, 0x40000000
v_cndmask_b32 v150, v151, v150, vcc
s_mul_i32 s{S_EO}, s{S_BP}, {96*2304}
s_add_u32 s{S_EO}, s{S_EO}, 1024
v_mul_u32_u24 v147, {4*12288}, v147
v_lshl_add_u32 v141, v141, 4, v147
s_mul_i32 s{S_EI}, s{S_GRP}, 12288
s_add_u32 s{S_EI}, s{S_EI}, {WS_PE}
""")
        self.poll("L_polle", 148, S_T4)

    def extra_loads(self):
        for k in range(4):
            self.A(f"buffer_load_dwordx4 {vr(72+8*k,4)}, v141, {sr(R_WS,4)}, s{S_EI} offen sc1")
            self.issued.append("ex")
            if k < 3:
                self.A(f"s_add_u32 s{S_EI}, s{S_EI}, 12288")

    def extra_sum(self):
        A = self.A
        self.wait_for(["ex"])
        for k in range(4):
            self.c += unpack_add(48, 72 + 8 * k, k == 0)
        for i in range(4):
            A(f"v_permlane32_swap_b32 v{48+i}, v{52+i}")
        for i in range(4):
            A(f"v_add_f32 v{48+i}, v{48+i}, v{52+i}")
        A(f"""
v_permlane16_swap_b32 v48, v50
v_permlane16_swap_b32 v49, v51
v_add_f32 v48, v48, v50
v_add_f32 v49, v49, v51
v_cvt_pk_bf16_f32 v56, v48, v49
buffer_store_dword v56, v150, {sr(R_OUT,4)}, s{S_EO} offen
""")


def unpack_add(dst, src, first):
    r = []
    for i in range(4):
        if first:
            r += L(f"v_lshlrev_b32 v{dst+2*i}, 16, v{src+i}\nv_and_b32 v{dst+2*i+1}, 0xffff0000, v{src+i}")
        else:
            r += L(f"""
v_lshlrev_b32 v{src+4}, 16, v{src+i}
v_and_b32 v{src+5}, 0xffff0000, v{src+i}
v_pk_add_f32 v[{dst+2*i}:{dst+2*i+1}], v[{dst+2*i}:{dst+2*i+1}], v[{src+4}:{src+5}]
""")
    return r


def gather_setup():
    return L(f"""
s_mul_i32 s{S_T0}, s{S_KQ}, 6
s_add_u32 s{S_T0}, s{S_T0}, s{S_T4}
s_lshl_b32 s{S_T0}, s{S_T0}, 10
s_add_u32 s{S_T1}, s{S_GRP}, s{S_JL}
s_mul_i32 s{S_T1}, s{S_T1}, 24576
s_add_u32 s{S_T0}, s{S_T0}, s{S_T1}
s_add_u32 s{S_T0}, s{S_T0}, {WS_PM}
s_cmp_ge_u32 s{S_T4}, 3
s_cselect_b32 s{S_T1}, 1, 0
s_mul_i32 s{S_T2}, s{S_T1}, 3
s_sub_u32 s{S_T2}, s{S_T4}, s{S_T2}
s_lshr_b32 s{S_T3}, s{S_KQ}, 1
s_lshl_b32 s{S_T5}, s{S_BP}, 1
s_add_u32 s{S_T3}, s{S_T3}, s{S_T5}
s_mul_i32 s{S_T3}, s{S_T3}, 48
s_lshl_b32 s{S_T2}, s{S_T2}, 4
s_add_u32 s{S_T3}, s{S_T3}, s{S_T2}
s_mul_i32 s{S_T3}, s{S_T3}, 2304
s_lshl_b32 s{S_T2}, s{S_CQ}, 8
s_add_u32 s{S_T3}, s{S_T3}, s{S_T2}
s_and_b32 s{S_T2}, s{S_KQ}, 1
s_lshl_b32 s{S_T2}, s{S_T2}, 7
s_add_u32 s{S_T3}, s{S_T3}, s{S_T2}
s_lshl_b32 s{S_T1}, s{S_T1}, 6
s_add_u32 s{S_T3}, s{S_T3}, s{S_T1}
s_add_u32 s{S_T1}, s{S_T0}, {4*24576}
s_add_u32 s{S_T2}, s{S_T0}, {8*24576}
s_add_u32 s{S_T5}, s{S_T0}, {12*24576}
v_lshlrev_b32 v9, 4, v0
v_and_b32 v10, 15, v0
v_mul_u32_u24 v10, 2304, v10
v_lshrrev_b32 v11, 4, v0
v_and_b32 v12, 1, v11
v_lshlrev_b32 v12, 5, v12
v_lshrrev_b32 v11, 1, v11
v_lshl_add_u32 v12, v11, 4, v12
v_add_u32 v10, v10, v12
""")


def gather_main(tag):
    B = 96
    c = L(f"s_mov_b32 s{S_CNT}, {SPIN_MAX}\nL_gm_{tag}:")
    for k, s in enumerate((S_T0, S_T1, S_T2, S_T5)):
        c += L(f"buffer_load_dwordx4 {vr(B+8*k,4)}, v9, {sr(R_WS,4)}, s{s} offen sc1")
    c += L(f"""
s_sub_u32 s{S_CNT}, s{S_CNT}, 1
s_waitcnt vmcnt(2)
v_max3_u32 v13, v{B}, v{B+1}, v{B+2}
v_max3_u32 v14, v{B+3}, v{B+8}, v{B+9}
v_max3_u32 v13, v13, v{B+10}, v{B+11}
s_waitcnt vmcnt(0)
v_max3_u32 v14, v14, v{B+16}, v{B+17}
v_max3_u32 v13, v13, v{B+18}, v{B+19}
v_max3_u32 v14, v14, v{B+24}, v{B+25}
v_max3_u32 v13, v13, v{B+26}, v{B+27}
v_max_u32 v13, v13, v14
v_cmp_eq_u32 vcc, -1, v13
s_cbranch_vccz L_gm_{tag}d
s_sleep 2
s_cmp_lg_u32 s{S_CNT}, 0
s_cbranch_scc1 L_gm_{tag}
L_gm_{tag}d:
""")
    for k in range(4):
        c += unpack_add(128, B + 8 * k, k == 0)
    c += L(f"""
v_cvt_pk_bf16_f32 v136, v128, v129
v_cvt_pk_bf16_f32 v137, v130, v131
v_cvt_pk_bf16_f32 v138, v132, v133
v_cvt_pk_bf16_f32 v139, v134, v135
v_permlane16_swap_b32 v136, v138
v_permlane16_swap_b32 v137, v139
buffer_store_dwordx4 v[136:139], v10, {sr(R_OUT,4)}, s{S_T3} offen
""")
    return c


X_P3, D_PA, X_LIN, X_L0 = 4, 5, 6, 7
D_VA, D_VA2, D_WA, D_WA2 = 8, 12, 16, 20
C_WA, C_XA, C_PW, C_KA = 24, 32, 35, 37
D_EA = 56
C_AF = [64, 96]
C_BF = [128, 140]
C_ACC = 160
D_OUTM, D_OUTE, D_VW, D_F01, D_F2 = 24, 72, 96, 144, 160
D_V = [176, 188]
D_P = [200, 212]
D_W = [224, 240]


def acc(t, st):
    return C_ACC + (t * 3 + st) * 4


def mfma(d, a, b, c):
    cc = "0" if c is None else vr(c, 4)
    return I(f"v_mfma_f32_16x16x32_bf16 {vr(d,4)}, {vr(a,4)}, {vr(b,4)}, {cc}")


class Compute:
    def __init__(self, o):
        self.o, self.c = o, []
        self.st = Stamper(o.stamps)
        if o.stp1:
            self.st.only = "cycA"
        if o.stp2:
            self.st.only = "cycB"
        self.slow = []
        self.tok = 0

    def A(self, s):
        self.c += L(s)

    def anchor(self, ins, after):
        self.tok += 1
        t = f"tok{self.tok}"
        after.swr = after.swr | {t}
        ins.srd = ins.srd | {t}
        return ins

    def bar(self, after=None, drain=False):
        r = L("s_waitcnt lgkmcnt(0)\ns_barrier" if drain else "s_barrier")
        for a in (after or []):
            self.anchor(r[0], a)
        return r

    def p1_reads(self, kb, s):
        r = [I(f"ds_read_b128 {vr(C_BF[s],4)}, v{C_XA+kb} offset:0")]
        for t in range(8):
            for i in range(2):
                r.append(I(f"ds_read_b64_tr_b16 {vr(C_AF[s]+4*t+2*i,2)}, v{C_WA+t} offset:{kb*16384+i*2048}"))
            if t == 0:
                r += [I(f"ds_read_b128 {vr(C_BF[s]+4*st,4)}, v{C_XA+kb} offset:{st*2048}") for st in (1, 2)]
        return r

    def p1_mfmas(self, s, first):
        return [mfma(acc(t, st), C_AF[s] + 4 * t, C_BF[s] + 4 * st, None if first else acc(t, st))
                for t in range(8) for st in range(3)]

    def kfrag(self, kt, p):
        i = p * 3 + kt
        if i < 8:
            return C_AF[0] + 4 * i
        if i < 11:
            return C_BF[0] + 4 * (i - 8)
        return 152

    def sacc(self, kt, st):
        i = st * 3 + kt
        return C_AF[1] + 4 * i if i < 8 else C_BF[1]

    def startup(self):
        o, A = self.o, self.A
        A("L_compute:")
        self.c += self.st("start")
        if o.prio_compute:
            A(f"s_setprio {o.prio_compute}")
        if o.tlb:
            MB2 = 1 << 21
            sets = [[(S_WQ, 4718592), (S_X, 884736)], [(S_K, 3145728), (S_V, 3145728)],
                    [(S_WO, 4718592), (S_OUT, 1769472)], [(S_WS, WS_USED)]]
            A("s_waitcnt lgkmcnt(0)")
            for w, st in enumerate(sets):
                if w < 3:
                    A(f"s_cmp_lg_u32 s{S_W}, {w}\ns_cbranch_scc1 L_tlb{w}")
                for ptr, size in st:
                    offs = list(range(0, size, MB2))
                    if size - 4 - offs[-1] > 4096:
                        offs.append(size - 4)
                    for off in offs:
                        A(f"s_mov_b32 s{S_T0}, {off}\ns_load_dword s3, {sr(ptr,2)}, s{S_T0}" if off else f"s_load_dword s3, {sr(ptr,2)}, 0")
                if w < 3:
                    A(f"s_branch L_tlbd\nL_tlb{w}:")
            A("L_tlbd:")
        if o.prefetch_code:
            A(f"""
s_cmp_ge_u32 s2, 8
s_cbranch_scc1 L_no_pf
s_getpc_b64 s[{S_EX}:{S_EX+1}]
L_pc:
s_sub_u32 s{S_EX}, s{S_EX}, L_pc-{NAME}
s_subb_u32 s{S_EX+1}, s{S_EX+1}, 0
s_lshl_b32 s{S_T0}, s{S_W}, 13
v_lshlrev_b32 v60, 7, v0
v_add_u32 v60, s{S_T0}, v60
v_min_u32 v60, L_end-{NAME}, v60
global_load_dword v61, v60, s[{S_EX}:{S_EX+1}]
L_no_pf:
""")
        if o.walk:
            self.c += walk_entry("Wc")
        A(f"""
s_lshr_b32 s{S_T0}, s{S_W}, 1
s_and_b32 s{S_T1}, s{S_W}, 1
v_lshrrev_b32 v48, 4, v0
v_bfe_u32 v49, v0, 2, 2
v_and_b32 v50, 3, v0
v_and_b32 v51, 15, v0
v_and_b32 v52, 1, v48
v_lshl_or_b32 v52, v52, 2, v49
v_lshl_add_u32 v53, v48, 3, v49
v_lshlrev_b32 v54, 9, v53
v_lshl_add_u32 v54, v52, 5, v54
v_lshl_add_u32 v54, v50, 3, v54
s_lshl_b32 s{S_T2}, s{S_T1}, 8
v_add_u32 v{C_WA}, s{S_T2}, v54
""")
        for t in range(1, 8):
            A(f"v_xor_b32 v{C_WA+t}, {t<<5}, v{C_WA}")
        A(f"""
v_lshrrev_b32 v54, 1, v51
v_xor_b32 v54, v54, v48
v_lshlrev_b32 v54, 4, v54
v_lshl_add_u32 v54, v51, 7, v54
s_mul_i32 s{S_T2}, s{S_T0}, 6144
s_add_u32 s{S_T2}, s{S_T2}, 32768
v_add_u32 v{C_XA}, s{S_T2}, v54
v_xor_b32 v{C_XA+1}, 64, v{C_XA}
v_lshrrev_b32 v54, 1, v48
v_xor_b32 v54, v54, v51
v_lshlrev_b32 v54, 4, v54
v_lshl_add_u32 v54, v51, 8, v54
v_and_b32 v55, 1, v48
v_lshl_add_u32 v54, v55, 3, v54
s_mul_i32 s{S_T2}, s{S_T0}, 12288
s_add_u32 s{S_T3}, s{S_T2}, {K_LDS}
v_add_u32 v{C_KA}, s{S_T3}, v54
""")
        for pe in range(1, 8):
            A(f"v_xor_b32 v{C_KA+pe}, {pe<<5}, v{C_KA}")
        A(f"""
s_mul_i32 s{S_T3}, s{S_T0}, 3072
s_add_u32 s{S_T3}, s{S_T3}, {P_LDS}
v_lshl_add_u32 v{D_PA}, v0, 4, s{S_T3}
s_mul_i32 s{S_T3}, s{S_T1}, 6144
v_add_u32 v{C_PW}, s{S_T3}, v{D_PA}
s_lshl_b32 s{S_T3}, s{S_T1}, 3
v_add_u32 v{C_PW+1}, s{S_T3}, v{D_PA}
v_xor_b32 v54, v48, v51
v_lshlrev_b32 v54, 4, v54
v_lshl_add_u32 v54, v51, 8, v54
v_add_u32 v{D_VA}, s{S_T2}, v54
v_xor_b32 v{D_VA+1}, 64, v{D_VA}
v_xor_b32 v{D_VA+2}, 128, v{D_VA}
v_xor_b32 v{D_VA+3}, 192, v{D_VA}
v_lshlrev_b32 v54, 8, v53
v_lshl_add_u32 v54, v50, 3, v54
s_lshl_b32 s{S_T3}, s{S_T1}, 2
v_xor_b32 v55, s{S_T3}, v52
v_lshl_add_u32 v54, v55, 5, v54
v_add_u32 v{D_WA}, {W_LDS[0]}, v54
v_xor_b32 v{D_WA+1}, 32, v{D_WA}
v_xor_b32 v{D_WA+2}, 64, v{D_WA}
v_xor_b32 v{D_WA+3}, 96, v{D_WA}
v_lshlrev_b32 v54, 7, v53
v_lshl_add_u32 v54, v50, 3, v54
v_and_b32 v55, 1, v48
v_lshlrev_b32 v55, 1, v55
v_lshrrev_b32 v58, 1, v49
v_or_b32 v55, v55, v58
s_lshl_b32 s{S_T3}, s{S_T1}, 1
v_xor_b32 v55, s{S_T3}, v55
v_lshl_add_u32 v54, v55, 5, v54
v_add_u32 v{D_EA}, {W_LDS[0]}, v54
v_xor_b32 v{D_EA+1}, 32, v{D_EA}
""")
        for t in range(4):
            A(f"v_add_u32 v{D_WA2+t}, {W_LDS[3]-W_LDS[0]}, v{D_WA+t}\nv_add_u32 v{D_VA2+t}, {V_LDS[1]-V_LDS[0]}, v{D_VA+t}")
        A(f"""
v_lshlrev_b32 v{X_LIN}, 4, v0
v_cmp_eq_u32 vcc, 0, v0
v_mov_b32 v54, 0x40000000
v_cndmask_b32 v{X_L0}, v54, 0, vcc
s_mov_b32 s{S_C0}, 0x3e0293ee
s_mov_b32 s{S_C0+1}, 0x3e0293ee
s_waitcnt lgkmcnt(0)
""")
        self.c += common_scalars()
        A(f"""
s_add_u32 s{S_T0}, s{S_GRP}, s{S_J}
s_mul_i32 s{S_ES}, s{S_T0}, 12288
s_mul_i32 s{S_T1}, s{S_W}, 3072
s_add_u32 s{S_ES}, s{S_ES}, s{S_T1}
s_add_u32 s{S_ES}, s{S_ES}, {WS_PE}
s_lshl_b32 s{S_EF}, s{S_T0}, 7
s_lshl_b32 s{S_T1}, s{S_W}, 3
s_add_u32 s{S_EF}, s{S_EF}, s{S_T1}
s_add_u32 s{S_EF}, s{S_EF}, {WS_FLAG + 64}
s_mul_i32 s{S_MS}, s{S_T0}, 24576
s_mul_i32 s{S_T1}, s{S_W}, 6144
s_add_u32 s{S_MS}, s{S_MS}, s{S_T1}
s_add_u32 s{S_MS}, s{S_MS}, {WS_PM}
s_add_u32 s{S_MS+1}, s{S_MS}, 3072
s_or_b32 s{S_T0}, s2, s{S_W}
s_cmp_lg_u32 s{S_T0}, 0
s_cbranch_scc1 L_no_nonce
s_memrealtime {sr(S_NON,2)}
s_waitcnt lgkmcnt(0)
s_or_b32 s{S_NON}, s{S_NON}, 1
v_mov_b32 v62, s{S_NON}
v_mov_b32 v63, s{S_NON+1}
buffer_store_dwordx2 v[62:63], v{X_L0}, {sr(R_DBG,4)}, 0 offen sc1
L_no_nonce:
Wc_begin:
s_barrier
""")
        self.c += self.st("B0")
        self.c += self.st("cyc0")

    def softmax(self, st):
        M, R = 46 + 2 * st, (52, 54, 58)[st]
        T = M + 1
        U0, U1 = (60, 62) if st != 1 else (152, 154)
        v = [self.sacc(kt, st) + r for kt in range(3) for r in range(4)]
        s = f"""
v_max3_f32 v{M}, v{v[0]}, v{v[1]}, v{v[2]}
v_max3_f32 v{T}, v{v[3]}, v{v[4]}, v{v[5]}
v_max3_f32 v{M}, v{M}, v{v[6]}, v{v[7]}
v_max3_f32 v{T}, v{T}, v{v[8]}, v{v[9]}
v_max3_f32 v{M}, v{M}, v{v[10]}, v{v[11]}
v_max_f32 v{M}, v{M}, v{T}
"""
        for sw in ("v_permlane32_swap_b32", "v_permlane16_swap_b32"):
            s += f"v_mov_b32 v{T}, v{M}\n{sw} v{T}, v{M}\nv_max_f32 v{M}, v{M}, v{T}\n"
        s += f"v_mul_f32 v{M}, s{S_C0}, v{M}\n"
        for i in range(0, 12, 2):
            s += f"v_pk_fma_f32 {vr(v[i],2)}, {vr(v[i],2)}, {sr(S_C0,2)}, {vr(M,2)} op_sel_hi:[1,1,0] neg_lo:[0,0,1] neg_hi:[0,0,1]\n"
        for x in v:
            s += f"v_exp_f32 v{x}, v{x}\n"
        s += f"v_pk_add_f32 {vr(U0,2)}, {vr(v[0],2)}, {vr(v[2],2)}\nv_pk_add_f32 {vr(U1,2)}, {vr(v[4],2)}, {vr(v[6],2)}\n"
        s += f"v_pk_add_f32 {vr(U0,2)}, {vr(U0,2)}, {vr(v[8],2)}\nv_pk_add_f32 {vr(U1,2)}, {vr(U1,2)}, {vr(v[10],2)}\n"
        s += f"v_pk_add_f32 {vr(U0,2)}, {vr(U0,2)}, {vr(U1,2)}\nv_add_f32 v{R}, v{U0}, v{U0+1}\n"
        for sw in ("v_permlane32_swap_b32", "v_permlane16_swap_b32"):
            s += f"v_mov_b32 v{R+1}, v{R}\n{sw} v{R+1}, v{R}\nv_add_f32 v{R}, v{R}, v{R+1}\n"
        s += f"v_rcp_f32 v{R}, v{R}\n"
        for i in range(0, 12, 2):
            s += f"v_pk_mul_f32 {vr(v[i],2)}, {vr(v[i],2)}, {vr(R,2)} op_sel_hi:[1,0]\n"
        a, c2 = v[0], v[8]
        for i in range(4):
            s += f"v_cvt_pk_bf16_f32 v{a+i}, v{v[2*i]}, v{v[2*i+1]}\n"
        for i in range(2):
            s += f"v_cvt_pk_bf16_f32 v{c2+i}, v{v[8+2*i]}, v{v[9+2*i]}\n"
        wr = L(f"ds_write_b128 v{C_PW}, {vr(a,4)} offset:{st*1024}\nds_write_b64 v{C_PW+1}, {vr(c2,2)} offset:{12288+st*1024}")
        return L(s), wr

    def v_reads(self, ks, dst, buf=0):
        a = (D_VA if buf == 0 else D_VA2) + ks
        return [I(f"ds_read_b128 {vr(dst+4*kt,4)}, v{a} offset:{kt*4096}") for kt in range(3)]

    def w_reads_main(self, q, step, s):
        sl = q % 5
        base, so = (D_WA, W_LDS[sl] - W_LDS[0]) if sl < 3 else (D_WA2, W_LDS[sl] - W_LDS[3])
        return [I(f"ds_read_b64_tr_b16 {vr(D_W[s]+4*t+2*i,2)}, v{base+t} offset:{so+step*8192+i*1024}")
                for t in range(4) for i in range(2)]

    def w_reads_extra(self, q, step, s):
        so = W_LDS[q] - W_LDS[0]
        return [I(f"ds_read_b64_tr_b16 {vr(D_W[s]+4*(2*kk+t)+2*i,2)}, v{D_EA+t} offset:{so+(2*step+kk)*4096+i*512}")
                for kk in range(2) for t in range(2) for i in range(2)]

    def p_reads(self, f, s, a=D_PA):
        return [I(f"ds_read_b128 {vr(D_P[s]+4*st,4)}, v{a} offset:{f*6144+st*1024}") for st in range(3)]

    VHOLD = [D_P[0], D_P[1], D_V[0], D_V[1]]

    def step_reads(self, q, step):
        if q < 2:
            return self.w_reads_extra(q, step, step)
        pos, r4 = divmod(q - 2, 4)
        w = self.w_reads_main(q, step, step)
        if q < 4:
            return w
        v = self.v_reads(2 * (r4 & 1) + step, D_V[step], pos % 2)
        return [v[0], w[0], w[1], v[1], v[2]] + w[2:]

    def vw(self, t, kt):
        return D_VW + (t * 3 + kt) * 4

    def cvt_tile(self, t, f01, f2, h):
        r = []
        for kt in range(3):
            s = self.vw(t, kt)
            d = f01 + 2 * kt if kt < 2 else f2 + 2 * h
            r += L(f"v_cvt_pk_bf16_f32 v{d}, v{s}, v{s+1}\nv_cvt_pk_bf16_f32 v{d+1}, v{s+2}, v{s+3}")
        return r

    def finals(self, outb, fb, ps, nt, first=False):
        return [mfma(outb + (t * 3 + st) * 4, fb + 4 * t, D_P[ps] + 4 * st, None if first else outb + (t * 3 + st) * 4)
                for t in range(nt) for st in range(3)]

    def pack_store(self, a, b, soff, st, d=None):
        d = a if d is None else d
        return L(f"""
v_cvt_pk_bf16_f32 v{d}, v{a}, v{a+1}
v_cvt_pk_bf16_f32 v{d+1}, v{a+2}, v{a+3}
v_cvt_pk_bf16_f32 v{d+2}, v{b}, v{b+1}
v_cvt_pk_bf16_f32 v{d+3}, v{b+2}, v{b+3}
"""), L(f"buffer_store_dwordx4 {vr(d,4)}, v{X_LIN}, {sr(R_WS,4)}, s{soff} offen offset:{st*1024} sc1")

    def main_block(self):
        o = self.o
        b = []
        b += self.p1_reads(0, 0)
        for n in range(9):
            mA = self.p1_mfmas(0, n == 0)
            mB = self.p1_mfmas(1, False)
            b += self.p1_reads(1, 1) + mA + self.bar([mA[o.ck1]], drain=True)
            if o.stp1:
                b += [self.anchor(x, mA[-1]) for x in self.st(f"cycA{n}")]
            if n < 8:
                d = (A_SLOT[(n + 1) % 3] - A_SLOT[n % 3]) & 0xffffffff
                b += [I(f"v_add_u32 v{r}, {d}, v{r}") for r in list(range(C_WA, C_WA + 8)) + [C_XA, C_XA + 1]]
                b += self.p1_reads(0, 0)
            else:
                for p in range(4):
                    for kt in range(3):
                        for e in range(2):
                            b.append(I(f"ds_read_b64 {vr(self.kfrag(kt,p)+2*e,2)}, v{C_KA+2*p+e} offset:{kt*4096}"))
            b += mB
        b += [self.anchor(x, mB[-1]) for x in self.st("Qdone") + self.st("cyc1")]
        qk = []
        for st in range(3):
            for p in range(4):
                a, c = acc(2 * p, st), acc(2 * p + 1, st)
                b += L(f"""
v_cvt_pk_bf16_f32 v{a}, v{a}, v{a+1}
v_cvt_pk_bf16_f32 v{a+1}, v{a+2}, v{a+3}
v_cvt_pk_bf16_f32 v{a+2}, v{c}, v{c+1}
v_cvt_pk_bf16_f32 v{a+3}, v{c+2}, v{c+3}
""")
            m = [mfma(self.sacc(kt, st), self.kfrag(kt, p), acc(2 * p, st), None if p == 0 else self.sacc(kt, st))
                 for p in range(4) for kt in range(3)]
            qk += m
            b += m
        b += self.bar(qk)
        first = []
        for ks in range(4):
            first += self.v_reads(ks, self.VHOLD[ks])
        w0 = self.step_reads(0, 0)
        b += first[0:3] + w0[0:4] + first[3:6] + w0[4:8] + first[6:12]
        pw = []
        for st in range(3):
            sm, wr = self.softmax(st)
            b += sm + wr
            pw += wr
        b += self.bar(drain=True)
        b += self.st("Pw") + self.st("cycP")
        EF = [D_OUTM, D_OUTM + 8, D_OUTM + 16]
        late = {}
        prev = []
        for q in range(18):
            pos, r4 = divmod(q - 2, 4) if q >= 2 else (0, -1)
            vwm = []
            for step in range(2):
                if q < 2:
                    vwm.append([mfma(self.vw(2 * q + t, kt), self.VHOLD[2 * step + kk] + 4 * kt, D_W[step] + 4 * (2 * kk + t),
                                     None if (step == 0 and kk == 0) else self.vw(2 * q + t, kt))
                                for kk in range(2) for t in range(2) for kt in range(3)])
                else:
                    ks = 2 * (r4 & 1) + step
                    vb = self.VHOLD[ks] if q in (2, 3) else D_V[step]
                    vwm.append([mfma(self.vw(t, kt), vb + 4 * kt, D_W[step] + 4 * t, None if ks == 0 else self.vw(t, kt))
                                for t in range(4) for kt in range(3)])
            fin, pr = [], []
            if q == 3:
                fin, pr = self.finals(D_OUTE, EF[0], 0, 2, first=True), self.p_reads(0, 0)
            elif q == 4:
                fin = self.finals(D_OUTE, EF[1], 1, 2) + self.finals(D_OUTE, EF[2], 0, 2)
                pr = self.p_reads(1, 1) + self.p_reads(2, 0)
            elif q >= 2 and r4 == 3:
                fin, pr = self.finals(D_OUTM, D_F01, 1, 4, first=(pos == 0)), self.p_reads(0, 1)
            elif q >= 6 and r4 == 0:
                fin, pr = self.finals(D_OUTM, D_F01, 0, 4), self.p_reads(1, 0)
            elif q >= 6 and r4 == 1:
                fin, pr = self.finals(D_OUTM, D_F2, 1, 4), self.p_reads(2, 1)
            mA = vwm[0] + fin
            bpos = mA[min(o.dpos, len(mA) - 2)]
            lt = late.pop(q, [])
            if lt:
                self.anchor(lt[0], mA[o.dpos - 3])
            b += pr + self.step_reads(q, 1) + lt + mA
            if q % 2 == 1:
                b += self.bar([bpos], drain=True)
            if o.stp2 and q % 2 == 1:
                b += [self.anchor(x, mA[-1]) for x in self.st(f"cycB{q}")]
            if q < 17:
                b += self.step_reads(q + 1, 0)
            else:
                b += self.p_reads(1, 0) + self.p_reads(2, 1)
            b += vwm[1]
            prev = mA + vwm[1]
            if q < 2:
                for t in range(2):
                    b += self.cvt_tile(2 * q + t, EF[q] + 4 * t, EF[2] + 4 * t, q)
            elif r4 & 1:
                for t in range(4):
                    b += self.cvt_tile(t, D_F01 + 4 * t, D_F2 + 4 * t, r4 >> 1)
            if q == 4:
                stores = []
                for st in range(3):
                    cv, sto = self.pack_store(D_OUTE + st * 4, D_OUTE + (3 + st) * 4, S_ES, st)
                    b += cv
                    stores += sto
                nv = D_OUTE + 12
                late[5] = stores + L(f"buffer_load_dwordx2 {vr(nv,2)}, v{X_L0}, {sr(R_DBG,4)}, 0 offen sc1")
                late[9] = L(f"s_waitcnt vmcnt(0)\nbuffer_store_dwordx2 {vr(nv,2)}, v{X_L0}, {sr(R_WS,4)}, s{S_EF} offen sc1")
        f1 = self.finals(D_OUTM, D_F01, 0, 4)
        f2 = self.finals(D_OUTM, D_F2, 1, 4)
        k = 0
        for tp in range(2):
            b += f1[6 * tp:6 * tp + 6] + f2[6 * tp:6 * tp + 6]
        b += [self.anchor(x, f2[-1]) for x in self.st("P2done") + self.st("cyc2")]
        for tp in range(2):
            for st in range(3):
                cv, sto = self.pack_store(D_OUTM + (2 * tp * 3 + st) * 4, D_OUTM + ((2 * tp + 1) * 3 + st) * 4, S_MS + tp, st)
                b += cv + sto
        return b

    def gen(self):
        o = self.o
        self.startup()
        Sched.FILL, Sched.DS_LAT, Sched.DS_SCALE, Sched.WAR_DS, Sched.WAR_MEM, Sched.MFMA_LAT = o.fill, o.dslat, o.dsscale, o.wards, o.warmem, o.mlat
        blk = schedule(self.main_block())
        print("modelled cycles:", schedule.last_time)
        self.c += blk
        self.c += self.st("stored")
        self.A(f"s_mov_b32 s{S_T4}, s{S_W}")
        self.c += gather_setup() + gather_main("c")
        if o.stamps:
            self.A("s_waitcnt vmcnt(0)")
            self.c += self.st("end")
            self.c += self.st.dump(0)
        self.A("s_endpgm")
        self.A("Wc_end:")
        return self.c


def generate(o):
    ld, cp = Loader(o), Compute(o)
    body = finalize(prologue(o)) + finalize(ld.gen()) + finalize(cp.gen())
    if o.walk:
        body = add_stubs(body, [("Wl_begin", "L_compute", "Wl", 4, "Wl_ret"), ("Wc_begin", "Wc_end", "Wc", 4, "Wc_ret")],
                         prefix=f"{NAME}:\n")
    hdr = open("concat_heads__gqa_block_cached__gqa_block_cached__near_ridge.s.ref").read().split("\n")
    head = [l for l in hdr if l.startswith(";") and "@launch" not in l]
    s = "\n".join(head) + f"\n; @launch grid=(256,1,1) block=(512,1,1) lds={LDS_BYTES}\n"
    s += f'.amdgcn_target "amdgcn-amd-amdhsa--gfx950"\n.text\n.globl {NAME}\n.p2align 8\n.type {NAME},@function\n{NAME}:\n'
    s += text(body) + "\nL_end:\n    s_endpgm\n"
    s += f""".section .rodata,"a"
.p2align 6
.amdhsa_kernel {NAME}
  .amdhsa_next_free_vgpr 256
  .amdhsa_next_free_sgpr 102
  .amdhsa_accum_offset 256
  .amdhsa_group_segment_fixed_size 0
  .amdhsa_kernarg_size 104
  .amdhsa_user_sgpr_count 2
  .amdhsa_user_sgpr_kernarg_segment_ptr 1
  .amdhsa_system_sgpr_workgroup_id_x 1
.end_amdhsa_kernel
"""
    return s, ld.st.names, cp.st.names


if __name__ == "__main__":
    o = Opt()
    out = sys.argv[1]
    for a in sys.argv[2:]:
        k, v = a.split("=")
        cur = getattr(o, k)
        setattr(o, k, (v == "1") if isinstance(cur, bool) else type(cur)(v))
    s, ln, cn = generate(o)
    open(out, "w").write(s)
    if o.stamps:
        open(out + ".names", "w").write(repr((cn, ln)))
    print("generated", out, len(s.splitlines()), "lines")
```

```python
import sys
from asmlib import *

NAME = "concat_heads__gqa_block_cached__gqa_block_cached__near_ridge_kernel"


class Opt:
    stamps = False
    pol_x = ""
    pol_wq = ""
    pol_k = ""
    pol_v = ""
    pol_wo = ""
    prefetch_code = True
    walk = True
    l2pf = 0
    rot = 2
    rotoff = 5
    tries = 2
    mlat = 56
    tw5 = False
    flip = True
    earlyflag = True
    w5first = False
    exq = 5
    exi = 10
    exf = 9
    expoll = 13
    stl = False
    stw = 0
    ftail = True
    tmask = 15
    vtlb2 = 0
    pf2 = 0
    pfstep = 1
    dg_noclr = False
    dg_nopub = False
    dg_hot = False
    vtlb = 0
    cqrot = 1
    flipbit = 2
    pol_out = ''
    split = True
    sample = True
    kpos = -1
    budget0 = 99
    budget = 11
    clrpos = 10
    wsoff = 0
    clrmode = 0
    vpf = 0
    v1at = 3
    dpos = 13
    prio_loader = 0
    prio_compute = 0
    fill = 5
    dslat = 120
    dsscale = 1.15
    wards = 8
    warmem = 160
    ck1 = 22
    stp1 = False
    stp2 = False
    ldexit = False
    tlb = False


SLOT = 45056
A_SLOT = [0, SLOT, 2 * SLOT]
K_LDS = 3 * SLOT
P_LDS = K_LDS
V_LDS = [0, 110592]
W_LDS = [24576, 45056, 61440, 77824, 94208]
LDS_BYTES = 163840

WS_P = 0
WS_PM = 256 * 18432
WS_PE = WS_PM + 256 * 24576
WS_FLAG = WS_PE + 256 * 12288
WS_FLAG2 = WS_FLAG + 256 * 128
WS_STAMP = 256 * 18432 + 256 * 36864 + 2 * 256 * 128
WS_USED = WS_STAMP + 256 * 512
assert WS_FLAG2 + 256 * 128 <= WS_STAMP

S_X, S_K, S_V, S_WQ, S_WO = 4, 6, 8, 10, 12
S_OUT, S_DBG, S_WS = 14, 16, 18
R_X, R_WQ, R_K, R_V, R_WO, R_WS, R_OUT, R_DBG = 20, 24, 28, 32, 36, 40, 44, 48
S_BR, S_KQ, S_BP, S_JL, S_J, S_CQ, S_W, S_KC = 52, 53, 54, 55, 56, 57, 58, 59
S_T0, S_T1, S_T2, S_T3, S_T4, S_T5 = 60, 61, 62, 63, 64, 65
S_NON = 66
S_GRP = 68
S_CNT = 69
S_EX = 70
S_C0 = 72
S_ES, S_EF, S_MS = 74, 75, 100
S_F0, S_F1 = 4, 5
S_VB = 70
S_EI, S_EO = 70, 71
S_FL = 59
S_ST = 76
NSTAMP = 12
SPIN_MAX = 200000
WSOFF = [0]
CQROT = [1]
POL_OUT = ['']


def L(s):
    return [I(x) for x in s.strip().split("\n") if x.strip()]


class Stamper:
    def __init__(self, on):
        self.on, self.n, self.names, self.only, self.w = on, 0, [], None, 0

    def __call__(self, name):
        if not self.on or (self.only and not name.startswith(self.only) and name not in ("start", "cyc0")):
            return []
        assert self.n < NSTAMP
        r = S_ST + 2 * self.n
        self.n += 1
        self.names.append(name)
        if name == "xcc":
            return [I(f"s_getreg_b32 s{r}, hwreg(HW_REG_XCC_ID)"), I(f"s_getreg_b32 s{r+1}, hwreg(HW_REG_HW_ID)")]
        return [I(f"{'s_memtime' if name.startswith('cyc') else 's_memrealtime'} {sr(r,2)}")]

    def at(self, name, slot):
        while len(self.names) <= slot:
            self.names.append("x")
        self.names[slot] = name
        self.n = max(self.n, slot + 1)
        return [I(f"s_memrealtime {sr(S_ST + 2 * slot, 2)}")]

    def dump(self, role):
        if not self.on:
            return []
        tag = "cl"[role]
        o = L(f"""
s_cmp_lg_u32 s{S_W}, {self.w}
s_cbranch_scc1 L_nostamp_{tag}
s_waitcnt lgkmcnt(0)
s_lshl_b32 s{S_T0}, s2, 9
s_add_u32 s{S_T0}, s{S_T0}, {WS_STAMP + role*256}
v_mov_b32 v1, 0
s_mov_b64 exec, 1
""")
        for i in range(self.n):
            o += L(f"""
v_mov_b32 v2, s{S_ST+2*i}
v_mov_b32 v3, s{S_ST+2*i+1}
buffer_store_dwordx2 v[2:3], v1, {sr(R_WS,4)}, s{S_T0} offen offset:{8*i}
s_nop 1
""")
        o += L(f"s_mov_b64 exec, -1\nL_nostamp_{tag}:")
        return o


def srd(r, ptr, size):
    return L(f"""
s_mov_b32 s{r}, s{ptr}
s_and_b32 s{r+1}, s{ptr+1}, 0xffff
s_mov_b32 s{r+2}, {size}
s_mov_b32 s{r+3}, 0x20000
""")


def srd_off(r, ptr, soff, total):
    return L(f"""
s_add_u32 s{r}, s{ptr}, s{soff}
s_addc_u32 s{r+1}, s{ptr+1}, 0
s_and_b32 s{r+1}, s{r+1}, 0xffff
s_sub_u32 s{r+2}, {total}, s{soff}
s_mov_b32 s{r+3}, 0x20000
""")


def walk_entry(tag):
    c = L("s_mov_b64 exec, 0")
    for w in range(3):
        c += L(f"s_cmp_eq_u32 s{S_W}, {w}\ns_cbranch_scc1 {tag}_w{w}")
    c += L(f"s_branch {tag}_w3\n{tag}_ret:\ns_mov_b64 exec, -1")
    return c


def prologue(o):
    return L(f"""
s_and_b32 s{S_T0}, s2, 7
s_lshr_b32 s{S_BR}, s{S_T0}, 2
s_mul_i32 s{S_T1}, s{S_BR}, 40
s_load_dwordx8 s[4:11], s[0:1], s{S_T1}
s_load_dwordx2 s[12:13], s[0:1], s{S_T1} offset:32
s_load_dwordx2 s[14:15], s[0:1], 80
s_load_dwordx4 s[16:19], s[0:1], 88
s_cmp_ge_u32 s2, 256
s_cbranch_scc1 L_end
v_lshrrev_b32 v1, 6, v0
s_and_b32 s{S_KQ}, s{S_T0}, 3
s_lshr_b32 s{S_T2}, s2, 3
v_readfirstlane_b32 s{S_W}, v1
s_lshr_b32 s{S_BP}, s{S_T2}, 2
s_and_b32 s{S_JL}, s{S_T2}, 3
s_lshl_b32 s{S_J}, s{S_KQ}, 2
s_add_u32 s{S_J}, s{S_J}, s{S_JL}
v_and_b32 v0, 63, v0
s_cmp_lt_u32 s{S_W}, 4
s_cbranch_scc1 L_compute
""")


def common_scalars():
    return L(f"""
s_mul_i32 s{S_CQ}, s{S_BP}, {CQROT[0]}
s_add_u32 s{S_CQ}, s{S_JL}, s{S_CQ}
s_and_b32 s{S_CQ}, s{S_CQ}, 3
s_lshl_b32 s{S_GRP}, s{S_BR}, 3
s_add_u32 s{S_GRP}, s{S_GRP}, s{S_BP}
s_lshl_b32 s{S_GRP}, s{S_GRP}, 4
s_mul_i32 s{S_T0}, s{S_BR}, 1152
""") + srd_off(R_OUT, S_OUT, S_T0, 1769472) + L(f"""
s_add_u32 s{R_WS}, s{S_WS}, {WSOFF[0] << 20}
s_addc_u32 s{R_WS+1}, s{S_WS+1}, 0
s_and_b32 s{R_WS+1}, s{R_WS+1}, 0xffff
s_mov_b32 s{R_WS+2}, {WS_USED}
s_mov_b32 s{R_WS+3}, 0x20000
""") + srd(R_DBG, S_DBG, 256)


V_WQ = 8
V_XO = 16
V_KV = 19
V_WM = 25
V_WE = 29
V_LIN = 33
V_T = 34
V_PUB = 40
V_FL = 60
V_LW = 64
V_PR = 65
V_SV = 66
V_ONE = 68
V_W2 = 140


class Loader:
    SB_WQ, SB_X, SB_KV, SB_W, SB_P0, SB_P12 = 72, 73, 74, 75, 100, 101

    def __init__(self, o):
        self.o, self.c, self.issued, self.q = o, [], [], []
        self.st = Stamper(o.stamps)
        self.st.w = o.stw
        if o.stl:
            self.st.only = ("L", "end")
        self.nl = 0

    def A(self, s):
        self.c += L(s)

    def group(self, items, rsrc, pol, tag, base, lds0):
        for i, (voff, soff, half) in enumerate(items):
            if i == 0:
                self.A(f"s_add_u32 m0, s{base}, {lds0}")
            else:
                self.A("s_addk_i32 m0, 0x400")
            if half:
                self.A("s_mov_b32 exec_hi, 0")
            self.A(f"buffer_load_dwordx4 v{voff}, {sr(rsrc,4)}, {soff} offen {pol} lds")
            if half:
                self.A("s_mov_b32 exec_hi, -1")
            self.issued.append(tag)
        assert len(self.issued) <= 63

    def wait_for(self, tags):
        last = max([i for i, t in enumerate(self.issued) if t in tags], default=-1)
        if last < 0:
            return
        n = len(self.issued) - 1 - last
        self.A(f"s_waitcnt vmcnt({n})")
        self.issued = self.issued[last + 1:]

    def barrier(self, tags, name=None):
        if name and self.o.stl:
            self.c += self.st.at(f"L{name[0]}i", name[1])
        self.wait_for(tags)
        if name and self.o.stl:
            self.c += self.st.at(f"L{name[0]}w", name[1] + 1)
        self.A("s_barrier")

    def push(self, *jobs):
        for tag, setup, items in jobs:
            self.q.append([tag, setup, list(items)])

    def pump(self, need=(), extra=None):
        extra = self.o.budget if extra is None else extra
        while self.q:
            tag, setup, items = self.q[0]
            must = any(j[0] in need for j in self.q)
            if must:
                n = len(items)
            else:
                last = max([i for i, t in enumerate(self.issued) if t in need], default=-1)
                n = min(len(items), extra - (len(self.issued) - 1 - last))
                if n <= 0:
                    break
            if setup:
                self.A(setup)
            prev = None
            for (rsrc, pol, base, lds, voff, soff, half) in items[:n]:
                if prev == (base, lds - 1024):
                    self.A("s_addk_i32 m0, 0x400")
                else:
                    self.A(f"s_add_u32 m0, s{base}, {lds}")
                prev = (base, lds)
                if half:
                    self.A("s_mov_b32 exec_hi, 0")
                self.A(f"buffer_load_dwordx4 v{voff}, {sr(rsrc,4)}, {soff} offen {pol} lds")
                if half:
                    self.A("s_mov_b32 exec_hi, -1")
                self.issued.append(tag)
            assert len(self.issued) <= 63
            del items[:n]
            if items:
                break
            self.q.pop(0)

    def job_s(self, n):
        o = self.o
        slot = A_SLOT[n % 3]
        if o.rot:
            setup = f"s_lshl_b32 s{S_T0}, s{S_KC}, 19\ns_lshl_b32 s{S_T1}, s{S_KC}, 7" if n == 0 else f"""
s_add_u32 s{S_T1}, s{S_KC}, {n}
s_cmp_ge_u32 s{S_T1}, 9
s_cselect_b32 s{S_T0}, 9, 0
s_sub_u32 s{S_T1}, s{S_T1}, s{S_T0}
s_lshl_b32 s{S_T0}, s{S_T1}, 19
s_lshl_b32 s{S_T1}, s{S_T1}, 7
"""
        else:
            setup = f"s_mov_b32 s{S_T0}, {n << 19}\ns_movk_i32 s{S_T1}, {n << 7}"
        it = [(R_X, o.pol_x, self.SB_X, slot + 32768 + u * 1024, V_XO + u, f"s{S_T1}", False) for u in range(3)]
        it += [(R_WQ, o.pol_wq, self.SB_WQ, slot + u * 1024, V_WQ + u, f"s{S_T0}", False) for u in range(8)]
        return (f"S{n}", setup, it)

    def job_k(self):
        return ("K", "", [(R_K, self.o.pol_k, self.SB_KV, K_LDS + u * 1024, V_KV + u, "0", False) for u in range(6)])

    def jjt(self, pos, dst):
        return f"s_add_u32 s{dst}, s{S_JL}, {pos}\ns_and_b32 s{dst}, s{dst}, 3\n"

    def job_v(self, pos):
        return (f"V{pos}", self.jjt(pos, S_T0) + f"s_mul_i32 s{S_T0}, s{S_T0}, 12288",
                [(R_V, self.o.pol_v, self.SB_KV, V_LDS[pos % 2] + u * 1024, V_KV + u, f"s{S_T0}", False) for u in range(6)])

    def job_w(self, q, both=0):
        if q < 2:
            setup = f"s_mul_i32 s{S_T0}, s{S_JL}, {256*1152}\ns_add_u32 s{S_T0}, s{S_T0}, {q*128*1152 + 1024}"
            vb = V_WE
        else:
            pos, r = divmod(q - 2, 4)
            setup = self.jjt(pos, S_T0) + f"""
s_mul_i32 s{S_T0}, s{S_T0}, {256*1152}
s_add_u32 s{S_T0}, s{S_T0}, {(r&2)*64*1152}
s_add_u32 s{S_T0}, s{S_T0}, s{S_F0 + (r&1)}
"""
            vb = V_WM
        it = [(R_WO, self.o.pol_wo, self.SB_W, W_LDS[q % 5] + u * 1024, vb + u, f"s{S_T0}", False) for u in range(4)]
        if both:
            it += [(R_WO, self.o.pol_wo, self.SB_W, W_LDS[q % 5] + both * 8192 + u * 1024, V_W2 + u, f"s{S_T0}", False) for u in range(4)]
        return (f"W{q}", setup, it)

    def job_p(self, pos, f0, nf, tag, lds):
        sb = self.SB_P0 if nf == 1 else self.SB_P12
        setup = self.jjt(pos, S_T0) + f"""
s_lshl_b32 s{S_T3}, s{S_KQ}, 2
s_add_u32 s{S_T0}, s{S_T0}, s{S_T3}
s_add_u32 s{S_T0}, s{S_T0}, s{S_GRP}
s_mul_i32 s{S_T0}, s{S_T0}, 18432
s_add_u32 s{S_T0}, s{S_T0}, s{sb}
s_add_u32 s{S_T0}, s{S_T0}, {f0*6144}
s_add_u32 s{S_T1}, s{S_T0}, 1024
s_add_u32 s{S_T2}, s{S_T0}, 2048
"""
        it = [(R_WS, "sc1", sb, lds + u * 1024, V_LIN, f"s{S_T0+u}", nf == 1 and u == 1) for u in range(2 if nf == 1 else 3)]
        return (tag, setup, it)

    def touch(self, c0, nc):
        self.A(f"s_mov_b32 exec_hi, 0\ns_mov_b32 exec_lo, {(1 << (8 * nc)) - 1}")
        if c0:
            self.A(f"s_mov_b32 s{S_T0}, {c0 << 19}\ns_movk_i32 s{S_T1}, {c0 << 7}")
        self.A(f"""
buffer_load_dword v{V_T+2}, v{V_T}, {sr(R_WQ,4)}, {f's{S_T0}' if c0 else '0'} offen
buffer_load_dword v{V_T+3}, v{V_T+1}, {sr(R_X,4)}, {f's{S_T1}' if c0 else '0'} offen
s_mov_b64 exec, -1
""")
        self.issued += ["pf", "pf"]

    def v_touch(self, k):
        n = self.o.vpf
        if k == 0:
            self.A(f"""
s_mul_i32 s{S_T0}, s{S_JL}, 12288
s_lshr_b32 s{S_T1}, s{S_W}, 1
s_mul_i32 s{S_T1}, s{S_T1}, 196608
s_add_u32 s{S_T0}, s{S_T0}, s{S_T1}
s_and_b32 s{S_T1}, s{S_W}, 1
s_mul_i32 s{S_T1}, s{S_T1}, 6144
s_add_u32 s{S_T0}, s{S_T0}, s{S_T1}
s_add_u32 s{S_VB}, s{R_V}, s{S_T0}
s_addc_u32 s{S_VB+1}, s{R_V+1}, 0
""")
        else:
            self.A("s_waitcnt lgkmcnt(0)")
        for i in range(k * n, min(96, (k + 1) * n)):
            self.A(f"s_load_dword s3, {sr(S_VB,2)}, {i*64}")

    def touch_v(self):
        self.A(f"""
s_mul_i32 s{S_T0}, s{S_JL}, 12288
s_lshr_b32 s{S_T1}, s{S_W}, 1
s_mul_i32 s{S_T1}, s{S_T1}, 196608
s_add_u32 s{S_T0}, s{S_T0}, s{S_T1}
s_and_b32 s{S_T1}, s{S_W}, 1
s_mul_i32 s{S_T1}, s{S_T1}, 6144
s_add_u32 s{S_T0}, s{S_T0}, s{S_T1}
v_lshlrev_b32 v{V_SV}, 7, v0
s_mov_b32 exec_hi, 0xffff
buffer_load_dword v{V_SV+1}, v{V_SV}, {sr(R_V,4)}, s{S_T0} offen
s_mov_b32 exec_hi, -1
""")
        self.issued.append("tw")

    def touch_e(self):
        self.A(f"""
s_lshl_b32 s{S_T0}, s{S_JL}, 8
s_lshl_b32 s{S_T1}, s{S_BP}, 5
s_add_u32 s{S_T0}, s{S_T0}, s{S_T1}
s_lshl_b32 s{S_T1}, s{S_W}, 3
s_add_u32 s{S_T0}, s{S_T0}, s{S_T1}
s_mul_i32 s{S_T0}, s{S_T0}, 1152
s_add_u32 s{S_T0}, s{S_T0}, 1024
v_mul_u32_u24 v{V_SV}, 1152, v0
s_mov_b64 exec, 0xff
buffer_load_dword v{V_SV+1}, v{V_SV}, {sr(R_WO,4)}, s{S_T0} offen
s_mov_b64 exec, -1
""")
        self.issued.append("tw")

    def tlb_touch(self):
        T = V_W2
        self.A(f"""
v_lshlrev_b32 v{T}, 15, v0
v_min_u32 v{T}, {1024*1152 - 4}, v{T}
{f'buffer_load_dword v{T+4}, v{T}, {sr(R_WO,4)}, 0 offen' if self.o.tmask & 1 else ''}
v_and_b32 v{T+1}, 3, v0
v_mul_u32_u24 v{T+1}, 12288, v{T+1}
v_bfe_u32 v{T+2}, v0, 2, 1
v_mul_u32_u24 v{T+2}, 196608, v{T+2}
v_add_u32 v{T+1}, v{T+1}, v{T+2}
{f'buffer_load_dword v{T+4}, v{T+1}, {sr(R_V,4)}, 0 offen' if self.o.tmask & 2 else ''}
v_and_b32 v{T+2}, 7, v0
v_lshlrev_b32 v{T+2}, 15, v{T+2}
v_min_u32 v{T+2}, {96*2304 - 1156}, v{T+2}
s_mul_i32 s{S_T0}, s{S_BP}, {96*2304}
{f'buffer_load_dword v{T+4}, v{T+2}, {sr(R_OUT,4)}, s{S_T0} offen' if self.o.tmask & 4 else ''}
v_and_b32 v{T+3}, 15, v0
v_add_u32 v{T+3}, s{S_GRP}, v{T+3}
v_lshrrev_b32 v{T+5}, 4, v0
v_mov_b32 v{T+6}, 18432
v_mov_b32 v{T+7}, 0
v_cmp_eq_u32 vcc, 1, v{T+5}
v_mov_b32 v{T+8}, 24576
v_cndmask_b32 v{T+6}, v{T+6}, v{T+8}, vcc
v_mov_b32 v{T+8}, {WS_PM}
v_cndmask_b32 v{T+7}, v{T+7}, v{T+8}, vcc
v_cmp_eq_u32 vcc, 2, v{T+5}
v_mov_b32 v{T+8}, 12288
v_cndmask_b32 v{T+6}, v{T+6}, v{T+8}, vcc
v_mov_b32 v{T+8}, {WS_PE}
v_cndmask_b32 v{T+7}, v{T+7}, v{T+8}, vcc
v_cmp_eq_u32 vcc, 3, v{T+5}
v_mov_b32 v{T+8}, 128
v_cndmask_b32 v{T+6}, v{T+6}, v{T+8}, vcc
v_mov_b32 v{T+8}, {WS_FLAG}
v_cndmask_b32 v{T+7}, v{T+7}, v{T+8}, vcc
v_mad_u32_u24 v{T+3}, v{T+3}, v{T+6}, v{T+7}
{f'buffer_load_dword v{T+4}, v{T+3}, {sr(R_WS,4)}, 0 offen' if self.o.tmask & 8 else ''}
""")
        self.issued += ["tlb"] * bin(self.o.tmask & 15).count("1")
        if self.o.tmask & 16:
            self.A(f"v_mov_b32 v{T}, 128\nbuffer_load_dword v{T+4}, v{T}, {sr(R_DBG,4)}, 0 offen")
            self.issued.append("tlb")

    def jj(self, pos, dst):
        self.A(f"s_add_u32 s{dst}, s{S_JL}, {pos}\ns_and_b32 s{dst}, s{dst}, 3")

    def load_v(self, pos):
        self.jj(pos, S_T0)
        self.A(f"s_mul_i32 s{S_T0}, s{S_T0}, 12288")
        self.group([(V_KV + u, f"s{S_T0}", False) for u in range(6)], R_V, self.o.pol_v, f"V{pos}", self.SB_KV, V_LDS[pos % 2])

    def load_w(self, q, both=0):
        if q < 2:
            self.A(f"s_mul_i32 s{S_T0}, s{S_JL}, {256*1152}\ns_add_u32 s{S_T0}, s{S_T0}, {q*128*1152 + 1024}")
            vb = V_WE
        else:
            pos, r = divmod(q - 2, 4)
            self.jj(pos, S_T0)
            self.A(f"""
s_mul_i32 s{S_T0}, s{S_T0}, {256*1152}
s_lshl_b32 s{S_T1}, s{S_CQ}, 8
s_add_u32 s{S_T0}, s{S_T0}, s{S_T1}
s_add_u32 s{S_T0}, s{S_T0}, {(r&2)*64*1152}
s_add_u32 s{S_T0}, s{S_T0}, s{S_F0 + (r&1)}
""")
            vb = V_WM
        self.group([(vb + u, f"s{S_T0}", False) for u in range(4)], R_WO, self.o.pol_wo, f"W{q}", self.SB_W, W_LDS[q % 5])
        if both:
            self.group([(V_W2 + u, f"s{S_T0}", False) for u in range(4)], R_WO, self.o.pol_wo, f"W{q}", self.SB_W,
                       W_LDS[q % 5] + both * 8192)

    def other_rows(self):
        self.A(f"s_cmp_ge_u32 s{S_W}, 2\ns_cselect_b32 s{S_T0}, -1, 1\ns_mul_i32 s{S_T0}, s{S_T0}, {32*1152}")
        for u in range(4):
            self.A(f"v_add_u32 v{V_W2+u}, s{S_T0}, v{V_WM+u}")

    def touch_w(self, q):
        pos, r = divmod(q - 2, 4)
        self.jj(pos, S_T0)
        self.A(f"""
s_mul_i32 s{S_T0}, s{S_T0}, {256*1152}
s_mul_i32 s{S_T1}, s{S_W}, {16*1152}
s_add_u32 s{S_T0}, s{S_T0}, s{S_T1}
s_add_u32 s{S_T0}, s{S_T0}, {(r&2)*64*1152}
s_add_u32 s{S_T0}, s{S_T0}, s{S_F0 + (r&1)}
v_lshrrev_b32 v{V_SV}, 1, v0
v_mul_u32_u24 v{V_SV}, 1152, v{V_SV}
v_and_b32 v{V_SV+1}, 1, v0
v_lshl_add_u32 v{V_SV}, v{V_SV+1}, 7, v{V_SV}
s_mov_b32 exec_hi, 0
buffer_load_dword v{V_SV+1}, v{V_SV}, {sr(R_WO,4)}, s{S_T0} offen
s_mov_b32 exec_hi, -1
""")
        self.issued.append("tw")

    def p_block_off(self, pos, dst):
        self.jj(pos, dst)
        self.A(f"""
s_lshl_b32 s{S_T3}, s{S_KQ}, 2
s_add_u32 s{dst}, s{dst}, s{S_T3}
s_add_u32 s{dst}, s{dst}, s{S_GRP}
s_mul_i32 s{dst}, s{dst}, 18432
""")

    def load_p(self, pos, f0, nf, tag, lds):
        self.p_block_off(pos, S_T0)
        sb = self.SB_P0 if nf == 1 else self.SB_P12
        self.A(f"""
s_add_u32 s{S_T0}, s{S_T0}, s{sb}
s_add_u32 s{S_T0}, s{S_T0}, {f0*6144}
s_add_u32 s{S_T1}, s{S_T0}, 1024
s_add_u32 s{S_T2}, s{S_T0}, 2048
""")
        items = [(V_LIN, f"s{S_T0}", False), (V_LIN, f"s{S_T1}", True)] if nf == 1 else [(V_LIN, f"s{S_T0+u}", False) for u in range(3)]
        self.group(items, R_WS, "sc1", tag, sb, lds)

    def nonce_issue(self):
        self.A(f"v_mov_b32 v{V_FL}, 0\nbuffer_load_dwordx2 v[{V_FL+2}:{V_FL+3}], v{V_FL}, {sr(R_DBG,4)}, 0 offen sc1")
        self.issued.append("non")

    def nonce_check(self):
        self.wait_for(["non"])
        self.A(f"""
s_mov_b32 s{S_CNT}, {SPIN_MAX}
L_nonce:
v_readfirstlane_b32 s{S_NON}, v{V_FL+2}
v_readfirstlane_b32 s{S_NON+1}, v{V_FL+3}
s_sub_u32 s{S_CNT}, s{S_CNT}, 1
s_cmp_eq_u32 s{S_CNT}, 0
s_cbranch_scc1 L_nonce_done
s_cmp_lg_u32 s{S_NON}, 0
s_cbranch_scc1 L_nonce_done
buffer_load_dwordx2 v[{V_FL+2}:{V_FL+3}], v{V_FL}, {sr(R_DBG,4)}, 0 offen sc1
s_waitcnt vmcnt(0)
s_branch L_nonce
L_nonce_done:
""")

    def flag(self, off):
        self.A(f"""
s_add_u32 s{S_T0}, s{S_GRP}, s{S_J}
s_lshl_b32 s{S_T0}, s{S_T0}, 7
s_lshl_b32 s{S_T1}, s{S_W}, 3
s_add_u32 s{S_T0}, s{S_T0}, s{S_T1}
s_add_u32 s{S_T0}, s{S_T0}, {WS_FLAG + off}
s_mov_b64 exec, 1
buffer_store_dwordx2 v[{V_FL+2}:{V_FL+3}], v{V_FL}, {sr(R_WS,4)}, s{S_T0} offen sc1
s_mov_b64 exec, -1
""")
        self.issued.append("flag")

    def clear_slots(self, us=range(6)):
        self.A(f"""
s_add_u32 s{S_T0}, s{S_GRP}, s{S_J}
s_mul_i32 s{S_T0}, s{S_T0}, 24576
s_add_u32 s{S_T0}, s{S_T0}, s{self.SB_KV}
s_add_u32 s{S_T0}, s{S_T0}, {WS_PM}
s_add_u32 s{S_T1}, s{S_T0}, 3072
""")
        for u in (us if not (self.o.dg_noclr or self.o.ftail) else []):
            self.A(f"buffer_store_dwordx4 {vr(V_ONE,4)}, v{V_LIN}, {sr(R_WS,4)}, s{S_T0+u//3} offen offset:{(u%3)*1024} sc1")
            self.issued.append("clr")

    def publish_p(self):
        self.p_block_off(0, S_T0)
        if not self.o.split:
            self.A(f"""
s_mul_i32 s{S_T1}, s{S_W}, 4608
s_add_u32 s{S_T0}, s{S_T0}, s{S_T1}
s_add_u32 s{S_T1}, s{S_T1}, {P_LDS}
v_add_u32 v{V_T+4}, s{S_T1}, v{V_LIN}
s_add_u32 s{S_T1}, s{S_T0}, 4096
""")
            return
        self.A(f"""
s_and_b32 s{S_T1}, s{S_W}, 1
s_mul_i32 s{S_T1}, s{S_T1}, 9216
s_add_u32 s{S_T0}, s{S_T0}, s{S_T1}
s_add_u32 s{S_T1}, s{S_T1}, {P_LDS}
v_add_u32 v{V_T+4}, s{S_T1}, v{V_LIN}
s_add_u32 s{S_T1}, s{S_T0}, 4096
s_add_u32 s{S_T2}, s{S_T0}, 8192
""")

    def publish_p2(self):
        if not self.o.split:
            for u in range(5):
                self.A(f"ds_read_b128 {vr(96+4*u,4)}, v{V_T+4} offset:{u*1024}")
            for u in range(5):
                if u == 4:
                    self.A("s_waitcnt lgkmcnt(0)\ns_mov_b32 exec_hi, 0")
                self.A(f"buffer_store_dwordx4 {vr(96+4*u,4)}, v{V_LIN}, {sr(R_WS,4)}, s{S_T0+u//4} offen offset:{(u%4)*1024} sc1")
                self.issued.append("pub")
            self.A("s_mov_b32 exec_hi, -1")
            return
        for u in range(9):
            self.A(f"ds_read_b128 {vr(96+4*u,4)}, v{V_T+4} offset:{u*1024}")
        for u in range(9 if not self.o.dg_nopub else 0):
            self.A(f"buffer_store_dwordx4 {vr(96+4*u,4)}, v{V_LIN}, {sr(R_WS,4)}, s{S_T0+u//4} offen offset:{(u%4)*1024} sc1")
            self.issued.append("pub")

    def poll(self, label, voff, soff, tries=SPIN_MAX):
        self.A(f"""
s_mov_b32 s{S_CNT}, {tries}
{label}:
buffer_load_dwordx2 v[{V_T+4}:{V_T+5}], v{voff}, {sr(R_WS,4)}, s{soff} offen sc1
s_sub_u32 s{S_CNT}, s{S_CNT}, 1
s_waitcnt vmcnt(0)
v_cmp_ne_u64 vcc, {sr(S_NON,2)}, v[{V_T+4}:{V_T+5}]
s_cbranch_vccz {label}_done
s_sleep 2
s_cmp_lg_u32 s{S_CNT}, 0
s_cbranch_scc1 {label}
{label}_done:
""")
        self.issued = []

    def poll_pc(self):
        self.A(f"""
{f'v_bfe_u32 v{V_T}, v0, 1, 2' if self.o.split else f'v_bfe_u32 v{V_T}, v0, 2, 2'}
{f'v_and_or_b32 v{V_T+1}, v0, 1, 2' if self.o.split else f'v_and_b32 v{V_T+1}, 3, v0'}
v_lshlrev_b32 v{V_T}, 7, v{V_T}
v_lshl_add_u32 v{V_T}, v{V_T+1}, 3, v{V_T}
s_lshl_b32 s{S_T5}, s{S_KQ}, 2
s_add_u32 s{S_T5}, s{S_T5}, s{S_GRP}
s_lshl_b32 s{S_T5}, s{S_T5}, 7
s_add_u32 s{S_T5}, s{S_T5}, {WS_FLAG}
""")

    def gen(self):
        o = self.o
        A = self.A
        self.c += self.st("start")
        if o.prio_loader:
            A(f"s_setprio {o.prio_loader}")
        A(f"""
s_sub_u32 s{S_W}, s{S_W}, 4
v_lshrrev_b32 v1, 5, v0
v_and_b32 v2, 31, v0
v_lshlrev_b32 v2, 4, v2
v_lshlrev_b32 v3, 5, v1
v_xor_b32 v2, v2, v3
v_lshl_add_u32 v2, v1, 13, v2
s_lshl_b32 s{S_T0}, s{S_W}, 17
v_add_u32 v{V_WQ}, s{S_T0}, v2
s_movk_i32 s{S_T1}, 0x4000
v_xad_u32 v{V_WQ+1}, v{V_WQ}, 64, s{S_T1}
v_lshrrev_b32 v4, 4, v0
v_and_b32 v5, 7, v0
s_mov_b32 s{S_T2}, 0x8000
v_add_u32 v{V_WQ+2}, s{S_T2}, v{V_WQ}
v_add_u32 v{V_WQ+3}, s{S_T2}, v{V_WQ+1}
v_xor_b32 v{V_WQ+4}, 0x10080, v{V_WQ}
v_xor_b32 v{V_WQ+5}, 0x10080, v{V_WQ+1}
v_add_u32 v{V_WQ+6}, s{S_T2}, v{V_WQ+4}
v_add_u32 v{V_WQ+7}, s{S_T2}, v{V_WQ+5}
v_xor_b32 v5, v5, v4
v_lshlrev_b32 v5, 4, v5
s_and_b32 s{S_T1}, s{S_W}, 1
s_lshl_b32 s{S_T2}, s{S_T1}, 6
v_xor_b32 v5, s{S_T2}, v5
v_lshrrev_b32 v6, 3, v0
v_mul_u32_u24 v6, 1152, v6
s_mul_i32 s{S_T3}, s{S_W}, 27648
v_add3_u32 v{V_XO}, v5, v6, s{S_T3}
v_add_u32 v{V_XO+2}, 18432, v{V_XO}
v_xor_b32 v5, 64, v5
s_add_u32 s{S_T3}, s{S_T3}, 9216
v_add3_u32 v{V_XO+1}, v5, v6, s{S_T3}
s_lshl_b32 s{self.SB_WQ}, s{S_W}, 13
s_mul_i32 s{self.SB_X}, s{S_W}, 3072
s_mul_i32 s{S_T4}, s{S_BP}, 110592
s_lshl_b32 s{S_T5}, s{S_J}, 9
""")
        if o.rot == 1:
            A(f"""
s_lshl_b32 s{S_T1}, s{S_JL}, 1
s_add_u32 s{S_KC}, s{S_BP}, s{S_T1}
s_cmp_ge_u32 s{S_KC}, 9
s_cselect_b32 s{S_T1}, 9, 0
s_sub_u32 s{S_KC}, s{S_KC}, s{S_T1}
""")
        if o.rot == 2:
            A(f"s_add_u32 s{S_KC}, s{S_BP}, s{S_JL}\ns_and_b32 s{S_KC}, s{S_KC}, 1\ns_mul_i32 s{S_KC}, s{S_KC}, {o.rotoff}")
        if o.rot == 3:
            A(f"""
s_add_u32 s{S_KC}, s{S_BP}, s{S_JL}
s_mul_i32 s{S_T1}, s{S_KC}, 0x56
s_lshr_b32 s{S_T1}, s{S_T1}, 8
s_mul_i32 s{S_T1}, s{S_T1}, 3
s_sub_u32 s{S_KC}, s{S_KC}, s{S_T1}
s_mul_i32 s{S_KC}, s{S_KC}, 3
""")
        if o.l2pf:
            A(f"""
v_lshrrev_b32 v5, 3, v0
v_bfe_u32 v6, v0, 2, 1
s_lshl_b32 s{S_T0}, s{S_BP}, 3
s_lshl_b32 s{S_T1}, s{S_W}, 1
s_add_u32 s{S_T0}, s{S_T0}, s{S_T1}
v_lshl_add_u32 v6, v5, 6, v6
v_add_u32 v6, s{S_T0}, v6
v_lshlrev_b32 v6, 13, v6
v_and_b32 v7, 3, v0
v_lshl_add_u32 v{V_T}, v7, 7, v6
v_and_b32 v6, 7, v0
v_min_u32 v6, 5, v6
s_mul_i32 s{S_T0}, s{S_JL}, 24
s_mul_i32 s{S_T1}, s{S_W}, 6
s_add_u32 s{S_T0}, s{S_T0}, s{S_T1}
v_add_u32 v6, s{S_T0}, v6
v_mul_u32_u24 v6, 1152, v6
v_lshl_add_u32 v{V_T+1}, v5, 7, v6
""")
        A("s_waitcnt lgkmcnt(0)")
        self.c += srd_off(R_WQ, S_WQ, S_T5, 4718592)
        self.c += srd_off(R_X, S_X, S_T4, 884736)
        self.c += self.st("karg")
        self.push(self.job_s(0), self.job_s(1), self.job_s(2))
        self.pump(["S0"], extra=o.budget0)
        self.c += self.st("S0iss")
        A(f"""
v_and_b32 v5, 15, v0
v_xor_b32 v5, v5, v4
v_lshlrev_b32 v5, 4, v5
s_and_b32 s{S_T1}, s{S_W}, 1
s_lshl_b32 s{S_T2}, s{S_T1}, 7
v_xor_b32 v5, s{S_T2}, v5
s_mul_i32 s{S_T2}, s{S_T1}, 6144
s_lshr_b32 s{S_T3}, s{S_W}, 1
s_mul_i32 s{S_T3}, s{S_T3}, 196608
s_add_u32 s{S_T2}, s{S_T2}, s{S_T3}
v_lshl_add_u32 v6, v4, 8, s{S_T2}
""")
        for u in range(6):
            cu = (u & 3) << 6
            A(f"v_xor_b32 v7, {cu}, v5\nv_add_u32 v7, v7, v6" if cu else "v_add_u32 v7, v5, v6")
            A(f"v_add_u32 v{V_KV+u}, {u*1024}, v7")
        A(f"""
s_mul_i32 s{self.SB_KV}, s{S_W}, 6144
s_lshl_b32 s{S_T0}, s{S_BP}, 5
s_add_u32 s{S_T1}, s{S_T0}, s{S_J}
s_mul_i32 s{S_T1}, s{S_T1}, 12288
s_lshl_b32 s{S_T2}, s{S_KQ}, 2
s_add_u32 s{S_T2}, s{S_T2}, s{S_T0}
s_mul_i32 s{S_T2}, s{S_T2}, 12288
s_mul_i32 s{S_T3}, s{S_KQ}, {1024*1152}
""")
        self.c += srd_off(R_K, S_K, S_T1, 3145728)
        if o.kpos < 0:
            self.A(f"s_mov_b32 s{S_T4}, s{S_T2}\ns_mov_b32 s{S_T5}, s{S_T3}")
            self.push(self.job_k())
            self.pump(["K"])
            self.A(f"s_mov_b32 s{S_T2}, s{S_T4}\ns_mov_b32 s{S_T3}, s{S_T5}")
        if o.dg_hot:
            A(f"s_mov_b32 s{S_T2}, 0\ns_mov_b32 s{S_T3}, 0")
        self.c += srd_off(R_V, S_V, S_T2, 3145728)
        self.c += srd_off(R_WO, S_WO, S_T3, 4718592)
        self.c += common_scalars()
        A(f"""
v_and_b32 v5, 15, v0
v_lshlrev_b32 v6, 1, v4
v_xor_b32 v5, v5, v6
v_lshlrev_b32 v5, 4, v5
v_mul_u32_u24 v6, 1152, v4
s_mul_i32 s{S_T0}, s{S_W}, {16*1152}
v_add_u32 v6, s{S_T0}, v6
v_add_u32 v{V_WM}, v5, v6
v_add_u32 v{V_WM+1}, {4*1152}, v{V_WM}
v_xor_b32 v5, 128, v5
v_add_u32 v{V_WM+2}, v5, v6
v_add_u32 v{V_WM+2}, {8*1152}, v{V_WM+2}
v_add_u32 v{V_WM+3}, {4*1152}, v{V_WM+2}
v_and_b32 v5, 7, v0
v_and_b32 v6, 1, v4
v_lshlrev_b32 v6, 1, v6
v_xor_b32 v5, v5, v6
v_lshlrev_b32 v5, 4, v5
v_lshrrev_b32 v6, 3, v0
v_mul_u32_u24 v6, 1152, v6
s_lshr_b32 s{S_T1}, s{S_BP}, {o.flipbit}
s_and_b32 s{S_T1}, s{S_T1}, {1 if o.flip else 0}
s_mul_i32 s{S_F0}, s{S_T1}, {64*1152}
s_sub_u32 s{S_F1}, {64*1152}, s{S_F0}
s_lshl_b32 s{S_T2}, s{S_CQ}, 8
s_add_u32 s{S_F0}, s{S_F0}, s{S_T2}
s_add_u32 s{S_F1}, s{S_F1}, s{S_T2}
s_lshl_b32 s{S_T1}, s{S_T1}, 1
s_xor_b32 s{S_T1}, s{S_T1}, s{S_W}
s_mul_i32 s{S_T0}, s{S_T1}, {32*1152}
v_add_u32 v6, s{S_T0}, v6
v_add_u32 v{V_WE}, v5, v6
v_add_u32 v{V_WE+2}, {16*1152}, v{V_WE}
v_xor_b32 v5, 64, v5
v_add_u32 v{V_WE+1}, v5, v6
v_add_u32 v{V_WE+1}, {8*1152}, v{V_WE+1}
v_add_u32 v{V_WE+3}, {16*1152}, v{V_WE+1}
v_lshlrev_b32 v{V_LIN}, 4, v0
s_lshl_b32 s{self.SB_W}, s{S_W}, 12
s_mul_i32 s{self.SB_P0}, s{S_W}, 1536
s_mul_i32 s{self.SB_P12}, s{S_W}, 3072
v_mov_b32 v{V_ONE}, -1
v_mov_b32 v{V_ONE+1}, -1
v_mov_b32 v{V_ONE+2}, -1
v_mov_b32 v{V_ONE+3}, -1
""")
        if o.vtlb == 1:
            self.tlb_touch()
        if o.walk:
            self.c += walk_entry("Wl")
        A("Wl_begin:")
        self.barrier(["S0"])
        self.c += self.st("B0")
        if o.ldexit:
            A("s_endpgm")
        if o.kpos == 2:
            self.push(self.job_k())
        self.pump(["S1"])
        for n in range(0, 9):
            self.barrier([f"S{n+1}"] if n < 8 else ["K"])
            if n == 3:
                self.nonce_issue()
            if n + 3 <= 8:
                self.push(self.job_s(n + 3))
                if o.kpos == n + 3:
                    self.push(self.job_k())
            if n == 6:
                self.push(self.job_v(0), self.job_w(0))
            if n == 7:
                self.push(self.job_w(1), self.job_w(2))
            if n == 8:
                self.push(self.job_w(3), self.job_w(4))
            self.pump([f"S{n+2}"] if n < 7 else ["K"] if n == 7 else ["V0", "W0", "W1"])
            if o.pf2:
                if n == o.pf2:
                    self.touch_v()
                    self.touch_e()
                if n == o.pf2 + o.pfstep:
                    self.touch_w(2)
                if n == o.pf2 + 2 * o.pfstep:
                    self.touch_w(4)
            if o.vtlb == n + 2 or o.vtlb2 == n + 2:
                self.tlb_touch()
            if o.clrmode == 1 and n < 6:
                self.clear_slots([n])
        self.c += self.st("B9")
        self.nonce_check()
        self.other_rows()
        self.poll_pc()
        self.barrier(["V0", "W0", "W1"], ("B10", 1))
        if o.clrmode == 0:
            self.clear_slots()
        self.pump(["W4"])
        if o.tw5:
            self.touch_w(5)
        if not o.w5first:
            self.publish_p()
        self.barrier([])
        self.c += self.st("B11")
        if o.w5first:
            self.push(self.job_w(5))
            self.pump(["W5"])
            self.publish_p()
            self.publish_p2()
            self.barrier(["W2", "W3"], ("D1", 3))
            self.push(self.job_w(6))
            self.pump(["W6"])
            if o.earlyflag:
                self.wait_for(["pub"])
                self.flag(0)
            self.barrier(["W4", "W5"], ("D3", 5))
            if not o.earlyflag:
                self.wait_for(["pub"])
                self.flag(0)
        elif o.split:
            base = list(self.issued)
            assert not self.q
            A(f"s_cmp_ge_u32 s{S_W}, 2\ns_cbranch_scc1 L_pubs")
            self.barrier(["W2", "W3"], ("D1", 3))
            self.push(self.job_w(5, both=1))
            self.pump(["W5"])
            self.barrier(["W4", "W5"], ("D3", 5))
            A("s_branch L_pubd\nL_pubs:")
            self.issued = base
            self.publish_p2()
            self.barrier(["W2", "W3"], ("D1", 3))
            self.push(self.job_w(6, both=-1))
            self.pump(["W6"])
            if o.earlyflag:
                self.wait_for(["pub"])
                self.flag(0)
            self.barrier(["W4"], ("D3", 5))
            if not o.earlyflag:
                self.wait_for(["pub"])
                self.flag(0)
            A("L_pubd:")
        else:
            self.publish_p2()
            self.barrier(["W2", "W3"])
            self.push(self.job_w(5), self.job_w(6))
            self.pump(["W6"])
            self.wait_for(["pub"])
            self.flag(0)
            self.barrier(["W4", "W5"])
        self.c += self.st("pub")

        def needs(d):
            need = [f"W{d+1}", f"W{d+2}"]
            if d % 4 == 1:
                return need + [f"V{(d-1)//4}", f"P{(d-5)//4}b"]
            return need + [f"P{(d-3)//4}a"]
        for d in range(3, 18, 2):
            if d > 3:
                self.barrier(needs(d), {5: ("D5", 7), 7: ("D7", 9)}.get(d))
            if d == 5:
                self.c += self.st("D5")
                if o.sample:
                    self.wait_for(["smp"])
                    A(f"v_cmp_ne_u64 vcc, {sr(S_NON,2)}, v[{V_T+4}:{V_T+5}]")
                A("s_cbranch_vccz L_seen")
                keep = list(self.issued)
                self.poll("L_pollp", V_T, S_T5)
                self.issued = keep
                A("L_seen:")
                self.c += self.st("polled")
            if d in (5, 9, 13):
                self.push(self.job_p((d - 1) // 4, 0, 1, f"P{(d-1)//4}a", P_LDS))
            if d in (7, 11, 15):
                self.push(self.job_p((d - 3) // 4, 1, 2, f"P{(d-3)//4}b", P_LDS + 6144))
            for q in (d + 4, d + 5):
                if q <= 17:
                    self.push(self.job_w(q))
                if d == 3 and q == 7:
                    self.push(self.job_v(1))
            if d in (5, 9):
                self.push(self.job_v((d - 5) // 4 + 2))
            self.pump(needs(d + 2), extra=o.budget - (1 if d == 3 else 0))
            if d == 3 and not o.sample:
                self.poll("L_pollq", V_T, S_T5, tries=o.tries)
            if d == 3 and o.sample:
                A(f"buffer_load_dwordx2 v[{V_T+4}:{V_T+5}], v{V_T}, {sr(R_WS,4)}, s{S_T5} offen sc1")
                self.issued.append("smp")
            if (o.clrmode, d) in ((3, 5), (5, 7)):
                self.clear_slots()
            if d == o.expoll:
                self.extra_setup()
            if d == max(15, o.expoll):
                self.extra_loads()
        assert not self.q
        self.c += self.st("D17")
        self.extra_sum()
        self.c += self.st("edone")
        A(f"s_cmp_ge_u32 s{S_W}, 2\ns_cbranch_scc1 L_fin_l\ns_add_u32 s{S_T4}, s{S_W}, 4")
        self.c += gather_setup()
        self.c += flag_setup() + gather_flags("l", sr(S_NON, 2)) if o.ftail else gather_main("l")
        A("L_fin_l:")
        if o.stamps:
            A("s_waitcnt vmcnt(0)")
            self.c += self.st("end")
            self.c += self.st.dump(1)
        A("s_endpgm")
        return self.c

    def extra_setup(self):
        A = self.A
        A(f"""
v_lshrrev_b32 v148, 2, v0
v_lshlrev_b32 v148, 7, v148
v_and_b32 v149, 3, v0
v_lshl_add_u32 v148, v149, 3, v148
s_lshl_b32 s{S_T4}, s{S_GRP}, 7
s_add_u32 s{S_T4}, s{S_T4}, {WS_FLAG + 64}
s_mul_i32 s{S_T0}, s{S_J}, 48
s_mul_i32 s{S_T1}, s{S_W}, 12
s_add_u32 s{S_T0}, s{S_T0}, s{S_T1}
v_and_b32 v149, 15, v0
v_min_u32 v141, 11, v149
v_add_u32 v141, s{S_T0}, v141
v_lshrrev_b32 v142, 6, v141
v_and_b32 v143, 63, v141
v_mul_u32_u24 v144, 0x56, v142
v_lshrrev_b32 v144, 8, v144
v_mul_u32_u24 v145, 3, v144
v_sub_u32 v145, v142, v145
v_lshrrev_b32 v146, 1, v144
v_mul_u32_u24 v146, 48, v146
v_lshl_add_u32 v146, v145, 4, v146
v_and_b32 v147, 15, v143
v_add_u32 v146, v146, v147
v_mul_u32_u24 v150, 2304, v146
v_and_b32 v147, 1, v144
v_lshl_add_u32 v150, v147, 6, v150
v_lshrrev_b32 v147, 4, v143
v_lshl_add_u32 v150, v147, 3, v150
v_lshrrev_b32 v147, 4, v0
v_and_b32 v151, 1, v147
v_lshl_add_u32 v150, v151, 2, v150
v_lshrrev_b32 v151, 1, v147
v_lshl_add_u32 v150, v151, 5, v150
v_cmp_gt_u32 vcc, 12, v149
v_mov_b32 v151, 0x40000000
v_cndmask_b32 v150, v151, v150, vcc
s_mul_i32 s{S_EO}, s{S_BP}, {96*2304}
s_add_u32 s{S_EO}, s{S_EO}, 1024
v_mul_u32_u24 v147, {4*12288}, v147
v_lshl_add_u32 v141, v141, 4, v147
s_mul_i32 s{S_EI}, s{S_GRP}, 12288
s_add_u32 s{S_EI}, s{S_EI}, {WS_PE}
""")
        self.poll("L_polle", 148, S_T4)

    def extra_loads(self):
        for k in range(4):
            self.A(f"buffer_load_dwordx4 {vr(72+8*k,4)}, v141, {sr(R_WS,4)}, s{S_EI} offen sc1")
            self.issued.append("ex")
            if k < 3:
                self.A(f"s_add_u32 s{S_EI}, s{S_EI}, 12288")

    def extra_sum(self):
        A = self.A
        self.wait_for(["ex"])
        for k in range(4):
            self.c += unpack_add(48, 72 + 8 * k, k == 0)
        for i in range(4):
            A(f"v_permlane32_swap_b32 v{48+i}, v{52+i}")
        for i in range(4):
            A(f"v_add_f32 v{48+i}, v{48+i}, v{52+i}")
        A(f"""
v_permlane16_swap_b32 v48, v50
v_permlane16_swap_b32 v49, v51
v_add_f32 v48, v48, v50
v_add_f32 v49, v49, v51
v_cvt_pk_bf16_f32 v56, v48, v49
buffer_store_dword v56, v150, {sr(R_OUT,4)}, s{S_EO} offen {POL_OUT[0]}
""")


def unpack_add(dst, src, first):
    r = []
    for i in range(4):
        if first:
            r += L(f"v_lshlrev_b32 v{dst+2*i}, 16, v{src+i}\nv_and_b32 v{dst+2*i+1}, 0xffff0000, v{src+i}")
        else:
            r += L(f"""
v_lshlrev_b32 v{src+4}, 16, v{src+i}
v_and_b32 v{src+5}, 0xffff0000, v{src+i}
v_pk_add_f32 v[{dst+2*i}:{dst+2*i+1}], v[{dst+2*i}:{dst+2*i+1}], v[{src+4}:{src+5}]
""")
    return r


def gather_setup():
    return L(f"""
s_mul_i32 s{S_T0}, s{S_KQ}, 6
s_add_u32 s{S_T0}, s{S_T0}, s{S_T4}
s_lshl_b32 s{S_T0}, s{S_T0}, 10
s_add_u32 s{S_T1}, s{S_GRP}, s{S_JL}
s_mul_i32 s{S_T1}, s{S_T1}, 24576
s_add_u32 s{S_T0}, s{S_T0}, s{S_T1}
s_add_u32 s{S_T0}, s{S_T0}, {WS_PM}
s_cmp_ge_u32 s{S_T4}, 3
s_cselect_b32 s{S_T1}, 1, 0
s_mul_i32 s{S_T2}, s{S_T1}, 3
s_sub_u32 s{S_T2}, s{S_T4}, s{S_T2}
s_lshr_b32 s{S_T3}, s{S_KQ}, 1
s_lshl_b32 s{S_T5}, s{S_BP}, 1
s_add_u32 s{S_T3}, s{S_T3}, s{S_T5}
s_mul_i32 s{S_T3}, s{S_T3}, 48
s_lshl_b32 s{S_T2}, s{S_T2}, 4
s_add_u32 s{S_T3}, s{S_T3}, s{S_T2}
s_mul_i32 s{S_T3}, s{S_T3}, 2304
s_lshl_b32 s{S_T2}, s{S_CQ}, 8
s_add_u32 s{S_T3}, s{S_T3}, s{S_T2}
s_and_b32 s{S_T2}, s{S_KQ}, 1
s_lshl_b32 s{S_T2}, s{S_T2}, 7
s_add_u32 s{S_T3}, s{S_T3}, s{S_T2}
s_lshl_b32 s{S_T1}, s{S_T1}, 6
s_add_u32 s{S_T3}, s{S_T3}, s{S_T1}
s_add_u32 s{S_T1}, s{S_T0}, {4*24576}
s_add_u32 s{S_T2}, s{S_T0}, {8*24576}
s_add_u32 s{S_T5}, s{S_T0}, {12*24576}
v_lshlrev_b32 v9, 4, v0
v_and_b32 v10, 15, v0
v_mul_u32_u24 v10, 2304, v10
v_lshrrev_b32 v11, 4, v0
v_and_b32 v12, 1, v11
v_lshlrev_b32 v12, 5, v12
v_lshrrev_b32 v11, 1, v11
v_lshl_add_u32 v12, v11, 4, v12
v_add_u32 v10, v10, v12
""")


def gather_flags(tag, nonce):
    B = 96
    c = L(f"""
s_mov_b32 s{S_CNT}, {SPIN_MAX}
L_gf_{tag}:
buffer_load_dwordx2 v[14:15], v13, {sr(R_WS,4)}, s{S_FL} offen sc1
s_sub_u32 s{S_CNT}, s{S_CNT}, 1
s_waitcnt vmcnt(0)
v_cmp_ne_u64 vcc, {nonce}, v[14:15]
s_cbranch_vccz L_gf_{tag}d
s_cmp_lg_u32 s{S_CNT}, 0
s_cbranch_scc1 L_gf_{tag}
L_gf_{tag}d:
""")
    for k, sg in enumerate((S_T0, S_T1, S_T2, S_T5)):
        c += L(f"buffer_load_dwordx4 {vr(B+8*k,4)}, v9, {sr(R_WS,4)}, s{sg} offen sc1")
    for k in range(4):
        c += L(f"s_waitcnt vmcnt({3-k})") + unpack_add(128, B + 8 * k, k == 0)
    c += L(f"""
v_cvt_pk_bf16_f32 v136, v128, v129
v_cvt_pk_bf16_f32 v137, v130, v131
v_cvt_pk_bf16_f32 v138, v132, v133
v_cvt_pk_bf16_f32 v139, v134, v135
v_permlane16_swap_b32 v136, v138
v_permlane16_swap_b32 v137, v139
buffer_store_dwordx4 v[136:139], v10, {sr(R_OUT,4)}, s{S_T3} offen {POL_OUT[0]}
""")
    return c


def flag_setup():
    return L(f"""
s_add_u32 s{S_FL}, s{S_GRP}, s{S_J}
s_lshl_b32 s{S_FL}, s{S_FL}, 7
s_add_u32 s{S_FL}, s{S_FL}, {WS_FLAG2}
v_and_b32 v13, 3, v0
v_lshlrev_b32 v13, 3, v13
""")


def gather_main(tag):
    B = 96
    c = L(f"s_mov_b32 s{S_CNT}, {SPIN_MAX}\nL_gm_{tag}:")
    for k, s in enumerate((S_T0, S_T1, S_T2, S_T5)):
        c += L(f"buffer_load_dwordx4 {vr(B+8*k,4)}, v9, {sr(R_WS,4)}, s{s} offen sc1")
    c += L(f"""
s_sub_u32 s{S_CNT}, s{S_CNT}, 1
s_waitcnt vmcnt(2)
v_max3_u32 v13, v{B}, v{B+1}, v{B+2}
v_max3_u32 v14, v{B+3}, v{B+8}, v{B+9}
v_max3_u32 v13, v13, v{B+10}, v{B+11}
s_waitcnt vmcnt(0)
v_max3_u32 v14, v14, v{B+16}, v{B+17}
v_max3_u32 v13, v13, v{B+18}, v{B+19}
v_max3_u32 v14, v14, v{B+24}, v{B+25}
v_max3_u32 v13, v13, v{B+26}, v{B+27}
v_max_u32 v13, v13, v14
v_cmp_eq_u32 vcc, -1, v13
s_cbranch_vccz L_gm_{tag}d
s_sleep 2
s_cmp_lg_u32 s{S_CNT}, 0
s_cbranch_scc1 L_gm_{tag}
L_gm_{tag}d:
""")
    for k in range(4):
        c += unpack_add(128, B + 8 * k, k == 0)
    c += L(f"""
v_cvt_pk_bf16_f32 v136, v128, v129
v_cvt_pk_bf16_f32 v137, v130, v131
v_cvt_pk_bf16_f32 v138, v132, v133
v_cvt_pk_bf16_f32 v139, v134, v135
v_permlane16_swap_b32 v136, v138
v_permlane16_swap_b32 v137, v139
buffer_store_dwordx4 v[136:139], v10, {sr(R_OUT,4)}, s{S_T3} offen {POL_OUT[0]}
""")
    return c


X_P3, D_PA, X_LIN, X_L0 = 4, 5, 6, 7
D_VA, D_VA2, D_WA, D_WA2 = 8, 12, 16, 20
C_WA, C_XA, C_PW, C_KA = 24, 32, 35, 37
D_EA = 56
C_AF = [64, 96]
C_BF = [128, 140]
C_ACC = 160
D_OUTM, D_OUTE, D_VW, D_F01, D_F2 = 24, 72, 96, 144, 160
D_V = [176, 188]
D_P = [200, 212]
D_W = [224, 240]


def acc(t, st):
    return C_ACC + (t * 3 + st) * 4


def mfma(d, a, b, c):
    cc = "0" if c is None else vr(c, 4)
    return I(f"v_mfma_f32_16x16x32_bf16 {vr(d,4)}, {vr(a,4)}, {vr(b,4)}, {cc}")


class Compute:
    def __init__(self, o):
        self.o, self.c = o, []
        self.st = Stamper(o.stamps)
        if o.stp1:
            self.st.only = "cycA"
        if o.stp2:
            self.st.only = "cycB"
        self.slow = []
        self.tok = 0

    def A(self, s):
        self.c += L(s)

    def anchor(self, ins, after):
        self.tok += 1
        t = f"tok{self.tok}"
        after.swr = after.swr | {t}
        ins.srd = ins.srd | {t}
        return ins

    def bar(self, after=None, drain=False):
        r = L("s_waitcnt lgkmcnt(0)\ns_barrier" if drain else "s_barrier")
        for a in (after or []):
            self.anchor(r[0], a)
        return r

    def p1_reads(self, kb, s):
        r = [I(f"ds_read_b128 {vr(C_BF[s],4)}, v{C_XA+kb} offset:0")]
        for t in range(8):
            for i in range(2):
                r.append(I(f"ds_read_b64_tr_b16 {vr(C_AF[s]+4*t+2*i,2)}, v{C_WA+t} offset:{kb*16384+i*2048}"))
            if t == 0:
                r += [I(f"ds_read_b128 {vr(C_BF[s]+4*st,4)}, v{C_XA+kb} offset:{st*2048}") for st in (1, 2)]
        return r

    def p1_mfmas(self, s, first):
        return [mfma(acc(t, st), C_AF[s] + 4 * t, C_BF[s] + 4 * st, None if first else acc(t, st))
                for t in range(8) for st in range(3)]

    def kfrag(self, kt, p):
        i = p * 3 + kt
        if i < 8:
            return C_AF[0] + 4 * i
        if i < 11:
            return C_BF[0] + 4 * (i - 8)
        return 152

    def sacc(self, kt, st):
        i = st * 3 + kt
        return C_AF[1] + 4 * i if i < 8 else C_BF[1]

    def startup(self):
        o, A = self.o, self.A
        A("L_compute:")
        self.c += self.st("start")
        if o.prio_compute:
            A(f"s_setprio {o.prio_compute}")
        if o.tlb:
            MB2 = 1 << 21
            sets = [[(S_WQ, 4718592), (S_X, 884736)], [(S_K, 3145728), (S_V, 3145728)],
                    [(S_WO, 4718592), (S_OUT, 1769472)], [(S_WS, WS_USED)]]
            A("s_waitcnt lgkmcnt(0)")
            for w, st in enumerate(sets):
                if w < 3:
                    A(f"s_cmp_lg_u32 s{S_W}, {w}\ns_cbranch_scc1 L_tlb{w}")
                for ptr, size in st:
                    offs = list(range(0, size, MB2))
                    if size - 4 - offs[-1] > 4096:
                        offs.append(size - 4)
                    for off in offs:
                        A(f"s_mov_b32 s{S_T0}, {off}\ns_load_dword s3, {sr(ptr,2)}, s{S_T0}" if off else f"s_load_dword s3, {sr(ptr,2)}, 0")
                if w < 3:
                    A(f"s_branch L_tlbd\nL_tlb{w}:")
            A("L_tlbd:")
        if o.prefetch_code:
            A(f"""
s_cmp_ge_u32 s2, 8
s_cbranch_scc1 L_no_pf
s_getpc_b64 s[{S_EX}:{S_EX+1}]
L_pc:
s_sub_u32 s{S_EX}, s{S_EX}, L_pc-{NAME}
s_subb_u32 s{S_EX+1}, s{S_EX+1}, 0
s_lshl_b32 s{S_T0}, s{S_W}, 13
v_lshlrev_b32 v60, 7, v0
v_add_u32 v60, s{S_T0}, v60
v_min_u32 v60, L_end-{NAME}, v60
global_load_dword v61, v60, s[{S_EX}:{S_EX+1}]
L_no_pf:
""")
        if o.clrmode == 7:
            A("s_waitcnt lgkmcnt(0)")
            self.c += common_scalars()
            A(f"""
s_add_u32 s{S_T0}, s{S_GRP}, s{S_J}
s_mul_i32 s{S_MS}, s{S_T0}, 24576
s_mul_i32 s{S_T1}, s{S_W}, 6144
s_add_u32 s{S_MS}, s{S_MS}, s{S_T1}
s_add_u32 s{S_MS}, s{S_MS}, {WS_PM}
s_add_u32 s{S_MS+1}, s{S_MS}, 3072
v_lshlrev_b32 v{X_LIN}, 4, v0
v_mov_b32 v156, -1
v_mov_b32 v157, -1
v_mov_b32 v158, -1
v_mov_b32 v159, -1
""")
            for u in range(6):
                A(f"buffer_store_dwordx4 v[156:159], v{X_LIN}, {sr(R_WS,4)}, s{S_MS+u//3} offen offset:{(u%3)*1024} sc1")
        if o.walk:
            self.c += walk_entry("Wc")
        A(f"""
s_lshr_b32 s{S_T0}, s{S_W}, 1
s_and_b32 s{S_T1}, s{S_W}, 1
v_lshrrev_b32 v48, 4, v0
v_bfe_u32 v49, v0, 2, 2
v_and_b32 v50, 3, v0
v_and_b32 v51, 15, v0
v_and_b32 v52, 1, v48
v_lshl_or_b32 v52, v52, 2, v49
v_lshl_add_u32 v53, v48, 3, v49
v_lshlrev_b32 v54, 9, v53
v_lshl_add_u32 v54, v52, 5, v54
v_lshl_add_u32 v54, v50, 3, v54
s_lshl_b32 s{S_T2}, s{S_T1}, 8
v_add_u32 v{C_WA}, s{S_T2}, v54
""")
        for t in range(1, 8):
            A(f"v_xor_b32 v{C_WA+t}, {t<<5}, v{C_WA}")
        A(f"""
v_lshrrev_b32 v54, 1, v51
v_xor_b32 v54, v54, v48
v_lshlrev_b32 v54, 4, v54
v_lshl_add_u32 v54, v51, 7, v54
s_mul_i32 s{S_T2}, s{S_T0}, 6144
s_add_u32 s{S_T2}, s{S_T2}, 32768
v_add_u32 v{C_XA}, s{S_T2}, v54
v_xor_b32 v{C_XA+1}, 64, v{C_XA}
v_lshrrev_b32 v54, 1, v48
v_xor_b32 v54, v54, v51
v_lshlrev_b32 v54, 4, v54
v_lshl_add_u32 v54, v51, 8, v54
v_and_b32 v55, 1, v48
v_lshl_add_u32 v54, v55, 3, v54
s_mul_i32 s{S_T2}, s{S_T0}, 12288
s_add_u32 s{S_T3}, s{S_T2}, {K_LDS}
v_add_u32 v{C_KA}, s{S_T3}, v54
""")
        for pe in range(1, 8):
            A(f"v_xor_b32 v{C_KA+pe}, {pe<<5}, v{C_KA}")
        A(f"""
s_mul_i32 s{S_T3}, s{S_T0}, 3072
s_add_u32 s{S_T3}, s{S_T3}, {P_LDS}
v_lshl_add_u32 v{D_PA}, v0, 4, s{S_T3}
s_mul_i32 s{S_T3}, s{S_T1}, 6144
v_add_u32 v{C_PW}, s{S_T3}, v{D_PA}
s_lshl_b32 s{S_T3}, s{S_T1}, 3
v_add_u32 v{C_PW+1}, s{S_T3}, v{D_PA}
v_xor_b32 v54, v48, v51
v_lshlrev_b32 v54, 4, v54
v_lshl_add_u32 v54, v51, 8, v54
s_lshr_b32 s{S_T3}, s{S_BP}, {o.flipbit}
s_and_b32 s{S_T3}, s{S_T3}, {1 if o.flip else 0}
s_lshl_b32 s{S_T3}, s{S_T3}, 7
v_xor_b32 v54, s{S_T3}, v54
v_add_u32 v{D_VA}, s{S_T2}, v54
v_xor_b32 v{D_VA+1}, 64, v{D_VA}
v_xor_b32 v{D_VA+2}, 128, v{D_VA}
v_xor_b32 v{D_VA+3}, 192, v{D_VA}
v_lshlrev_b32 v54, 8, v53
v_lshl_add_u32 v54, v50, 3, v54
s_lshl_b32 s{S_T3}, s{S_T1}, 2
v_xor_b32 v55, s{S_T3}, v52
v_lshl_add_u32 v54, v55, 5, v54
v_add_u32 v{D_WA}, {W_LDS[0]}, v54
v_xor_b32 v{D_WA+1}, 32, v{D_WA}
v_xor_b32 v{D_WA+2}, 64, v{D_WA}
v_xor_b32 v{D_WA+3}, 96, v{D_WA}
v_lshlrev_b32 v54, 7, v53
v_lshl_add_u32 v54, v50, 3, v54
v_and_b32 v55, 1, v48
v_lshlrev_b32 v55, 1, v55
v_lshrrev_b32 v58, 1, v49
v_or_b32 v55, v55, v58
s_lshl_b32 s{S_T3}, s{S_T1}, 1
v_xor_b32 v55, s{S_T3}, v55
v_lshl_add_u32 v54, v55, 5, v54
v_add_u32 v{D_EA}, {W_LDS[0]}, v54
v_xor_b32 v{D_EA+1}, 32, v{D_EA}
""")
        for t in range(4):
            A(f"v_add_u32 v{D_WA2+t}, {W_LDS[3]-W_LDS[0]}, v{D_WA+t}\nv_add_u32 v{D_VA2+t}, {V_LDS[1]-V_LDS[0]}, v{D_VA+t}")
        A(f"""
v_lshlrev_b32 v{X_LIN}, 4, v0
v_mov_b32 v156, -1
v_mov_b32 v157, -1
v_mov_b32 v158, -1
v_mov_b32 v159, -1
v_cmp_eq_u32 vcc, 0, v0
v_mov_b32 v54, 0x40000000
v_cndmask_b32 v{X_L0}, v54, 0, vcc
s_mov_b32 s{S_C0}, 0x3e0293ee
s_mov_b32 s{S_C0+1}, 0x3e0293ee
s_waitcnt lgkmcnt(0)
""")
        self.c += common_scalars()
        A(f"""
s_add_u32 s{S_T0}, s{S_GRP}, s{S_J}
s_mul_i32 s{S_ES}, s{S_T0}, 12288
s_mul_i32 s{S_T1}, s{S_W}, 3072
s_add_u32 s{S_ES}, s{S_ES}, s{S_T1}
s_add_u32 s{S_ES}, s{S_ES}, {WS_PE}
s_lshl_b32 s{S_EF}, s{S_T0}, 7
s_lshl_b32 s{S_T1}, s{S_W}, 3
s_add_u32 s{S_EF}, s{S_EF}, s{S_T1}
s_add_u32 s{S_EF}, s{S_EF}, {WS_FLAG + 64}
s_mul_i32 s{S_MS}, s{S_T0}, 24576
s_mul_i32 s{S_T1}, s{S_W}, 6144
s_add_u32 s{S_MS}, s{S_MS}, s{S_T1}
s_add_u32 s{S_MS}, s{S_MS}, {WS_PM}
s_add_u32 s{S_MS+1}, s{S_MS}, 3072
""")
        if o.clrmode == 6:
            for u in range(6):
                A(f"buffer_store_dwordx4 v[156:159], v{X_LIN}, {sr(R_WS,4)}, s{S_MS+u//3} offen offset:{(u%3)*1024} sc1")
        A(f"""
s_or_b32 s{S_T0}, s2, s{S_W}
s_cmp_lg_u32 s{S_T0}, 0
s_cbranch_scc1 L_no_nonce
s_memrealtime {sr(S_NON,2)}
s_waitcnt lgkmcnt(0)
s_or_b32 s{S_NON}, s{S_NON}, 1
v_mov_b32 v62, s{S_NON}
v_mov_b32 v63, s{S_NON+1}
buffer_store_dwordx2 v[62:63], v{X_L0}, {sr(R_DBG,4)}, 0 offen sc1
L_no_nonce:
Wc_begin:
s_barrier
""")
        self.c += self.st("B0")
        self.c += self.st("cyc0")

    def softmax(self, st):
        M, R = 46 + 2 * st, (52, 54, 58)[st]
        T = M + 1
        U0, U1 = (60, 62) if st != 1 else (152, 154)
        v = [self.sacc(kt, st) + r for kt in range(3) for r in range(4)]
        s = f"""
v_max3_f32 v{M}, v{v[0]}, v{v[1]}, v{v[2]}
v_max3_f32 v{T}, v{v[3]}, v{v[4]}, v{v[5]}
v_max3_f32 v{M}, v{M}, v{v[6]}, v{v[7]}
v_max3_f32 v{T}, v{T}, v{v[8]}, v{v[9]}
v_max3_f32 v{M}, v{M}, v{v[10]}, v{v[11]}
v_max_f32 v{M}, v{M}, v{T}
"""
        for sw in ("v_permlane32_swap_b32", "v_permlane16_swap_b32"):
            s += f"v_mov_b32 v{T}, v{M}\n{sw} v{T}, v{M}\nv_max_f32 v{M}, v{M}, v{T}\n"
        s += f"v_mul_f32 v{M}, s{S_C0}, v{M}\n"
        for i in range(0, 12, 2):
            s += f"v_pk_fma_f32 {vr(v[i],2)}, {vr(v[i],2)}, {sr(S_C0,2)}, {vr(M,2)} op_sel_hi:[1,1,0] neg_lo:[0,0,1] neg_hi:[0,0,1]\n"
        for x in v:
            s += f"v_exp_f32 v{x}, v{x}\n"
        s += f"v_pk_add_f32 {vr(U0,2)}, {vr(v[0],2)}, {vr(v[2],2)}\nv_pk_add_f32 {vr(U1,2)}, {vr(v[4],2)}, {vr(v[6],2)}\n"
        s += f"v_pk_add_f32 {vr(U0,2)}, {vr(U0,2)}, {vr(v[8],2)}\nv_pk_add_f32 {vr(U1,2)}, {vr(U1,2)}, {vr(v[10],2)}\n"
        s += f"v_pk_add_f32 {vr(U0,2)}, {vr(U0,2)}, {vr(U1,2)}\nv_add_f32 v{R}, v{U0}, v{U0+1}\n"
        for sw in ("v_permlane32_swap_b32", "v_permlane16_swap_b32"):
            s += f"v_mov_b32 v{R+1}, v{R}\n{sw} v{R+1}, v{R}\nv_add_f32 v{R}, v{R}, v{R+1}\n"
        s += f"v_rcp_f32 v{R}, v{R}\n"
        for i in range(0, 12, 2):
            s += f"v_pk_mul_f32 {vr(v[i],2)}, {vr(v[i],2)}, {vr(R,2)} op_sel_hi:[1,0]\n"
        a, c2 = v[0], v[8]
        for i in range(4):
            s += f"v_cvt_pk_bf16_f32 v{a+i}, v{v[2*i]}, v{v[2*i+1]}\n"
        for i in range(2):
            s += f"v_cvt_pk_bf16_f32 v{c2+i}, v{v[8+2*i]}, v{v[9+2*i]}\n"
        wr = L(f"ds_write_b128 v{C_PW}, {vr(a,4)} offset:{st*1024}\nds_write_b64 v{C_PW+1}, {vr(c2,2)} offset:{12288+st*1024}")
        return L(s), wr

    def v_reads(self, ks, dst, buf=0):
        a = (D_VA if buf == 0 else D_VA2) + ks
        return [I(f"ds_read_b128 {vr(dst+4*kt,4)}, v{a} offset:{kt*4096}") for kt in range(3)]

    def w_reads_main(self, q, step, s):
        sl = q % 5
        base, so = (D_WA, W_LDS[sl] - W_LDS[0]) if sl < 3 else (D_WA2, W_LDS[sl] - W_LDS[3])
        return [I(f"ds_read_b64_tr_b16 {vr(D_W[s]+4*t+2*i,2)}, v{base+t} offset:{so+step*8192+i*1024}")
                for t in range(4) for i in range(2)]

    def w_reads_extra(self, q, step, s):
        so = W_LDS[q] - W_LDS[0]
        return [I(f"ds_read_b64_tr_b16 {vr(D_W[s]+4*(2*kk+t)+2*i,2)}, v{D_EA+t} offset:{so+(2*step+kk)*4096+i*512}")
                for kk in range(2) for t in range(2) for i in range(2)]

    def p_reads(self, f, s, a=D_PA):
        return [I(f"ds_read_b128 {vr(D_P[s]+4*st,4)}, v{a} offset:{f*6144+st*1024}") for st in range(3)]

    VHOLD = [D_P[0], D_P[1], D_V[0], D_V[1]]

    def step_reads(self, q, step):
        if q < 2:
            return self.w_reads_extra(q, step, step)
        pos, r4 = divmod(q - 2, 4)
        w = self.w_reads_main(q, step, step)
        if q < 4:
            return w
        v = self.v_reads(2 * (r4 & 1) + step, D_V[step], pos % 2)
        return [v[0], w[0], w[1], v[1], v[2]] + w[2:]

    def vw(self, t, kt):
        return D_VW + (t * 3 + kt) * 4

    def cvt_tile(self, t, f01, f2, h):
        r = []
        for kt in range(3):
            s = self.vw(t, kt)
            d = f01 + 2 * kt if kt < 2 else f2 + 2 * h
            r += L(f"v_cvt_pk_bf16_f32 v{d}, v{s}, v{s+1}\nv_cvt_pk_bf16_f32 v{d+1}, v{s+2}, v{s+3}")
        return r

    def finals(self, outb, fb, ps, nt, first=False):
        return [mfma(outb + (t * 3 + st) * 4, fb + 4 * t, D_P[ps] + 4 * st, None if first else outb + (t * 3 + st) * 4)
                for t in range(nt) for st in range(3)]

    def pack_store(self, a, b, soff, st, d=None):
        d = a if d is None else d
        return L(f"""
v_cvt_pk_bf16_f32 v{d}, v{a}, v{a+1}
v_cvt_pk_bf16_f32 v{d+1}, v{a+2}, v{a+3}
v_cvt_pk_bf16_f32 v{d+2}, v{b}, v{b+1}
v_cvt_pk_bf16_f32 v{d+3}, v{b+2}, v{b+3}
"""), L(f"buffer_store_dwordx4 {vr(d,4)}, v{X_LIN}, {sr(R_WS,4)}, s{soff} offen offset:{st*1024} sc1")

    def main_block(self):
        o = self.o
        b = []
        b += self.p1_reads(0, 0)
        for n in range(9):
            mA = self.p1_mfmas(0, n == 0)
            mB = self.p1_mfmas(1, False)
            b += self.p1_reads(1, 1) + mA + self.bar([mA[o.ck1]], drain=True)
            if o.stp1:
                b += [self.anchor(x, mA[-1]) for x in self.st(f"cycA{n}")]
            if n < 8:
                d = (A_SLOT[(n + 1) % 3] - A_SLOT[n % 3]) & 0xffffffff
                b += [I(f"v_add_u32 v{r}, {d}, v{r}") for r in list(range(C_WA, C_WA + 8)) + [C_XA, C_XA + 1]]
                b += self.p1_reads(0, 0)
            else:
                for p in range(4):
                    for kt in range(3):
                        for e in range(2):
                            b.append(I(f"ds_read_b64 {vr(self.kfrag(kt,p)+2*e,2)}, v{C_KA+2*p+e} offset:{kt*4096}"))
                if o.clrmode == 4:
                    for u in range(6):
                        b.append(self.anchor(I(f"buffer_store_dwordx4 v[156:159], v{X_LIN}, {sr(R_WS,4)}, s{S_MS+u//3} offen offset:{(u%3)*1024} sc1"),
                                             mB[min(23, o.clrpos + 2 * u)]))
            b += mB
        b += [self.anchor(x, mB[-1]) for x in self.st("Qdone") + self.st("cyc1")]
        qk = []
        for st in range(3):
            for p in range(4):
                a, c = acc(2 * p, st), acc(2 * p + 1, st)
                b += L(f"""
v_cvt_pk_bf16_f32 v{a}, v{a}, v{a+1}
v_cvt_pk_bf16_f32 v{a+1}, v{a+2}, v{a+3}
v_cvt_pk_bf16_f32 v{a+2}, v{c}, v{c+1}
v_cvt_pk_bf16_f32 v{a+3}, v{c+2}, v{c+3}
""")
            m = [mfma(self.sacc(kt, st), self.kfrag(kt, p), acc(2 * p, st), None if p == 0 else self.sacc(kt, st))
                 for p in range(4) for kt in range(3)]
            qk += m
            b += m
        b += self.bar(qk)
        first = []
        for ks in range(4):
            first += self.v_reads(ks, self.VHOLD[ks])
        w0 = self.step_reads(0, 0)
        b += first[0:3] + w0[0:4] + first[3:6] + w0[4:8] + first[6:12]
        if o.w5first:
            b += self.step_reads(0, 1)
        pw = []
        for st in range(3):
            sm, wr = self.softmax(st)
            b += sm + wr
            pw += wr
        b += self.bar(drain=True)
        b += self.st("Pw") + self.st("cycP")
        EF = [D_OUTM, D_OUTM + 8, D_OUTM + 16]
        late = {}
        prev = []
        for q in range(18):
            pos, r4 = divmod(q - 2, 4) if q >= 2 else (0, -1)
            vwm = []
            for step in range(2):
                if q < 2:
                    vwm.append([mfma(self.vw(2 * q + t, kt), self.VHOLD[2 * step + kk] + 4 * kt, D_W[step] + 4 * (2 * kk + t),
                                     None if (step == 0 and kk == 0) else self.vw(2 * q + t, kt))
                                for kk in range(2) for t in range(2) for kt in range(3)])
                else:
                    ks = 2 * (r4 & 1) + step
                    vb = self.VHOLD[ks] if q in (2, 3) else D_V[step]
                    vwm.append([mfma(self.vw(t, kt), vb + 4 * kt, D_W[step] + 4 * t, None if ks == 0 else self.vw(t, kt))
                                for t in range(4) for kt in range(3)])
            fin, pr = [], []
            if q == 3:
                fin, pr = self.finals(D_OUTE, EF[0], 0, 2, first=True), self.p_reads(0, 0)
            elif q == 4:
                fin = self.finals(D_OUTE, EF[1], 1, 2) + self.finals(D_OUTE, EF[2], 0, 2)
                pr = self.p_reads(1, 1) + self.p_reads(2, 0)
            elif q >= 2 and r4 == 3:
                fin, pr = self.finals(D_OUTM, D_F01, 1, 4, first=(pos == 0)), self.p_reads(0, 1)
            elif q >= 6 and r4 == 0:
                fin, pr = self.finals(D_OUTM, D_F01, 0, 4), self.p_reads(1, 0)
            elif q >= 6 and r4 == 1:
                fin, pr = self.finals(D_OUTM, D_F2, 1, 4), self.p_reads(2, 1)
            mA = vwm[0] + fin
            bpos = mA[min(o.dpos, len(mA) - 2)]
            lt = late.pop(q, [])
            if lt:
                self.anchor(lt[0], mA[min(len(mA) - 1, o.exi if q == o.exq else o.dpos - 3)])
            r1 = [] if (q == 0 and o.w5first) else self.step_reads(q, 1)
            if lt and q == o.exq and o.exi < 8:
                b += pr + lt + r1 + mA
            else:
                b += pr + r1 + lt + mA
            if q % 2 == 1:
                b += self.bar([bpos], drain=True)
            if o.stp2 and q % 2 == 1:
                b += [self.anchor(x, mA[-1]) for x in self.st(f"cycB{q}")]
            if q < 17:
                b += self.step_reads(q + 1, 0)
            else:
                b += self.p_reads(1, 0) + self.p_reads(2, 1)
            b += vwm[1]
            prev = mA + vwm[1]
            if q < 2:
                for t in range(2):
                    b += self.cvt_tile(2 * q + t, EF[q] + 4 * t, EF[2] + 4 * t, q)
            elif r4 & 1:
                for t in range(4):
                    b += self.cvt_tile(t, D_F01 + 4 * t, D_F2 + 4 * t, r4 >> 1)
            if q == 4:
                stores = []
                for st in range(3):
                    cv, sto = self.pack_store(D_OUTE + st * 4, D_OUTE + (3 + st) * 4, S_ES, st)
                    b += cv
                    stores += sto
                nv = D_OUTE + 12
                late[o.exq] = stores + L(f"buffer_load_dwordx2 {vr(nv,2)}, v{X_L0}, {sr(R_DBG,4)}, 0 offen sc1")
                late[o.exf] = L(f"s_waitcnt vmcnt(0)\nbuffer_store_dwordx2 {vr(nv,2)}, v{X_L0}, {sr(R_WS,4)}, s{S_EF} offen sc1")
        f1 = self.finals(D_OUTM, D_F01, 0, 4)
        f2 = self.finals(D_OUTM, D_F2, 1, 4)
        k = 0
        for tp in range(2):
            b += f1[6 * tp:6 * tp + 6] + f2[6 * tp:6 * tp + 6]
        b += [self.anchor(x, f2[-1]) for x in self.st("P2done") + self.st("cyc2")]
        for tp in range(2):
            for st in range(3):
                cv, sto = self.pack_store(D_OUTM + (2 * tp * 3 + st) * 4, D_OUTM + ((2 * tp + 1) * 3 + st) * 4, S_MS + tp, st)
                b += cv + sto
        return b

    def gen(self):
        o = self.o
        self.startup()
        Sched.FILL, Sched.DS_LAT, Sched.DS_SCALE, Sched.WAR_DS, Sched.WAR_MEM, Sched.MFMA_LAT = o.fill, o.dslat, o.dsscale, o.wards, o.warmem, o.mlat
        blk = schedule(self.main_block())
        print("modelled cycles:", schedule.last_time)
        self.c += blk
        self.c += self.st("stored")
        self.A(f"s_mov_b32 s{S_T4}, s{S_W}")
        if o.ftail:
            nv = D_OUTE + 12
            self.c += gather_setup() + flag_setup() + L(f"""
s_lshl_b32 s{S_EF}, s{S_W}, 2
s_add_u32 s{S_EF}, s{S_EF}, s{S_GRP}
s_add_u32 s{S_EF}, s{S_EF}, s{S_JL}
s_lshl_b32 s{S_EF}, s{S_EF}, 7
s_lshl_b32 s{S_ES}, s{S_KQ}, 3
s_add_u32 s{S_EF}, s{S_EF}, s{S_ES}
s_add_u32 s{S_EF}, s{S_EF}, {WS_FLAG2}
v_readfirstlane_b32 s{S_NON}, v{nv}
v_readfirstlane_b32 s{S_NON+1}, v{nv+1}
s_waitcnt vmcnt(0)
buffer_store_dwordx2 {vr(nv,2)}, v{X_L0}, {sr(R_WS,4)}, s{S_EF} offen sc1
""") + gather_flags("c", sr(S_NON, 2))
        else:
            self.c += gather_setup() + gather_main("c")
        if o.stamps:
            self.A("s_waitcnt vmcnt(0)")
            self.c += self.st("end")
            self.c += self.st.dump(0)
        self.A("s_endpgm")
        self.A("Wc_end:")
        return self.c


def generate(o):
    if o.w5first:
        o.split = False
    WSOFF[0] = o.wsoff
    CQROT[0] = o.cqrot
    POL_OUT[0] = o.pol_out.replace('+', ' ')
    ld, cp = Loader(o), Compute(o)
    body = finalize(prologue(o)) + finalize(ld.gen()) + finalize(cp.gen())
    if o.walk:
        body = add_stubs(body, [("Wl_begin", "L_compute", "Wl", 4, "Wl_ret"), ("Wc_begin", "Wc_end", "Wc", 4, "Wc_ret")],
                         prefix=f"{NAME}:\n")
    hdr = open("concat_heads__gqa_block_cached__gqa_block_cached__near_ridge.s.ref").read().split("\n")
    head = [l for l in hdr if l.startswith(";") and "@launch" not in l]
    s = "\n".join(head) + f"\n; @launch grid=(256,1,1) block=(512,1,1) lds={LDS_BYTES}\n"
    s += f'.amdgcn_target "amdgcn-amd-amdhsa--gfx950"\n.text\n.globl {NAME}\n.p2align 8\n.type {NAME},@function\n{NAME}:\n'
    s += text(body) + "\nL_end:\n    s_endpgm\n"
    s += f""".section .rodata,"a"
.p2align 6
.amdhsa_kernel {NAME}
  .amdhsa_next_free_vgpr 256
  .amdhsa_next_free_sgpr 102
  .amdhsa_accum_offset 256
  .amdhsa_group_segment_fixed_size 0
  .amdhsa_kernarg_size 104
  .amdhsa_user_sgpr_count 2
  .amdhsa_user_sgpr_kernarg_segment_ptr 1
  .amdhsa_system_sgpr_workgroup_id_x 1
.end_amdhsa_kernel
"""
    return s, ld.st.names, cp.st.names


if __name__ == "__main__":
    o = Opt()
    out = sys.argv[1]
    for a in sys.argv[2:]:
        k, v = a.split("=")
        cur = getattr(o, k)
        setattr(o, k, (v == "1") if isinstance(cur, bool) else type(cur)(v))
    s, ln, cn = generate(o)
    open(out, "w").write(s)
    if o.stamps:
        open(out + ".names", "w").write(repr((cn, ln, o.wsoff)))
    print("generated", out, len(s.splitlines()), "lines")
```

```python
import re


def vr(base, n=1):
    return f"v{base}" if n == 1 else f"v[{base}:{base+n-1}]"


def sr(base, n=1):
    return f"s{base}" if n == 1 else f"s[{base}:{base+n-1}]"


def rng(base, n):
    return set(range(base, base + n))


class Ins:
    __slots__ = ("text", "kind", "rd", "wr", "srcc", "swr", "srd", "note")

    def __init__(self, text, kind, rd=(), wr=(), srcc=(), swr=(), srd=(), note=None):
        self.text = text
        self.kind = kind
        self.rd = set(rd)
        self.wr = set(wr)
        self.srcc = set(srcc)
        self.swr = set(swr)
        self.srd = set(srd)
        self.note = note


_VRE = re.compile(r"v\[(\d+):(\d+)\]|\bv(\d+)\b")
_SRE = re.compile(r"s\[(\d+):(\d+)\]|\bs(\d+)\b|\b(vcc|m0|exec)\b")


def vregs(s):
    out = set()
    for m in _VRE.finditer(s):
        if m.group(1) is not None:
            out |= set(range(int(m.group(1)), int(m.group(2)) + 1))
        else:
            out.add(int(m.group(3)))
    return out


def sregs(s):
    out = set()
    for m in _SRE.finditer(s):
        if m.group(1) is not None:
            out |= {f"s{i}" for i in range(int(m.group(1)), int(m.group(2)) + 1)}
        elif m.group(3) is not None:
            out.add(f"s{m.group(3)}")
        else:
            out.add(m.group(4))
    return out


TRANS = ("v_exp_f32", "v_log_f32", "v_rcp_f32", "v_rsq_f32", "v_sqrt_f32")


def split_ops(rest):
    ops, depth, cur = [], 0, ""
    for ch in rest:
        if ch == "[":
            depth += 1
        if ch == "]":
            depth -= 1
        if ch == "," and depth == 0:
            ops.append(cur.strip())
            cur = ""
        else:
            cur += ch
    ops.append(cur.strip())
    return ops


def I(text):
    t = text.strip()
    if t.endswith(":"):
        return Ins(t, "label")
    mn, _, rest = t.partition(" ")
    ops = split_ops(rest) if rest else []
    if mn.startswith("v_mfma"):
        d, a, b, c = ops[0], ops[1], ops[2], ops[3]
        return Ins(t, "mfma", rd=vregs(a) | vregs(b), wr=vregs(d), srcc=vregs(c))
    if mn.startswith("ds_read"):
        return Ins(t, "dsr", rd=vregs(ops[1]), wr=vregs(ops[0]))
    if mn.startswith("ds_append"):
        return Ins(t, "dsr", wr=vregs(rest))
    if mn.startswith("ds_write") or mn.startswith("ds_add"):
        return Ins(t, "dsw", rd=vregs(rest))
    if mn.startswith("buffer_load") or mn.startswith("global_load"):
        if " lds" in t:
            return Ins(t, "vmem", rd=vregs(rest), srd=sregs(rest) | {"m0"})
        return Ins(t, "vmem", rd=vregs(",".join(ops[1:])), wr=vregs(ops[0]), srd=sregs(rest), note="load")
    if mn.startswith("buffer_store") or mn.startswith("global_store") or mn.startswith("buffer_atomic") or mn.startswith("global_atomic"):
        return Ins(t, "vmem", rd=vregs(rest), srd=sregs(rest), note="store")
    if mn == "buffer_wbl2":
        return Ins(t, "vmem")
    if mn == "s_barrier":
        return Ins(t, "bar")
    if mn == "s_waitcnt":
        return Ins(t, "wait")
    if mn == "s_nop":
        return Ins(t, "nop")
    if mn.startswith("s_load") or mn.startswith("s_mem") or mn.startswith("s_buffer_load"):
        return Ins(t, "smem", swr=sregs(ops[0]), srd=sregs(",".join(ops[1:])))
    if mn.startswith("s_"):
        if mn.startswith(("s_cmp", "s_cbranch", "s_branch", "s_sleep", "s_setprio", "s_endpgm", "s_bitcmp")):
            return Ins(t, "salu", srd=sregs(rest))
        swr = sregs(ops[0]) if ops else set()
        if "saveexec" in mn:
            swr |= {"exec"}
        return Ins(t, "salu", swr=swr, srd=sregs(",".join(ops[1:])))
    if mn.startswith("v_"):
        if mn.startswith("v_permlane"):
            rw = vregs(rest)
            return Ins(t, "perm", rd=rw, wr=rw)
        if mn.startswith(("v_readfirstlane", "v_readlane")):
            return Ins(t, "rdlane", rd=vregs(ops[1]), swr=sregs(ops[0]), srd=sregs(",".join(ops[2:])))
        if mn.startswith("v_cmp"):
            return Ins(t, "valu", rd=vregs(",".join(ops[1:])), swr=sregs(ops[0]), srd=sregs(",".join(ops[1:])))
        wr = vregs(ops[0])
        rd = vregs(",".join(ops[1:]))
        srd = sregs(",".join(ops[1:]))
        if mn.startswith(("v_fmac", "v_pk_fmac")):
            rd |= wr
        kind = "valu"
        if mn.replace("_e32", "").replace("_e64", "") in TRANS:
            kind = "trans"
        if "dpp" in mn or "row_" in t or "quad_perm" in t:
            kind = "dpp"
            rd |= wr
        return Ins(t, kind, rd=rd, wr=wr, srd=srd)
    raise ValueError("unknown instruction: " + t)


def states(ins):
    if ins.kind == "nop":
        return int(ins.text.split()[1], 0) + 1
    if ins.kind == "label":
        return 0
    return 1


VALU_KINDS = ("valu", "trans", "perm", "dpp", "rdlane")


def need_gap(p, c):
    n = 0
    if p.kind == "mfma":
        big = "32x32" in p.text
        d = 12 if big else 8
        if c.kind == "mfma":
            if c.rd & p.wr:
                n = max(n, d)
            if c.srcc & p.wr and c.srcc != p.wr:
                n = max(n, 10 if big else 6)
            if (c.wr & p.wr) and not (c.srcc == p.wr):
                n = max(n, d)
        else:
            if (c.rd | c.wr) & p.wr:
                n = max(n, d)
            if c.kind in VALU_KINDS and c.wr & p.srcc:
                n = max(n, 7 if big else 3)
    if p.kind in VALU_KINDS:
        if c.kind == "mfma" and (c.rd | c.srcc) & p.wr:
            n = max(n, 2)
        if c.kind in ("perm", "dpp") and c.rd & p.wr:
            n = max(n, 2)
        if c.kind == "rdlane" and c.rd & p.wr:
            n = max(n, 1)
        if p.kind == "trans" and c.kind in VALU_KINDS and c.kind != "trans" and c.rd & p.wr:
            n = max(n, 1)
        if p.kind == "trans" and c.kind == "trans" and c.rd & p.wr:
            n = max(n, 1)
        if p.swr:
            if c.kind == "vmem" and c.srd & p.swr:
                n = max(n, 5)
            if c.kind in VALU_KINDS and c.srd & p.swr:
                n = max(n, 4 if c.kind == "rdlane" else 2)
            if c.kind in ("salu", "smem") and c.srd & p.swr:
                n = max(n, 1)
    if p.kind == "salu" and "m0" in p.swr and c.kind == "vmem" and "m0" in c.srd:
        n = max(n, 1)
    if p.kind == "vmem" and p.note == "store" and ("x4" in p.text or "x3" in p.text):
        if c.wr & p.rd:
            n = max(n, 2)
    return n


def finalize(stream, auto_lgkm=True, age=0):
    out = []
    pend = []
    smem_out = False

    def emit(x):
        out.append(x)

    for ins in stream:
        if ins.kind == "wait":
            m = re.search(r"lgkmcnt\((\d+)\)", ins.text)
            if m:
                n = int(m.group(1))
                if n == 0:
                    pend = []
                    smem_out = False
                elif not smem_out:
                    pend = pend[len(pend) - n:] if n < len(pend) else pend
        elif auto_lgkm:
            touch = ins.rd | ins.wr | ins.srcc
            last = -1
            for i, (k, w, _) in enumerate(pend):
                if w & touch:
                    last = i
            if last >= 0:
                while age and last + 1 < len(pend) and len(out) - pend[last + 1][2] >= age:
                    last += 1
                n = len(pend) - 1 - last
                if smem_out:
                    n = 0
                n = min(n, 15)
                emit(I(f"s_waitcnt lgkmcnt({n})"))
                pend = pend[len(pend) - n:] if n > 0 else []
                if n == 0:
                    smem_out = False
        if ins.kind not in ("label",):
            gap = 0
            need = 0
            for p in reversed(out):
                if gap >= 20:
                    break
                r = need_gap(p, ins)
                if r > gap:
                    need = max(need, r - gap)
                gap += states(p)
            while need > 0:
                k = min(need, 16)
                emit(I(f"s_nop {k-1}"))
                need -= k
        emit(ins)
        if ins.kind == "dsr":
            pend.append(("r", set(ins.wr), len(out)))
        elif ins.kind == "dsw":
            pend.append(("w", set(), len(out)))
        elif ins.kind == "smem":
            smem_out = True
            pend.append(("s", set(), len(out)))
    return out


def interleave(main, fill, per_gap=2, start=0, lead=0):
    out = []
    fill = list(fill)
    for _ in range(lead):
        if fill:
            out.append(fill.pop(0))
    for i, m in enumerate(main):
        out.append(m)
        if i >= start:
            k = per_gap[i] if isinstance(per_gap, (list, tuple)) else per_gap
            for _ in range(k):
                if fill:
                    out.append(fill.pop(0))
    out += fill
    return out


def text(stream):
    return "\n".join(("" if i.kind == "label" else "    ") + i.text for i in stream)


import subprocess, tempfile, os


def sizes_of(stream, prefix=""):
    src = '.amdgcn_target "amdgcn-amd-amdhsa--gfx950"\n.text\n' + prefix + text(stream) + "\nL_end:\n s_endpgm\n"
    d = tempfile.mkdtemp()
    open(d + "/a.s", "w").write(src)
    r = subprocess.run(["clang", "-x", "assembler", "-target", "amdgcn-amd-amdhsa", "-mcpu=gfx950",
                        "-c", d + "/a.s", "-o", d + "/a.o"], capture_output=True, text=True)
    assert r.returncode == 0, r.stderr
    r = subprocess.run(["llvm-objdump", "-d", "--mcpu=gfx950", d + "/a.o"], capture_output=True, text=True)
    addrs = [int(m.group(1), 16) for m in re.finditer(r"// ([0-9A-F]{12}):", r.stdout)]
    sz = [b - a for a, b in zip(addrs, addrs[1:])]
    out, k = [], 0
    for ins in stream:
        if ins.kind == "label":
            out.append(0)
        else:
            out.append(sz[k])
            k += 1
    assert k == len(sz), (k, len(sz))
    return out


def add_stubs(stream, regions, prefix="", smart=True, align=0, stubs_on=True):
    tmp = list(stream)
    for (_, _, tag, nw, _) in regions:
        tmp += [I(f"{tag}_w{w}:") for w in range(nw)]
    sz = sizes_of(tmp, prefix)[:len(stream)]
    n = len(stream)
    load = [0] * n
    i = 0
    while i < n:
        j = i
        while j < n and stream[j].kind != "mfma":
            j += 1
        cnt = sum(1 for k in range(i, j) if stream[k].kind != "label")
        for k in range(i, min(j + 1, n)):
            load[k] = cnt
        i = j + 1
    out, off, cur, have = [], 0, None, -1
    stubs = {r[2]: [] for r in regions}
    plan = -1
    add_stubs.mis = [0, 0]
    for idx, (ins, s) in enumerate(zip(stream, sz)):
        if ins.kind == "label":
            nm = ins.text[:-1]
            for r in regions:
                if nm == r[0]:
                    cur = r
                if nm == r[1]:
                    cur = None
            out.append(ins)
            continue
        if cur is not None and stubs_on and smart == 2 and off // 64 != have and plan < idx:
            end = (off // 64 + 1) * 64
            best, o2, k = None, off, idx
            while k < n and o2 + 4 <= end:
                if stream[k].kind == "label":
                    if stream[k].text[:-1] == cur[1]:
                        break
                elif (sz[k] == 8 and o2 % 8 == 4) or (sz[k] == 4 and o2 % 8 == 0 and not (k + 1 < n and sz[k + 1] == 4)):
                    best = k
                    break
                o2 += sz[k]
                k += 1
            plan = idx if best is None else best
        if cur is not None and stubs_on and off // 64 != have and plan < idx:
            end = (off // 64 + 1) * 64
            best, o2, k = idx, off, idx
            while smart and k < n and o2 + 4 <= end:
                if stream[k].kind == "label":
                    if stream[k].text[:-1] == cur[1]:
                        break
                elif load[k] < load[best]:
                    best = k
                o2 += sz[k]
                k += 1
            plan = best
        if cur is not None and plan == idx:
            st = Ins("", "salu")
            lab = Ins("", "label")
            out += [lab, st]
            stubs[cur[2]].append((lab, st))
            have = off // 64
            off += 4
        if align and cur is not None and s == 8 and off % 8 == 4:
            out.append(I("s_nop 0"))
            off += 4
        if s == 8:
            add_stubs.mis[off % 8 == 4] += 1
        out.append(ins)
        off += s
    for (_, _, tag, nw, ret) in (regions if stubs_on else []):
        ss = stubs[tag]
        per = -(-len(ss) // nw)
        for i, (lab, st) in enumerate(ss):
            lab.text = f"{tag}_w{i//per}:" if i % per == 0 else f"{tag}_s{i}:"
        for i, (lab, st) in enumerate(ss):
            last = (i + 1) % per == 0 or i + 1 == len(ss)
            st.text = f"s_cbranch_execz {ret if last else ss[i+1][0].text[:-1]}"
        assert (len(ss) - 1) // per == nw - 1
    return out


class Sched:
    FILL = 5
    DS_LAT = 120
    MFMA_LAT = 36
    WAR_MEM = 160
    WAR_DS = 40
    DS_SCALE = 1.15


def ds_cost(ins):
    t = ins.text
    if "b128" in t:
        c = 4 if ins.kind == "dsr" else 8
    elif "b64" in t:
        c = 2 if ins.kind == "dsr" else 4
    else:
        c = 2
    return c * 4 * Sched.DS_SCALE


def schedule(block, P=Sched):
    n = len(block)
    succ = [[] for _ in range(n)]
    npred = [0] * n
    lastw, readers = {}, {}
    chain_prev = None

    def edge(a, b, lat):
        succ[a].append((b, lat))
        npred[b] += 1

    def lat_raw(p, c):
        if p.kind == "dsr":
            return P.DS_LAT
        if p.kind == "mfma":
            if c.kind == "mfma" and c.srcc == p.wr and not (c.rd & p.wr):
                return 16
            return P.MFMA_LAT
        if p.kind == "trans":
            return 12
        if c.kind in ("mfma", "perm", "dpp"):
            return 12
        return 4

    for i, ins in enumerate(block):
        rds = {("v", r) for r in ins.rd | ins.srcc} | {("s", r) for r in ins.srd}
        wrs = {("v", r) for r in ins.wr} | {("s", r) for r in ins.swr}
        if ins.kind == "salu":
            mn = ins.text.split()[0]
            if mn.startswith(("s_cbranch_scc", "s_cselect", "s_addc", "s_subb")):
                rds.add(("s", "scc"))
            if mn.startswith("s_cbranch_vcc"):
                rds.add(("s", "vcc"))
            if not mn.startswith(("s_mov", "s_cbranch", "s_branch", "s_cselect", "s_sleep", "s_setprio", "s_mul")):
                wrs.add(("s", "scc"))
        seen = {}
        for r in rds:
            if r in lastw:
                p = lastw[r]
                seen[p] = max(seen.get(p, 0), lat_raw(block[p], ins))
        for r in wrs:
            if r in lastw:
                p = lastw[r]
                pl = block[p]
                l = 4
                if pl.kind == "mfma" and not (ins.kind == "mfma" and ins.srcc == pl.wr):
                    l = P.MFMA_LAT
                if pl.kind == "dsr":
                    l = P.DS_LAT
                seen[p] = max(seen.get(p, 0), l)
            for p in readers.get(r, ()):
                if p != i:
                    l = 1
                    if block[p].kind == "mfma":
                        l = 16 if r[1] in block[p].srcc else (P.WAR_DS if ins.kind == "dsr" else 1)
                    if block[p].kind in ("dsr", "dsw", "vmem") and r[0] == "v":
                        l = P.WAR_MEM
                    seen[p] = max(seen.get(p, 0), l)
        is_chain = ins.kind in ("dsr", "dsw", "vmem", "bar", "label", "wait", "smem") or ins.note == "chain" \
            or (ins.kind == "salu" and ins.text.startswith(("s_cbranch", "s_branch")))
        if is_chain:
            if chain_prev is not None:
                seen[chain_prev] = max(seen.get(chain_prev, 0), 0)
            chain_prev = i
        for p, l in seen.items():
            edge(p, i, l)
        for r in wrs:
            lastw[r] = i
            readers[r] = []
        for r in rds:
            readers.setdefault(r, []).append(i)
    prio = [0] * n
    for i in range(n - 1, -1, -1):
        own = 16 if block[i].kind == "mfma" else 4
        prio[i] = own + max([l + prio[j] for j, l in succ[i]], default=0)
    ready_t = [0] * n
    avail = [i for i in range(n) if npred[i] == 0]
    t, pipe, lds = 0, 0, 0
    out = []
    while avail:
        cand = [i for i in avail if ready_t[i] <= t]
        mf = [i for i in cand if block[i].kind == "mfma"]
        pick = None
        if mf and pipe <= t + 1:
            pick = min(mf)
        else:
            ot = [i for i in cand if block[i].kind != "mfma" and not (block[i].kind in ("dsr", "dsw") and lds > t)]
            if ot:
                pick = max(ot, key=lambda i: (prio[i], -i))
                if mf and block[pick].kind != "label" and pipe <= t + 2:
                    pick = min(mf)
        if pick is None:
            nxt = [ready_t[i] for i in avail if ready_t[i] > t]
            if mf:
                nxt.append(pipe)
            if any(block[i].kind in ("dsr", "dsw") for i in cand):
                nxt.append(int(lds) + 1)
            t = max(t + 1, min(nxt))
            continue
        ins = block[pick]
        if ins.kind == "mfma":
            t = max(t, pipe)
            pipe = t + 16
            cost = 4
        elif ins.kind == "label":
            cost = 0
        elif ins.kind == "trans":
            cost = P.FILL + 4
        else:
            cost = P.FILL
        if ins.kind in ("dsr", "dsw"):
            lds = max(lds, t) + ds_cost(ins)
        out.append(ins)
        avail.remove(pick)
        for j, l in succ[pick]:
            ready_t[j] = max(ready_t[j], t + max(l, 0))
            npred[j] -= 1
            if npred[j] == 0:
                avail.append(j)
        t += cost
    assert len(out) == n
    schedule.last_time = t
    return out
```

```python
import sys
from asmlib import *

NAME = "concat_heads__gqa_block_cached__gqa_block_cached__near_ridge_kernel"


class Opt:
    stamps = False
    stp1 = False
    stp2 = False
    ldexit = False
    walk = False
    refresh = 5
    rot = 2
    rotoff = 5
    kpos = -1
    budget = 11
    budget1 = 11
    budget0 = 99
    flip = True
    cqrot = 1
    w5first = False
    earlyflag = True
    exq = 5
    exi = 10
    exf = 9
    expoll = 13
    inblk = True
    own = True
    fill = 5
    dslat = 120
    dsscale = 1.15
    wards = 8
    warmem = 160
    mlat = 56
    ck1 = 22
    dpos = 13
    age = 24
    gsleep = 0
    fbar = False
    lfirst = 0
    prio_loader = 0
    prio_compute = 0


SLOT = 45056
A_SLOT = [0, SLOT, 2 * SLOT]
K_LDS = 3 * SLOT
P_LDS = K_LDS
V_LDS = [0, 110592]
W_LDS = [24576, 45056, 61440, 77824, 94208]
LDS_BYTES = 163840

WS_P = 0
WS_PM = 256 * 18432
WS_PE = WS_PM + 256 * 24576
WS_FLAG = WS_PE + 256 * 12288
WS_FLAG2 = WS_FLAG + 256 * 128
WS_STAMP = WS_FLAG2 + 256 * 128
OWN_LDS = 0
WS_USED = WS_STAMP + 256 * 512

S_X, S_K, S_V, S_WQ, S_WO = 4, 6, 8, 10, 12
S_OUT, S_DBG, S_WS = 14, 16, 18
R_X, R_WQ, R_K, R_V, R_WO, R_WS, R_OUT, R_DBG = 20, 24, 28, 32, 36, 40, 44, 48
S_BR, S_KQ, S_BP, S_JL, S_J, S_CQ, S_W, S_KC = 52, 53, 54, 55, 56, 57, 58, 59
S_T0, S_T1, S_T2, S_T3, S_T4, S_T5 = 60, 61, 62, 63, 64, 65
S_NON = 66
S_GRP = 68
S_CNT = 69
S_EX = 70
S_EI, S_EO = 70, 71
S_C0 = 72
S_ES, S_EF, S_MS = 74, 75, 100
S_F0, S_F1 = 4, 5
S_GI = 6
S_GO, S_FL, S_MF = 10, 11, 12
S_ST = 76
NSTAMP = 12
SPIN_MAX = 200000


def L(s):
    return [I(x) for x in s.strip().split("\n") if x.strip()]


class Stamper:
    def __init__(self, on):
        self.on, self.n, self.names, self.only = on, 0, [], None

    def __call__(self, name):
        if not self.on or (self.only and not name.startswith(self.only) and name not in ("start", "cyc0")):
            return []
        assert self.n < NSTAMP
        r = S_ST + 2 * self.n
        self.n += 1
        self.names.append(name)
        return [I(f"{'s_memtime' if name.startswith('cyc') else 's_memrealtime'} {sr(r,2)}")]

    def dump(self, role):
        if not self.on:
            return []
        tag = "cl"[role]
        o = L(f"""
s_cmp_lg_u32 s{S_W}, 0
s_cbranch_scc1 L_nostamp_{tag}
s_waitcnt lgkmcnt(0)
s_lshl_b32 s{S_T0}, s2, 9
s_add_u32 s{S_T0}, s{S_T0}, {WS_STAMP + role*256}
v_mov_b32 v1, 0
s_mov_b64 exec, 1
""")
        for i in range(self.n):
            o += L(f"""
v_mov_b32 v2, s{S_ST+2*i}
v_mov_b32 v3, s{S_ST+2*i+1}
buffer_store_dwordx2 v[2:3], v1, {sr(R_WS,4)}, s{S_T0} offen offset:{8*i}
s_nop 1
""")
        o += L(f"s_mov_b64 exec, -1\nL_nostamp_{tag}:")
        return o


def srd(r, ptr, size):
    return L(f"""
s_mov_b32 s{r}, s{ptr}
s_and_b32 s{r+1}, s{ptr+1}, 0xffff
s_mov_b32 s{r+2}, {size}
s_mov_b32 s{r+3}, 0x20000
""")


def srd_off(r, ptr, soff, total):
    return L(f"""
s_add_u32 s{r}, s{ptr}, s{soff}
s_addc_u32 s{r+1}, s{ptr+1}, 0
s_and_b32 s{r+1}, s{r+1}, 0xffff
s_sub_u32 s{r+2}, {total}, s{soff}
s_mov_b32 s{r+3}, 0x20000
""")


def walk_entry(tag):
    c = L("s_mov_b64 exec, 0")
    for w in range(3):
        c += L(f"s_cmp_eq_u32 s{S_W}, {w}\ns_cbranch_scc1 {tag}_w{w}")
    c += L(f"s_branch {tag}_w3\n{tag}_ret:\ns_mov_b64 exec, -1")
    return c


def prologue(o):
    return L(f"""
s_and_b32 s{S_T0}, s2, 7
s_lshr_b32 s{S_BR}, s{S_T0}, 2
s_mul_i32 s{S_T1}, s{S_BR}, 40
s_load_dwordx8 s[4:11], s[0:1], s{S_T1}
s_load_dwordx2 s[12:13], s[0:1], s{S_T1} offset:32
s_load_dwordx2 s[14:15], s[0:1], 80
s_load_dwordx4 s[16:19], s[0:1], 88
s_cmp_ge_u32 s2, 256
s_cbranch_scc1 L_end
v_lshrrev_b32 v1, 6, v0
s_and_b32 s{S_KQ}, s{S_T0}, 3
s_lshr_b32 s{S_T2}, s2, 3
v_readfirstlane_b32 s{S_W}, v1
s_lshr_b32 s{S_BP}, s{S_T2}, 2
s_and_b32 s{S_JL}, s{S_T2}, 3
s_lshl_b32 s{S_J}, s{S_KQ}, 2
s_add_u32 s{S_J}, s{S_J}, s{S_JL}
v_and_b32 v0, 63, v0
s_cmp_lt_u32 s{S_W}, 4
s_cbranch_scc1 L_compute
""")


def common_scalars(o):
    return L(f"""
s_mul_i32 s{S_CQ}, s{S_BP}, {o.cqrot}
s_add_u32 s{S_CQ}, s{S_JL}, s{S_CQ}
s_and_b32 s{S_CQ}, s{S_CQ}, 3
s_lshl_b32 s{S_GRP}, s{S_BR}, 3
s_add_u32 s{S_GRP}, s{S_GRP}, s{S_BP}
s_lshl_b32 s{S_GRP}, s{S_GRP}, 4
s_mul_i32 s{S_T0}, s{S_BR}, 1152
""") + srd_off(R_OUT, S_OUT, S_T0, 1769472) + srd(R_WS, S_WS, WS_USED) + srd(R_DBG, S_DBG, 256)


def gather_scalars(o, m):
    c = L(f"""
s_add_u32 s{S_T0}, s{S_GRP}, s{S_JL}
s_lshl_b32 s{S_T0}, s{S_T0}, 2
s_add_u32 s{S_T0}, s{S_T0}, s{S_KQ}
s_mul_i32 s{S_T0}, s{S_T0}, 6
s_add_u32 s{S_T0}, s{S_T0}, s{m}
s_lshl_b32 s{S_T0}, s{S_T0}, 10
s_add_u32 s{S_T0}, s{S_T0}, {WS_PM}
""")
    for k in range(4):
        if o.own:
            if k < 3:
                c += L(f"""
s_add_u32 s{S_T1}, s{S_KQ}, {k+1}
s_and_b32 s{S_T1}, s{S_T1}, 3
s_mul_i32 s{S_T1}, s{S_T1}, {4*24576}
s_add_u32 s{S_GI+k}, s{S_T0}, s{S_T1}
""")
            else:
                c += L(f"s_lshl_b32 s{S_GI+3}, s{m}, 10")
        else:
            c += L(f"s_add_u32 s{S_GI+k}, s{S_T0}, {k*4*24576}")
    return c + L(f"""
s_cmp_ge_u32 s{m}, 3
s_cselect_b32 s{S_T1}, 1, 0
s_mul_i32 s{S_T2}, s{S_T1}, 3
s_sub_u32 s{S_T2}, s{m}, s{S_T2}
s_lshr_b32 s{S_T3}, s{S_KQ}, 1
s_lshl_b32 s{S_T0}, s{S_BP}, 1
s_add_u32 s{S_T3}, s{S_T3}, s{S_T0}
s_mul_i32 s{S_T3}, s{S_T3}, 48
s_lshl_b32 s{S_T2}, s{S_T2}, 4
s_add_u32 s{S_T3}, s{S_T3}, s{S_T2}
s_mul_i32 s{S_T3}, s{S_T3}, 2304
s_lshl_b32 s{S_T2}, s{S_CQ}, 8
s_add_u32 s{S_T3}, s{S_T3}, s{S_T2}
s_and_b32 s{S_T2}, s{S_KQ}, 1
s_lshl_b32 s{S_T2}, s{S_T2}, 7
s_add_u32 s{S_T3}, s{S_T3}, s{S_T2}
s_lshl_b32 s{S_T1}, s{S_T1}, 6
s_add_u32 s{S_GO}, s{S_T3}, s{S_T1}
s_add_u32 s{S_FL}, s{S_GRP}, s{S_J}
s_lshl_b32 s{S_FL}, s{S_FL}, 7
s_add_u32 s{S_FL}, s{S_FL}, {WS_FLAG2}
""")


def gather_lanes(o, vout, vfl):
    c = L(f"""
v_and_b32 v{vout}, 15, v0
v_mul_u32_u24 v{vout}, 2304, v{vout}
v_bfe_u32 v{vout+1}, v0, 4, 1
v_lshl_add_u32 v{vout}, v{vout+1}, 5, v{vout}
v_lshrrev_b32 v{vout+1}, 5, v0
v_lshl_add_u32 v{vout}, v{vout+1}, 4, v{vout}
v_and_b32 v{vfl}, 3, v0
""")
    if o.own:
        c += L(f"v_min_u32 v{vfl}, 2, v{vfl}\nv_add3_u32 v{vfl}, v{vfl}, s{S_KQ}, 1\nv_and_b32 v{vfl}, 3, v{vfl}")
    return c + L(f"v_lshlrev_b32 v{vfl}, 3, v{vfl}")


def unpack_add(dst, src, first, t):
    r = []
    for i in range(4):
        if first:
            r += L(f"v_lshlrev_b32 v{dst+2*i}, 16, v{src+i}\nv_and_b32 v{dst+2*i+1}, 0xffff0000, v{src+i}")
        else:
            tt = t + 2 * (i & 1)
            r += L(f"""
v_lshlrev_b32 v{tt}, 16, v{src+i}
v_and_b32 v{tt+1}, 0xffff0000, v{src+i}
v_pk_add_f32 v[{dst+2*i}:{dst+2*i+1}], v[{dst+2*i}:{dst+2*i+1}], v[{tt}:{tt+1}]
""")
    return r


GB = 96


def gather_main(o, label, vlin, vout, vfl):
    c = []
    n = 3 if o.own else 4
    if o.own:
        c += L(f"v_add_u32 v{GB+24}, s{S_GI+3}, v{vlin}\nds_read_b128 {vr(GB+12,4)}, v{GB+24} offset:{OWN_LDS}")
        c += unpack_add(GB + 16, GB + 12, True, GB + 24)
    c += L(f"""
s_mov_b32 s{S_CNT}, {SPIN_MAX}
{label}:
buffer_load_dwordx2 {vr(GB+28,2)}, v{vfl}, {sr(R_WS,4)}, s{S_FL} offen sc1
s_sub_u32 s{S_CNT}, s{S_CNT}, 1
s_waitcnt vmcnt(0)
v_cmp_ne_u64 vcc, {sr(S_NON,2)}, {vr(GB+28,2)}
s_cbranch_vccz {label}d
{f's_sleep {o.gsleep}' if o.gsleep else ''}
s_cmp_lg_u32 s{S_CNT}, 0
s_cbranch_scc1 {label}
{label}d:
""")
    for k in range(n):
        c += L(f"buffer_load_dwordx4 {vr(GB+4*k,4)}, v{vlin}, {sr(R_WS,4)}, s{S_GI+k} offen sc1")
    for k in range(n):
        c += L(f"s_waitcnt vmcnt({n-1-k})") + unpack_add(GB + 16, GB + 4 * k, k == 0 and not o.own, GB + 24)
    s = GB + 16
    return c + L(f"""
v_cvt_pk_bf16_f32 v{GB}, v{s}, v{s+1}
v_cvt_pk_bf16_f32 v{GB+1}, v{s+2}, v{s+3}
v_cvt_pk_bf16_f32 v{GB+2}, v{s+4}, v{s+5}
v_cvt_pk_bf16_f32 v{GB+3}, v{s+6}, v{s+7}
v_permlane16_swap_b32 v{GB}, v{GB+2}
v_permlane16_swap_b32 v{GB+1}, v{GB+3}
buffer_store_dwordx4 {vr(GB,4)}, v{vout}, {sr(R_OUT,4)}, s{S_GO} offen
""")


V_WQ = 8
V_XO = 16
V_KV = 19
V_WM = 25
V_WE = 29
V_LIN = 33
V_T = 34
V_FL = 60
V_SV = 66
V_W2 = 140
V_EA, V_MO, V_MF = 144, 156, 158


class Loader:
    SB_WQ, SB_X, SB_KV, SB_W, SB_P0, SB_P12 = 72, 73, 74, 75, 100, 101

    def __init__(self, o):
        self.o, self.c, self.issued, self.q = o, [], [], []
        self.st = Stamper(o.stamps)

    def A(self, s):
        self.c += L(s)

    def wait_for(self, tags):
        last = max([i for i, t in enumerate(self.issued) if t in tags], default=-1)
        if last < 0:
            return
        self.A(f"s_waitcnt vmcnt({len(self.issued) - 1 - last})")
        self.issued = self.issued[last + 1:]

    def barrier(self, tags):
        self.wait_for(tags)
        self.A("s_barrier")

    def push(self, *jobs):
        for tag, setup, items in jobs:
            self.q.append([tag, setup, list(items)])

    def pump(self, need, extra):
        while self.q:
            tag, setup, items = self.q[0]
            if any(j[0] in need for j in self.q):
                n = len(items)
            else:
                last = max([i for i, t in enumerate(self.issued) if t in need], default=-1)
                n = min(len(items), extra - (len(self.issued) - 1 - last))
                if n <= 0:
                    break
            if setup:
                self.A(setup)
            prev = None
            for (rsrc, pol, base, lds, voff, soff, half) in items[:n]:
                self.A("s_addk_i32 m0, 0x400" if prev == (base, lds - 1024) else f"s_add_u32 m0, s{base}, {lds}")
                prev = (base, lds)
                if half:
                    self.A("s_mov_b32 exec_hi, 0")
                self.A(f"buffer_load_dwordx4 v{voff}, {sr(rsrc,4)}, {soff} offen {pol} lds")
                if half:
                    self.A("s_mov_b32 exec_hi, -1")
                self.issued.append(tag)
            assert len(self.issued) <= 63
            del items[:n]
            if items:
                break
            self.q.pop(0)

    def job_s(self, n):
        o = self.o
        slot = A_SLOT[n % 3]
        if o.rot == 4 and n < 8:
            setup = f"s_xor_b32 s{S_T1}, s{S_KC}, {n}\ns_lshl_b32 s{S_T0}, s{S_T1}, 19\ns_lshl_b32 s{S_T1}, s{S_T1}, 7"
        elif o.rot == 2:
            setup = f"s_lshl_b32 s{S_T0}, s{S_KC}, 19\ns_lshl_b32 s{S_T1}, s{S_KC}, 7" if n == 0 else f"""
s_add_u32 s{S_T1}, s{S_KC}, {n}
s_cmp_ge_u32 s{S_T1}, 9
s_cselect_b32 s{S_T0}, 9, 0
s_sub_u32 s{S_T1}, s{S_T1}, s{S_T0}
s_lshl_b32 s{S_T0}, s{S_T1}, 19
s_lshl_b32 s{S_T1}, s{S_T1}, 7
"""
        else:
            setup = f"s_mov_b32 s{S_T0}, {n << 19}\ns_movk_i32 s{S_T1}, {n << 7}"
        it = [(R_X, "", self.SB_X, slot + 32768 + u * 1024, V_XO + u, f"s{S_T1}", False) for u in range(3)]
        it += [(R_WQ, "", self.SB_WQ, slot + u * 1024, V_WQ + u, f"s{S_T0}", False) for u in range(8)]
        return (f"S{n}", setup, it)

    def job_k(self):
        return ("K", "", [(R_K, "", self.SB_KV, K_LDS + u * 1024, V_KV + u, "0", False) for u in range(6)])

    def jjt(self, pos, dst):
        return f"s_add_u32 s{dst}, s{S_JL}, {pos}\ns_and_b32 s{dst}, s{dst}, 3\n"

    def job_v(self, pos):
        return (f"V{pos}", self.jjt(pos, S_T0) + f"s_mul_i32 s{S_T0}, s{S_T0}, 12288",
                [(R_V, "", self.SB_KV, V_LDS[pos % 2] + u * 1024, V_KV + u, f"s{S_T0}", False) for u in range(6)])

    def job_w(self, q, both=0):
        if q < 2:
            setup = f"s_mul_i32 s{S_T0}, s{S_JL}, {256*1152}\ns_add_u32 s{S_T0}, s{S_T0}, {q*128*1152 + 1024}"
            vb = V_WE
        else:
            pos, r = divmod(q - 2, 4)
            setup = self.jjt(pos, S_T0) + f"""
s_mul_i32 s{S_T0}, s{S_T0}, {256*1152}
s_add_u32 s{S_T0}, s{S_T0}, {(r&2)*64*1152}
s_add_u32 s{S_T0}, s{S_T0}, s{S_F0 + (r&1)}
"""
            vb = V_WM
        it = [(R_WO, "", self.SB_W, W_LDS[q % 5] + u * 1024, vb + u, f"s{S_T0}", False) for u in range(4)]
        if both:
            it += [(R_WO, "", self.SB_W, W_LDS[q % 5] + both * 8192 + u * 1024, V_W2 + u, f"s{S_T0}", False) for u in range(4)]
        return (f"W{q}", setup, it)

    def p_block(self, pos):
        return self.jjt(pos, S_T0) + f"""
s_lshl_b32 s{S_T3}, s{S_KQ}, 2
s_add_u32 s{S_T0}, s{S_T0}, s{S_T3}
s_add_u32 s{S_T0}, s{S_T0}, s{S_GRP}
s_mul_i32 s{S_T0}, s{S_T0}, 18432
"""

    def job_p(self, pos, f0, nf, tag, lds):
        sb = self.SB_P0 if nf == 1 else self.SB_P12
        setup = self.p_block(pos) + f"""
s_add_u32 s{S_T0}, s{S_T0}, s{sb}
s_add_u32 s{S_T0}, s{S_T0}, {f0*6144}
s_add_u32 s{S_T1}, s{S_T0}, 1024
s_add_u32 s{S_T2}, s{S_T0}, 2048
"""
        it = [(R_WS, "sc1", sb, lds + u * 1024, V_LIN, f"s{S_T0+u}", nf == 1 and u == 1) for u in range(2 if nf == 1 else 3)]
        return (tag, setup, it)

    def code_touch(self):
        self.A(f"""
s_getpc_b64 s[{S_EX}:{S_EX+1}]
L_pcl:
s_sub_u32 s{S_EX}, s{S_EX}, L_pcl-{NAME}
s_subb_u32 s{S_EX+1}, s{S_EX+1}, 0
s_lshl_b32 s{S_T0}, s{S_W}, 13
v_lshlrev_b32 v{V_SV}, 7, v0
v_add_u32 v{V_SV}, s{S_T0}, v{V_SV}
v_min_u32 v{V_SV}, L_end-{NAME}, v{V_SV}
s_cmp_lt_u32 s2, 8
s_cselect_b64 exec, -1, 1
global_load_dword v{V_SV+1}, v{V_SV}, s[{S_EX}:{S_EX+1}]
s_mov_b64 exec, -1
""")
        self.issued.append("code")

    def nonce_issue(self):
        self.A(f"v_mov_b32 v{V_FL}, 0\nbuffer_load_dwordx2 v[{V_FL+2}:{V_FL+3}], v{V_FL}, {sr(R_DBG,4)}, 0 offen sc1")
        self.issued.append("non")

    def nonce_check(self):
        self.wait_for(["non"])
        self.A(f"""
s_mov_b32 s{S_CNT}, {SPIN_MAX}
L_nonce:
v_readfirstlane_b32 s{S_NON}, v{V_FL+2}
v_readfirstlane_b32 s{S_NON+1}, v{V_FL+3}
s_sub_u32 s{S_CNT}, s{S_CNT}, 1
s_cmp_eq_u32 s{S_CNT}, 0
s_cbranch_scc1 L_nonce_done
s_cmp_lg_u32 s{S_NON}, 0
s_cbranch_scc1 L_nonce_done
buffer_load_dwordx2 v[{V_FL+2}:{V_FL+3}], v{V_FL}, {sr(R_DBG,4)}, 0 offen sc1
s_waitcnt vmcnt(0)
s_branch L_nonce
L_nonce_done:
""")

    def flag(self):
        self.wait_for(["pub"])
        self.A(f"""
s_add_u32 s{S_T0}, s{S_GRP}, s{S_J}
s_lshl_b32 s{S_T0}, s{S_T0}, 7
s_lshl_b32 s{S_T1}, s{S_W}, 3
s_add_u32 s{S_T0}, s{S_T0}, s{S_T1}
s_add_u32 s{S_T0}, s{S_T0}, {WS_FLAG}
s_mov_b64 exec, 1
buffer_store_dwordx2 v[{V_FL+2}:{V_FL+3}], v{V_FL}, {sr(R_WS,4)}, s{S_T0} offen sc1
s_mov_b64 exec, -1
""")
        self.issued.append("flag")

    def publish_setup(self, split):
        self.A(self.p_block(0) + (f"s_and_b32 s{S_T1}, s{S_W}, 1\ns_mul_i32 s{S_T1}, s{S_T1}, 9216" if split else
                                  f"s_mul_i32 s{S_T1}, s{S_W}, 4608") + f"""
s_add_u32 s{S_T0}, s{S_T0}, s{S_T1}
s_add_u32 s{S_T1}, s{S_T1}, {P_LDS}
v_add_u32 v{V_T+4}, s{S_T1}, v{V_LIN}
s_add_u32 s{S_T1}, s{S_T0}, 4096
s_add_u32 s{S_T2}, s{S_T0}, 8192
""")

    def publish(self, split):
        n = 9 if split else 5
        for u in range(n):
            self.A(f"ds_read_b128 {vr(96+4*u,4)}, v{V_T+4} offset:{u*1024}")
        for u in range(n):
            half = not split and u == 4
            if half:
                self.A("s_waitcnt lgkmcnt(0)\ns_mov_b32 exec_hi, 0")
            self.A(f"buffer_store_dwordx4 {vr(96+4*u,4)}, v{V_LIN}, {sr(R_WS,4)}, s{S_T0+u//4} offen offset:{(u%4)*1024} sc1")
            if half:
                self.A("s_mov_b32 exec_hi, -1")
            self.issued.append("pub")

    def flags_setup(self, split):
        self.A(f"""
{f'v_bfe_u32 v{V_T}, v0, 1, 2' if split else f'v_bfe_u32 v{V_T}, v0, 2, 2'}
{f'v_and_or_b32 v{V_T+1}, v0, 1, 2' if split else f'v_and_b32 v{V_T+1}, 3, v0'}
v_lshlrev_b32 v{V_T}, 7, v{V_T}
v_lshl_add_u32 v{V_T}, v{V_T+1}, 3, v{V_T}
s_lshl_b32 s{S_T5}, s{S_KQ}, 2
s_add_u32 s{S_T5}, s{S_T5}, s{S_GRP}
s_lshl_b32 s{S_T5}, s{S_T5}, 7
s_add_u32 s{S_T5}, s{S_T5}, {WS_FLAG}
""")

    def flags_sample(self):
        self.A(f"buffer_load_dwordx2 v[{V_T+4}:{V_T+5}], v{V_T}, {sr(R_WS,4)}, s{S_T5} offen sc1")
        self.issued.append("smp")

    def flags_wait(self):
        self.wait_for(["smp"])
        self.A(f"""
s_mov_b32 s{S_CNT}, {SPIN_MAX}
L_poll:
v_cmp_ne_u64 vcc, {sr(S_NON,2)}, v[{V_T+4}:{V_T+5}]
s_cbranch_vccz L_polld
s_sub_u32 s{S_CNT}, s{S_CNT}, 1
s_cmp_eq_u32 s{S_CNT}, 0
s_cbranch_scc1 L_polld
buffer_load_dwordx2 v[{V_T+4}:{V_T+5}], v{V_T}, {sr(R_WS,4)}, s{S_T5} offen sc1
s_waitcnt vmcnt(0)
s_branch L_poll
L_polld:
""")

    def extra_setup(self):
        E = V_EA
        self.A(f"""
v_lshrrev_b32 v{E+8}, 2, v0
v_lshlrev_b32 v{E+8}, 7, v{E+8}
v_and_b32 v{E+9}, 3, v0
v_lshl_add_u32 v{E+8}, v{E+9}, 3, v{E+8}
s_lshl_b32 s{S_T4}, s{S_GRP}, 7
s_add_u32 s{S_T4}, s{S_T4}, {WS_FLAG + 64}
s_mul_i32 s{S_T0}, s{S_J}, 48
s_mul_i32 s{S_T1}, s{S_W}, 12
s_add_u32 s{S_T0}, s{S_T0}, s{S_T1}
v_and_b32 v{E+9}, 15, v0
v_min_u32 v{E}, 11, v{E+9}
v_add_u32 v{E}, s{S_T0}, v{E}
v_lshrrev_b32 v{E+2}, 6, v{E}
v_and_b32 v{E+3}, 63, v{E}
v_mul_u32_u24 v{E+4}, 0x56, v{E+2}
v_lshrrev_b32 v{E+4}, 8, v{E+4}
v_mul_u32_u24 v{E+5}, 3, v{E+4}
v_sub_u32 v{E+5}, v{E+2}, v{E+5}
v_lshrrev_b32 v{E+6}, 1, v{E+4}
v_mul_u32_u24 v{E+6}, 48, v{E+6}
v_lshl_add_u32 v{E+6}, v{E+5}, 4, v{E+6}
v_and_b32 v{E+7}, 15, v{E+3}
v_add_u32 v{E+6}, v{E+6}, v{E+7}
v_mul_u32_u24 v{E+1}, 2304, v{E+6}
v_and_b32 v{E+7}, 1, v{E+4}
v_lshl_add_u32 v{E+1}, v{E+7}, 6, v{E+1}
v_lshrrev_b32 v{E+7}, 4, v{E+3}
v_lshl_add_u32 v{E+1}, v{E+7}, 3, v{E+1}
v_lshrrev_b32 v{E+7}, 4, v0
v_and_b32 v{E+2}, 1, v{E+7}
v_lshl_add_u32 v{E+1}, v{E+2}, 2, v{E+1}
v_lshrrev_b32 v{E+2}, 1, v{E+7}
v_lshl_add_u32 v{E+1}, v{E+2}, 5, v{E+1}
v_cmp_gt_u32 vcc, 12, v{E+9}
v_mov_b32 v{E+2}, 0x40000000
v_cndmask_b32 v{E+1}, v{E+2}, v{E+1}, vcc
s_mul_i32 s{S_EO}, s{S_BP}, {96*2304}
s_add_u32 s{S_EO}, s{S_EO}, 1024
v_mul_u32_u24 v{E+7}, {4*12288}, v{E+7}
v_lshl_add_u32 v{E}, v{E}, 4, v{E+7}
s_mul_i32 s{S_EI}, s{S_GRP}, 12288
s_add_u32 s{S_EI}, s{S_EI}, {WS_PE}
s_mov_b32 s{S_CNT}, {SPIN_MAX}
L_polle:
buffer_load_dwordx2 v[{V_T+4}:{V_T+5}], v{E+8}, {sr(R_WS,4)}, s{S_T4} offen sc1
s_sub_u32 s{S_CNT}, s{S_CNT}, 1
s_waitcnt vmcnt(0)
v_cmp_ne_u64 vcc, {sr(S_NON,2)}, v[{V_T+4}:{V_T+5}]
s_cbranch_vccz L_polled
s_sleep 2
s_cmp_lg_u32 s{S_CNT}, 0
s_cbranch_scc1 L_polle
L_polled:
""")
        self.issued = []

    def extra_loads(self):
        for k in range(4):
            self.A(f"buffer_load_dwordx4 {vr(72+4*k,4)}, v{V_EA}, {sr(R_WS,4)}, s{S_EI} offen sc1")
            self.issued.append("ex")
            if k < 3:
                self.A(f"s_add_u32 s{S_EI}, s{S_EI}, 12288")

    def extra_sum(self):
        A = self.A
        self.wait_for(["ex"])
        for k in range(4):
            self.c += unpack_add(48, 72 + 4 * k, k == 0, 56)
        for i in range(4):
            A(f"v_permlane32_swap_b32 v{48+i}, v{52+i}")
        A("""
v_pk_add_f32 v[48:49], v[48:49], v[52:53]
v_pk_add_f32 v[50:51], v[50:51], v[54:55]
v_permlane16_swap_b32 v48, v50
v_permlane16_swap_b32 v49, v51
v_pk_add_f32 v[48:49], v[48:49], v[50:51]
v_cvt_pk_bf16_f32 v56, v48, v49
""")
        A(f"buffer_store_dword v56, v{V_EA+1}, {sr(R_OUT,4)}, s{S_EO} offen")

    def gen(self):
        o = self.o
        A = self.A
        split = not o.w5first
        self.c += self.st("start")
        if o.prio_loader:
            A(f"s_setprio {o.prio_loader}")
        A(f"""
s_sub_u32 s{S_W}, s{S_W}, 4
v_lshrrev_b32 v1, 5, v0
v_and_b32 v2, 31, v0
v_lshlrev_b32 v2, 4, v2
v_lshlrev_b32 v3, 5, v1
v_xor_b32 v2, v2, v3
v_lshl_add_u32 v2, v1, 13, v2
s_lshl_b32 s{S_T0}, s{S_W}, 17
v_add_u32 v{V_WQ}, s{S_T0}, v2
s_movk_i32 s{S_T1}, 0x4000
v_xad_u32 v{V_WQ+1}, v{V_WQ}, 64, s{S_T1}
v_lshrrev_b32 v4, 4, v0
v_and_b32 v5, 7, v0
s_mov_b32 s{S_T2}, 0x8000
v_add_u32 v{V_WQ+2}, s{S_T2}, v{V_WQ}
v_add_u32 v{V_WQ+3}, s{S_T2}, v{V_WQ+1}
v_xor_b32 v{V_WQ+4}, 0x10080, v{V_WQ}
v_xor_b32 v{V_WQ+5}, 0x10080, v{V_WQ+1}
v_add_u32 v{V_WQ+6}, s{S_T2}, v{V_WQ+4}
v_add_u32 v{V_WQ+7}, s{S_T2}, v{V_WQ+5}
v_xor_b32 v5, v5, v4
v_lshlrev_b32 v5, 4, v5
s_and_b32 s{S_T1}, s{S_W}, 1
s_lshl_b32 s{S_T2}, s{S_T1}, 6
v_xor_b32 v5, s{S_T2}, v5
v_lshrrev_b32 v6, 3, v0
v_mul_u32_u24 v6, 1152, v6
s_mul_i32 s{S_T3}, s{S_W}, 27648
v_add3_u32 v{V_XO}, v5, v6, s{S_T3}
v_add_u32 v{V_XO+2}, 18432, v{V_XO}
v_xor_b32 v5, 64, v5
s_add_u32 s{S_T3}, s{S_T3}, 9216
v_add3_u32 v{V_XO+1}, v5, v6, s{S_T3}
s_lshl_b32 s{self.SB_WQ}, s{S_W}, 13
s_mul_i32 s{self.SB_X}, s{S_W}, 3072
s_mul_i32 s{S_T4}, s{S_BP}, 110592
s_lshl_b32 s{S_T5}, s{S_J}, 9
""")
        if o.rot:
            A(f"s_add_u32 s{S_KC}, s{S_BP}, s{S_JL}\ns_and_b32 s{S_KC}, s{S_KC}, 1")
        if o.rot == 2:
            A(f"s_mul_i32 s{S_KC}, s{S_KC}, {o.rotoff}")
        A("s_waitcnt lgkmcnt(0)")
        self.c += srd_off(R_WQ, S_WQ, S_T5, 4718592)
        self.c += srd_off(R_X, S_X, S_T4, 884736)
        self.c += self.st("karg")
        self.push(self.job_s(0), self.job_s(1), self.job_s(2))
        self.pump(["S0"], o.budget0)
        self.c += self.st("S0iss")
        A(f"""
v_and_b32 v5, 15, v0
v_xor_b32 v5, v5, v4
v_lshlrev_b32 v5, 4, v5
s_and_b32 s{S_T1}, s{S_W}, 1
s_lshl_b32 s{S_T2}, s{S_T1}, 7
v_xor_b32 v5, s{S_T2}, v5
s_mul_i32 s{S_T2}, s{S_T1}, 6144
s_lshr_b32 s{S_T3}, s{S_W}, 1
s_mul_i32 s{S_T3}, s{S_T3}, 196608
s_add_u32 s{S_T2}, s{S_T2}, s{S_T3}
v_lshl_add_u32 v6, v4, 8, s{S_T2}
""")
        for u in range(6):
            cu = (u & 3) << 6
            A(f"v_xor_b32 v7, {cu}, v5\nv_add_u32 v7, v7, v6" if cu else "v_add_u32 v7, v5, v6")
            A(f"v_add_u32 v{V_KV+u}, {u*1024}, v7")
        A(f"""
s_mul_i32 s{self.SB_KV}, s{S_W}, 6144
s_lshl_b32 s{S_T0}, s{S_BP}, 5
s_add_u32 s{S_T1}, s{S_T0}, s{S_J}
s_mul_i32 s{S_T1}, s{S_T1}, 12288
s_lshl_b32 s{S_T4}, s{S_KQ}, 2
s_add_u32 s{S_T4}, s{S_T4}, s{S_T0}
s_mul_i32 s{S_T4}, s{S_T4}, 12288
s_mul_i32 s{S_T5}, s{S_KQ}, {1024*1152}
""")
        self.c += srd_off(R_K, S_K, S_T1, 3145728)
        if o.kpos < 0:
            self.push(self.job_k())
            self.pump(["K"], 0)
        self.c += srd_off(R_V, S_V, S_T4, 3145728)
        self.c += srd_off(R_WO, S_WO, S_T5, 4718592)
        self.c += common_scalars(o)
        A(f"""
v_and_b32 v5, 15, v0
v_lshlrev_b32 v6, 1, v4
v_xor_b32 v5, v5, v6
v_lshlrev_b32 v5, 4, v5
v_mul_u32_u24 v6, 1152, v4
s_mul_i32 s{S_T0}, s{S_W}, {16*1152}
v_add_u32 v6, s{S_T0}, v6
v_add_u32 v{V_WM}, v5, v6
v_add_u32 v{V_WM+1}, {4*1152}, v{V_WM}
v_xor_b32 v5, 128, v5
v_add_u32 v{V_WM+2}, v5, v6
v_add_u32 v{V_WM+2}, {8*1152}, v{V_WM+2}
v_add_u32 v{V_WM+3}, {4*1152}, v{V_WM+2}
v_and_b32 v5, 7, v0
v_and_b32 v6, 1, v4
v_lshlrev_b32 v6, 1, v6
v_xor_b32 v5, v5, v6
v_lshlrev_b32 v5, 4, v5
v_lshrrev_b32 v6, 3, v0
v_mul_u32_u24 v6, 1152, v6
s_lshr_b32 s{S_T1}, s{S_BP}, 2
s_and_b32 s{S_T1}, s{S_T1}, {1 if o.flip else 0}
s_mul_i32 s{S_F0}, s{S_T1}, {64*1152}
s_sub_u32 s{S_F1}, {64*1152}, s{S_F0}
s_lshl_b32 s{S_T2}, s{S_CQ}, 8
s_add_u32 s{S_F0}, s{S_F0}, s{S_T2}
s_add_u32 s{S_F1}, s{S_F1}, s{S_T2}
s_lshl_b32 s{S_T1}, s{S_T1}, 1
s_xor_b32 s{S_T1}, s{S_T1}, s{S_W}
s_mul_i32 s{S_T0}, s{S_T1}, {32*1152}
v_add_u32 v6, s{S_T0}, v6
v_add_u32 v{V_WE}, v5, v6
v_add_u32 v{V_WE+2}, {16*1152}, v{V_WE}
v_xor_b32 v5, 64, v5
v_add_u32 v{V_WE+1}, v5, v6
v_add_u32 v{V_WE+1}, {8*1152}, v{V_WE+1}
v_add_u32 v{V_WE+3}, {16*1152}, v{V_WE+1}
v_lshlrev_b32 v{V_LIN}, 4, v0
s_lshl_b32 s{self.SB_W}, s{S_W}, 12
s_mul_i32 s{self.SB_P0}, s{S_W}, 1536
s_mul_i32 s{self.SB_P12}, s{S_W}, 3072
s_cmp_ge_u32 s{S_W}, 2
s_cselect_b32 s{S_T0}, -1, 1
s_mul_i32 s{S_T0}, s{S_T0}, {32*1152}
v_add_u32 v{V_W2}, s{S_T0}, v{V_WM}
v_add_u32 v{V_W2+1}, s{S_T0}, v{V_WM+1}
v_add_u32 v{V_W2+2}, s{S_T0}, v{V_WM+2}
v_add_u32 v{V_W2+3}, s{S_T0}, v{V_WM+3}
""")
        self.flags_setup(split)
        if o.walk:
            self.c += walk_entry("Wl")
        A("Wl_begin:")
        self.barrier(["S0"])
        self.c += self.st("B0")
        if o.ldexit:
            A("s_endpgm")
        if o.kpos == 2:
            self.push(self.job_k())
        self.pump(["S1"], o.budget1)
        for n in range(0, 9):
            self.barrier([f"S{n+1}"] if n < 8 else ["K"])
            if n == 3:
                self.nonce_issue()
            if n + 3 <= 8:
                self.push(self.job_s(n + 3))
                if o.kpos == n + 3:
                    self.push(self.job_k())
            if n == 6:
                self.push(self.job_v(0), self.job_w(0))
            if n == 7:
                self.push(self.job_w(1), self.job_w(2))
            if n == 8:
                self.push(self.job_w(3), self.job_w(4))
            self.pump([f"S{n+2}"] if n < 7 else ["K"] if n == 7 else ["V0", "W0", "W1"], o.budget1 if n < 6 else o.budget)
            if o.refresh and n == o.refresh:
                self.code_touch()
        self.c += self.st("B9")
        self.nonce_check()
        self.barrier(["V0", "W0", "W1"])
        self.pump(["W4"], 0)
        if split:
            self.publish_setup(True)
        self.barrier([])
        self.c += self.st("B11")
        assert not self.q
        if split:
            base = list(self.issued)
            A(f"s_cmp_ge_u32 s{S_W}, 2\ns_cbranch_scc1 L_pubs")
            self.barrier(["W2", "W3"])
            self.push(self.job_w(5, both=1))
            self.pump(["W5"], 0)
            self.barrier(["W4", "W5"])
            A("s_branch L_pubd\nL_pubs:")
            self.issued = base
            self.publish(True)
            self.barrier(["W2", "W3"])
            self.push(self.job_w(6, both=-1))
            self.pump(["W6"], 0)
        else:
            self.push(self.job_w(5))
            self.pump(["W5"], 0)
            self.publish_setup(False)
            self.publish(False)
            self.barrier(["W2", "W3"])
            self.push(self.job_w(6))
            self.pump(["W6"], 0)
        if o.earlyflag:
            self.flag()
        self.barrier(["W4", "W5"])
        if not o.earlyflag:
            self.flag()
        A("L_pubd:")
        self.c += self.st("pub")

        def needs(d):
            need = [f"W{d+1}", f"W{d+2}"]
            if d % 4 == 1:
                return need + [f"V{(d-1)//4}", f"P{(d-5)//4}b"]
            return need + [f"P{(d-3)//4}a"]
        for d in range(3, 18, 2):
            if d > 3:
                self.barrier(needs(d))
            if d == 5:
                self.c += self.st("D5")
                self.flags_wait()
                self.c += self.st("polled")
            if d in (5, 9, 13):
                self.push(self.job_p((d - 1) // 4, 0, 1, f"P{(d-1)//4}a", P_LDS))
            if d in (7, 11, 15):
                self.push(self.job_p((d - 3) // 4, 1, 2, f"P{(d-3)//4}b", P_LDS + 6144))
            for q in (d + 4, d + 5):
                if q <= 17:
                    self.push(self.job_w(q))
                if d == 3 and q == 7:
                    self.push(self.job_v(1))
            if d in (5, 9):
                self.push(self.job_v((d - 5) // 4 + 2))
            self.pump(needs(d + 2), o.budget - (1 if d == 3 else 0))
            if d == 3:
                self.flags_sample()
            if d == 11:
                A(f"s_add_u32 s{S_T4}, s{S_W}, 4")
                self.c += gather_scalars(o, S_T4) + gather_lanes(o, V_MO, V_MF)
            if d == o.expoll:
                self.extra_setup()
            if d == max(15, o.expoll):
                self.extra_loads()
        assert not self.q
        self.c += self.st("D17")
        self.extra_sum()
        self.c += self.st("edone")
        if o.own or o.fbar:
            A("s_barrier")
        A(f"s_cmp_ge_u32 s{S_W}, 2\ns_cbranch_scc1 L_fin_l")
        if o.lfirst:
            A(f"s_sleep {o.lfirst}")
        self.c += gather_main(o, "L_gl", V_LIN, V_MO, V_MF)
        A("L_fin_l:")
        if o.stamps:
            A("s_waitcnt vmcnt(0)")
            self.c += self.st("end")
            self.c += self.st.dump(1)
        A("s_endpgm")
        return self.c


X_FL, X_OUT, D_PA, X_LIN, X_L0 = 1, 2, 5, 6, 7
D_VA, D_VA2, D_WA, D_WA2 = 8, 12, 16, 20
C_WA, C_XA, C_PW, C_KA = 24, 32, 35, 37
D_EA = 56
C_AF = [64, 96]
C_BF = [128, 140]
C_ACC = 160
D_OUTM, D_OUTE, D_VW, D_F01, D_F2 = 24, 72, 96, 144, 160
D_V = [176, 188]
D_P = [200, 212]
D_W = [224, 240]


def acc(t, st):
    return C_ACC + (t * 3 + st) * 4


def mfma(d, a, b, c):
    cc = "0" if c is None else vr(c, 4)
    return I(f"v_mfma_f32_16x16x32_bf16 {vr(d,4)}, {vr(a,4)}, {vr(b,4)}, {cc}")


class Compute:
    SETS = [list(range(24, 34)), [45, 46, 47, 48, 49, 50, 51, 52, 53, 54], [55, 58, 59, 60, 61, 62, 63, 1, 2, 3]]
    VHOLD = [D_P[0], D_P[1], D_V[0], D_V[1]]

    def __init__(self, o):
        self.o, self.c = o, []
        self.st = Stamper(o.stamps)
        if o.stp1:
            self.st.only = "cycA"
        if o.stp2:
            self.st.only = "cycB"
        self.tok = 0

    def A(self, s):
        self.c += L(s)

    def anchor(self, ins, after):
        self.tok += 1
        t = f"tok{self.tok}"
        after.swr = after.swr | {t}
        ins.srd = ins.srd | {t}
        return ins

    def bar(self, after=None, drain=False):
        r = L("s_waitcnt lgkmcnt(0)\ns_barrier" if drain else "s_barrier")
        for a in (after or []):
            self.anchor(r[0], a)
        return r

    def p1_reads(self, kb, s, n):
        a = self.SETS[n % 3]
        r = [I(f"ds_read_b128 {vr(C_BF[s],4)}, v{a[8+kb]} offset:0")]
        for t in range(8):
            for i in range(2):
                r.append(I(f"ds_read_b64_tr_b16 {vr(C_AF[s]+4*t+2*i,2)}, v{a[t]} offset:{kb*16384+i*2048}"))
            if t == 0:
                r += [I(f"ds_read_b128 {vr(C_BF[s]+4*st,4)}, v{a[8+kb]} offset:{st*2048}") for st in (1, 2)]
        return r

    def p1_mfmas(self, s, first):
        return [mfma(acc(t, st), C_AF[s] + 4 * t, C_BF[s] + 4 * st, None if first else acc(t, st))
                for t in range(8) for st in range(3)]

    def kfrag(self, kt, p):
        i = p * 3 + kt
        if i < 8:
            return C_AF[0] + 4 * i
        if i < 11:
            return C_BF[0] + 4 * (i - 8)
        return 152

    def sacc(self, kt, st):
        i = st * 3 + kt
        return C_AF[1] + 4 * i if i < 8 else C_BF[1]

    def startup(self):
        o, A = self.o, self.A
        A("L_compute:")
        self.c += self.st("start")
        if o.prio_compute:
            A(f"s_setprio {o.prio_compute}")
        A(f"""
s_cmp_ge_u32 s2, 8
s_cbranch_scc1 L_no_pf
s_getpc_b64 s[{S_EX}:{S_EX+1}]
L_pc:
s_sub_u32 s{S_EX}, s{S_EX}, L_pc-{NAME}
s_subb_u32 s{S_EX+1}, s{S_EX+1}, 0
s_lshl_b32 s{S_T0}, s{S_W}, 13
v_lshlrev_b32 v152, 7, v0
v_add_u32 v152, s{S_T0}, v152
v_min_u32 v152, L_end-{NAME}, v152
global_load_dword v153, v152, s[{S_EX}:{S_EX+1}]
L_no_pf:
""")
        if o.walk:
            self.c += walk_entry("Wc")
        A(f"""
s_lshr_b32 s{S_T0}, s{S_W}, 1
s_and_b32 s{S_T1}, s{S_W}, 1
v_lshrrev_b32 v48, 4, v0
v_bfe_u32 v49, v0, 2, 2
v_and_b32 v50, 3, v0
v_and_b32 v51, 15, v0
v_and_b32 v52, 1, v48
v_lshl_or_b32 v52, v52, 2, v49
v_lshl_add_u32 v53, v48, 3, v49
v_lshlrev_b32 v54, 9, v53
v_lshl_add_u32 v54, v52, 5, v54
v_lshl_add_u32 v54, v50, 3, v54
s_lshl_b32 s{S_T2}, s{S_T1}, 8
v_add_u32 v{C_WA}, s{S_T2}, v54
""")
        for t in range(1, 8):
            A(f"v_xor_b32 v{C_WA+t}, {t<<5}, v{C_WA}")
        A(f"""
v_lshrrev_b32 v54, 1, v51
v_xor_b32 v54, v54, v48
v_lshlrev_b32 v54, 4, v54
v_lshl_add_u32 v54, v51, 7, v54
s_mul_i32 s{S_T2}, s{S_T0}, 6144
s_add_u32 s{S_T2}, s{S_T2}, 32768
v_add_u32 v{C_XA}, s{S_T2}, v54
v_xor_b32 v{C_XA+1}, 64, v{C_XA}
v_lshrrev_b32 v54, 1, v48
v_xor_b32 v54, v54, v51
v_lshlrev_b32 v54, 4, v54
v_lshl_add_u32 v54, v51, 8, v54
v_and_b32 v55, 1, v48
v_lshl_add_u32 v54, v55, 3, v54
s_mul_i32 s{S_T2}, s{S_T0}, 12288
s_add_u32 s{S_T3}, s{S_T2}, {K_LDS}
v_add_u32 v{C_KA}, s{S_T3}, v54
""")
        for pe in range(1, 8):
            A(f"v_xor_b32 v{C_KA+pe}, {pe<<5}, v{C_KA}")
        A(f"""
s_mul_i32 s{S_T3}, s{S_T0}, 3072
s_add_u32 s{S_T3}, s{S_T3}, {P_LDS}
v_lshl_add_u32 v{D_PA}, v0, 4, s{S_T3}
s_mul_i32 s{S_T3}, s{S_T1}, 6144
v_add_u32 v{C_PW}, s{S_T3}, v{D_PA}
s_lshl_b32 s{S_T3}, s{S_T1}, 3
v_add_u32 v{C_PW+1}, s{S_T3}, v{D_PA}
v_xor_b32 v54, v48, v51
v_lshlrev_b32 v54, 4, v54
v_lshl_add_u32 v54, v51, 8, v54
s_lshr_b32 s{S_T3}, s{S_BP}, 2
s_and_b32 s{S_T3}, s{S_T3}, {1 if o.flip else 0}
s_lshl_b32 s{S_T3}, s{S_T3}, 7
v_xor_b32 v54, s{S_T3}, v54
v_add_u32 v{D_VA}, s{S_T2}, v54
v_xor_b32 v{D_VA+1}, 64, v{D_VA}
v_xor_b32 v{D_VA+2}, 128, v{D_VA}
v_xor_b32 v{D_VA+3}, 192, v{D_VA}
v_lshlrev_b32 v54, 8, v53
v_lshl_add_u32 v54, v50, 3, v54
s_lshl_b32 s{S_T3}, s{S_T1}, 2
v_xor_b32 v55, s{S_T3}, v52
v_lshl_add_u32 v54, v55, 5, v54
v_add_u32 v{D_WA}, {W_LDS[0]}, v54
v_xor_b32 v{D_WA+1}, 32, v{D_WA}
v_xor_b32 v{D_WA+2}, 64, v{D_WA}
v_xor_b32 v{D_WA+3}, 96, v{D_WA}
v_lshlrev_b32 v54, 7, v53
v_lshl_add_u32 v54, v50, 3, v54
v_and_b32 v55, 1, v48
v_lshlrev_b32 v55, 1, v55
v_lshrrev_b32 v58, 1, v49
v_or_b32 v55, v55, v58
s_lshl_b32 s{S_T3}, s{S_T1}, 1
v_xor_b32 v55, s{S_T3}, v55
v_lshl_add_u32 v54, v55, 5, v54
v_add_u32 v{D_EA}, {W_LDS[0]}, v54
v_xor_b32 v{D_EA+1}, 32, v{D_EA}
""")
        for t in range(4):
            A(f"v_add_u32 v{D_WA2+t}, {W_LDS[3]-W_LDS[0]}, v{D_WA+t}\nv_add_u32 v{D_VA2+t}, {V_LDS[1]-V_LDS[0]}, v{D_VA+t}")
        A(f"""
v_lshlrev_b32 v{X_LIN}, 4, v0
s_mov_b32 s{S_C0}, 0x3e0293ee
s_mov_b32 s{S_C0+1}, 0x3e0293ee
v_cmp_eq_u32 vcc, 0, v0
v_mov_b32 v54, 0x40000000
v_cndmask_b32 v{X_L0}, v54, 0, vcc
""")
        for k in (1, 2):
            for i in range(10):
                A(f"v_add_u32 v{self.SETS[k][i]}, {A_SLOT[k]}, v{self.SETS[0][i]}")
        A("s_waitcnt lgkmcnt(0)")
        self.c += common_scalars(o) + gather_scalars(o, S_W)
        A(f"""
s_add_u32 s{S_T0}, s{S_GRP}, s{S_J}
s_lshl_b32 s{S_EF}, s{S_T0}, 7
s_lshl_b32 s{S_T1}, s{S_W}, 3
s_add_u32 s{S_EF}, s{S_EF}, s{S_T1}
s_add_u32 s{S_EF}, s{S_EF}, {WS_FLAG + 64}
s_lshl_b32 s{S_T0}, s{S_T0}, 2
s_add_u32 s{S_T0}, s{S_T0}, s{S_W}
s_mul_i32 s{S_ES}, s{S_T0}, 3072
s_add_u32 s{S_ES}, s{S_ES}, {WS_PE}
s_mul_i32 s{S_MS}, s{S_T0}, 6144
s_add_u32 s{S_MS}, s{S_MS}, {WS_PM}
{f's_cmp_eq_u32 s{S_W}, s{S_KQ}' if o.own else ''}
{f's_cselect_b32 s{S_MS}, 0x40000000, s{S_MS}' if o.own else ''}
s_add_u32 s{S_MS+1}, s{S_MS}, 3072
s_lshl_b32 s{S_MF}, s{S_W}, 2
s_add_u32 s{S_MF}, s{S_MF}, s{S_GRP}
s_add_u32 s{S_MF}, s{S_MF}, s{S_JL}
s_lshl_b32 s{S_MF}, s{S_MF}, 7
s_lshl_b32 s{S_T1}, s{S_KQ}, 3
s_add_u32 s{S_MF}, s{S_MF}, s{S_T1}
s_add_u32 s{S_MF}, s{S_MF}, {WS_FLAG2}
s_or_b32 s{S_T0}, s2, s{S_W}
s_cmp_lg_u32 s{S_T0}, 0
s_cbranch_scc1 L_no_nonce
s_memrealtime {sr(S_NON,2)}
s_waitcnt lgkmcnt(0)
s_or_b32 s{S_NON}, s{S_NON}, 1
v_mov_b32 v154, s{S_NON}
v_mov_b32 v155, s{S_NON+1}
s_mov_b64 exec, 1
buffer_store_dwordx2 v[154:155], v{X_LIN}, {sr(R_DBG,4)}, 0 offen sc1
s_mov_b64 exec, -1
L_no_nonce:
Wc_begin:
s_barrier
""")
        self.c += self.st("B0")
        self.c += self.st("cyc0")

    def softmax(self, st):
        M, R = 46 + 2 * st, (52, 54, 58)[st]
        T = M + 1
        U0, U1 = (60, 62) if st != 1 else (152, 154)
        v = [self.sacc(kt, st) + r for kt in range(3) for r in range(4)]
        s = f"""
v_max3_f32 v{M}, v{v[0]}, v{v[1]}, v{v[2]}
v_max3_f32 v{T}, v{v[3]}, v{v[4]}, v{v[5]}
v_max3_f32 v{M}, v{M}, v{v[6]}, v{v[7]}
v_max3_f32 v{T}, v{T}, v{v[8]}, v{v[9]}
v_max3_f32 v{M}, v{M}, v{v[10]}, v{v[11]}
v_max_f32 v{M}, v{M}, v{T}
"""
        for sw in ("v_permlane32_swap_b32", "v_permlane16_swap_b32"):
            s += f"v_mov_b32 v{T}, v{M}\n{sw} v{T}, v{M}\nv_max_f32 v{M}, v{M}, v{T}\n"
        s += f"v_mul_f32 v{M}, s{S_C0}, v{M}\n"
        for i in range(0, 12, 2):
            s += f"v_pk_fma_f32 {vr(v[i],2)}, {vr(v[i],2)}, {sr(S_C0,2)}, {vr(M,2)} op_sel_hi:[1,1,0] neg_lo:[0,0,1] neg_hi:[0,0,1]\n"
        for x in v:
            s += f"v_exp_f32 v{x}, v{x}\n"
        s += f"v_pk_add_f32 {vr(U0,2)}, {vr(v[0],2)}, {vr(v[2],2)}\nv_pk_add_f32 {vr(U1,2)}, {vr(v[4],2)}, {vr(v[6],2)}\n"
        s += f"v_pk_add_f32 {vr(U0,2)}, {vr(U0,2)}, {vr(v[8],2)}\nv_pk_add_f32 {vr(U1,2)}, {vr(U1,2)}, {vr(v[10],2)}\n"
        s += f"v_pk_add_f32 {vr(U0,2)}, {vr(U0,2)}, {vr(U1,2)}\nv_add_f32 v{R}, v{U0}, v{U0+1}\n"
        for sw in ("v_permlane32_swap_b32", "v_permlane16_swap_b32"):
            s += f"v_mov_b32 v{R+1}, v{R}\n{sw} v{R+1}, v{R}\nv_add_f32 v{R}, v{R}, v{R+1}\n"
        s += f"v_rcp_f32 v{R}, v{R}\n"
        for i in range(0, 12, 2):
            s += f"v_pk_mul_f32 {vr(v[i],2)}, {vr(v[i],2)}, {vr(R,2)} op_sel_hi:[1,0]\n"
        a, c2 = v[0], v[8]
        for i in range(4):
            s += f"v_cvt_pk_bf16_f32 v{a+i}, v{v[2*i]}, v{v[2*i+1]}\n"
        for i in range(2):
            s += f"v_cvt_pk_bf16_f32 v{c2+i}, v{v[8+2*i]}, v{v[9+2*i]}\n"
        return L(s + f"ds_write_b128 v{C_PW}, {vr(a,4)} offset:{st*1024}\nds_write_b64 v{C_PW+1}, {vr(c2,2)} offset:{12288+st*1024}")

    def v_reads(self, ks, dst, buf=0):
        a = (D_VA if buf == 0 else D_VA2) + ks
        return [I(f"ds_read_b128 {vr(dst+4*kt,4)}, v{a} offset:{kt*4096}") for kt in range(3)]

    def step_reads(self, q, step):
        if q < 2:
            so = W_LDS[q] - W_LDS[0]
            return [I(f"ds_read_b64_tr_b16 {vr(D_W[step]+4*(2*kk+t)+2*i,2)}, v{D_EA+t} offset:{so+(2*step+kk)*4096+i*512}")
                    for kk in range(2) for t in range(2) for i in range(2)]
        pos, r4 = divmod(q - 2, 4)
        sl = q % 5
        base, so = (D_WA, W_LDS[sl] - W_LDS[0]) if sl < 3 else (D_WA2, W_LDS[sl] - W_LDS[3])
        w = [I(f"ds_read_b64_tr_b16 {vr(D_W[step]+4*t+2*i,2)}, v{base+t} offset:{so+step*8192+i*1024}")
             for t in range(4) for i in range(2)]
        if q < 4:
            return w
        v = self.v_reads(2 * (r4 & 1) + step, D_V[step], pos % 2)
        return [v[0], w[0], w[1], v[1], v[2]] + w[2:]

    def p_reads(self, f, s):
        return [I(f"ds_read_b128 {vr(D_P[s]+4*st,4)}, v{D_PA} offset:{f*6144+st*1024}") for st in range(3)]

    def vw(self, t, kt):
        return D_VW + (t * 3 + kt) * 4

    def cvt_tile(self, t, f01, f2, h):
        r = []
        for kt in range(3):
            s = self.vw(t, kt)
            d = f01 + 2 * kt if kt < 2 else f2 + 2 * h
            r += L(f"v_cvt_pk_bf16_f32 v{d}, v{s}, v{s+1}\nv_cvt_pk_bf16_f32 v{d+1}, v{s+2}, v{s+3}")
        return r

    def finals(self, outb, fb, ps, nt, first=False):
        return [mfma(outb + (t * 3 + st) * 4, fb + 4 * t, D_P[ps] + 4 * st, None if first else outb + (t * 3 + st) * 4)
                for t in range(nt) for st in range(3)]

    def blocks(self, base, soff):
        val, sto = [], []
        for st in range(3):
            a, b = base + 4 * st, base + 12 + 4 * st
            val += L(f"""
v_cvt_pk_bf16_f32 v{a}, v{a}, v{a+1}
v_cvt_pk_bf16_f32 v{a+1}, v{a+2}, v{a+3}
v_cvt_pk_bf16_f32 v{a+2}, v{b}, v{b+1}
v_cvt_pk_bf16_f32 v{a+3}, v{b+2}, v{b+3}
""")
            sto.append(I(f"buffer_store_dwordx4 {vr(a,4)}, v{X_LIN}, {sr(R_WS,4)}, s{soff} offen offset:{st*1024} sc1"))
        return val, sto

    def main_block(self):
        o = self.o
        b = []
        b += self.p1_reads(0, 0, 0)
        for n in range(9):
            mA = self.p1_mfmas(0, n == 0)
            mB = self.p1_mfmas(1, False)
            b += self.p1_reads(1, 1, n) + mA + self.bar([mA[o.ck1]], drain=True)
            if o.stp1:
                b += [self.anchor(x, mA[-1]) for x in self.st(f"cycA{n}")]
            if n < 8:
                b += self.p1_reads(0, 0, n + 1)
            else:
                for p in range(4):
                    for kt in range(3):
                        for e in range(2):
                            b.append(I(f"ds_read_b64 {vr(self.kfrag(kt,p)+2*e,2)}, v{C_KA+2*p+e} offset:{kt*4096}"))
            b += mB
        b += [self.anchor(x, mB[-1]) for x in self.st("Qdone") + self.st("cyc1")]
        qk = []
        for st in range(3):
            for p in range(4):
                a, c = acc(2 * p, st), acc(2 * p + 1, st)
                b += L(f"""
v_cvt_pk_bf16_f32 v{a}, v{a}, v{a+1}
v_cvt_pk_bf16_f32 v{a+1}, v{a+2}, v{a+3}
v_cvt_pk_bf16_f32 v{a+2}, v{c}, v{c+1}
v_cvt_pk_bf16_f32 v{a+3}, v{c+2}, v{c+3}
""")
            m = [mfma(self.sacc(kt, st), self.kfrag(kt, p), acc(2 * p, st), None if p == 0 else self.sacc(kt, st))
                 for p in range(4) for kt in range(3)]
            qk += m
            b += m
        b += self.bar(qk)
        first = []
        for ks in range(4):
            first += self.v_reads(ks, self.VHOLD[ks])
        w0 = self.step_reads(0, 0)
        b += first[0:3] + w0[0:4] + first[3:6] + w0[4:8] + first[6:12]
        if o.w5first:
            b += self.step_reads(0, 1)
        for st in range(3):
            b += self.softmax(st)
        b += self.bar(drain=True)
        b += self.st("Pw") + self.st("cycP")
        b += gather_lanes(o, X_OUT, X_FL)
        NV = D_OUTE + 12
        EF = [D_OUTM, D_OUTM + 8, D_OUTM + 16]
        for q in range(18):
            pos, r4 = divmod(q - 2, 4) if q >= 2 else (0, -1)
            vwm = []
            for step in range(2):
                if q < 2:
                    vwm.append([mfma(self.vw(2 * q + t, kt), self.VHOLD[2 * step + kk] + 4 * kt, D_W[step] + 4 * (2 * kk + t),
                                     None if (step == 0 and kk == 0) else self.vw(2 * q + t, kt))
                                for kk in range(2) for t in range(2) for kt in range(3)])
                else:
                    ks = 2 * (r4 & 1) + step
                    vb = self.VHOLD[ks] if q in (2, 3) else D_V[step]
                    vwm.append([mfma(self.vw(t, kt), vb + 4 * kt, D_W[step] + 4 * t, None if ks == 0 else self.vw(t, kt))
                                for t in range(4) for kt in range(3)])
            fin, pr = [], []
            if q == 3:
                fin, pr = self.finals(D_OUTE, EF[0], 0, 2, first=True), self.p_reads(0, 0)
            elif q == 4:
                fin = self.finals(D_OUTE, EF[1], 1, 2) + self.finals(D_OUTE, EF[2], 0, 2)
                pr = self.p_reads(1, 1) + self.p_reads(2, 0)
            elif q >= 2 and r4 == 3:
                fin, pr = self.finals(D_OUTM, D_F01, 1, 4, first=(pos == 0)), self.p_reads(0, 1)
            elif q >= 6 and r4 == 0:
                fin, pr = self.finals(D_OUTM, D_F01, 0, 4), self.p_reads(1, 0)
            elif q >= 6 and r4 == 1:
                fin, pr = self.finals(D_OUTM, D_F2, 1, 4), self.p_reads(2, 1)
            mA = vwm[0] + fin
            lt = []
            if q == o.exq:
                val, sto = self.blocks(D_OUTE, S_ES)
                lt = val + [self.anchor(sto[0], mA[min(len(mA) - 1, o.exi)])] + sto[1:] + \
                    L(f"buffer_load_dwordx2 {vr(NV,2)}, v{X_L0}, {sr(R_DBG,4)}, 0 offen sc1")
            if q == o.exf:
                lt = L(f"s_waitcnt vmcnt(0)\nbuffer_store_dwordx2 {vr(NV,2)}, v{X_L0}, {sr(R_WS,4)}, s{S_EF} offen sc1")
                self.anchor(lt[0], mA[o.dpos - 3])
                lt[0].wr = {NV, NV + 1}
                lt += L(f"v_readfirstlane_b32 s{S_NON}, v{NV}\nv_readfirstlane_b32 s{S_NON+1}, v{NV+1}")
            r1 = [] if (q == 0 and o.w5first) else self.step_reads(q, 1)
            b += pr + (lt + r1 if (o.exi < 8 and q == o.exq) else r1 + lt) + mA
            if q % 2 == 1:
                b += self.bar([mA[min(o.dpos, len(mA) - 2)]], drain=True)
                if o.stp2:
                    b += [self.anchor(x, mA[-1]) for x in self.st(f"cycB{q}")]
            b += self.step_reads(q + 1, 0) if q < 17 else self.p_reads(1, 0) + self.p_reads(2, 1)
            b += vwm[1]
            if q < 2:
                for t in range(2):
                    b += self.cvt_tile(2 * q + t, EF[q] + 4 * t, EF[2] + 4 * t, q)
            elif r4 & 1:
                for t in range(4):
                    b += self.cvt_tile(t, D_F01 + 4 * t, D_F2 + 4 * t, r4 >> 1)
        f1 = self.finals(D_OUTM, D_F01, 0, 4)
        f2 = self.finals(D_OUTM, D_F2, 1, 4)
        for tp in range(2):
            b += f1[6 * tp:6 * tp + 6] + f2[6 * tp:6 * tp + 6]
        b += [self.anchor(x, f2[-1]) for x in self.st("P2done") + self.st("cyc2")]
        for tp in range(2):
            val, sto = self.blocks(D_OUTM + 24 * tp, S_MS + tp)
            b += val
            if o.own and not o.inblk:
                self.final_stores = getattr(self, "final_stores", []) + sto
            else:
                b += sto
        return b

    def gen(self):
        o = self.o
        self.startup()
        Sched.FILL, Sched.DS_LAT, Sched.DS_SCALE, Sched.WAR_DS, Sched.WAR_MEM, Sched.MFMA_LAT = \
            o.fill, o.dslat, o.dsscale, o.wards, o.warmem, o.mlat
        self.c += schedule(self.main_block())
        print("modelled cycles:", schedule.last_time)
        NV = D_OUTE + 12
        flag = L(f"s_waitcnt vmcnt(0)\nbuffer_store_dwordx2 {vr(NV,2)}, v{X_L0}, {sr(R_WS,4)}, s{S_MF} offen sc1")
        if o.own:
            self.A(f"s_cmp_eq_u32 s{S_W}, s{S_KQ}\ns_cbranch_scc1 L_own")
            self.c += getattr(self, "final_stores", []) + L("s_barrier") + flag + L("s_branch L_ownd\nL_own:")
            for i in range(6):
                self.A(f"ds_write_b128 v{X_LIN}, {vr(D_OUTM + 24 * (i // 3) + 4 * (i % 3), 4)} offset:{OWN_LDS + i * 1024}")
            self.A("s_waitcnt lgkmcnt(0)\ns_barrier")
            if o.lfirst:
                self.A(f"s_sleep {o.lfirst}")
            self.A("L_ownd:")
        else:
            if o.fbar:
                self.A("s_barrier")
            self.c += flag
        self.c += self.st("stored")
        self.c += gather_main(o, "L_gc", X_LIN, X_OUT, X_FL)
        if o.stamps:
            self.A("s_waitcnt vmcnt(0)")
            self.c += self.st("end")
            self.c += self.st.dump(0)
        self.A("s_endpgm\nWc_end:")
        return self.c


def generate(o):
    ld, cp = Loader(o), Compute(o)
    body = finalize(prologue(o)) + finalize(ld.gen()) + finalize(cp.gen(), age=o.age)
    if o.walk:
        body = add_stubs(body, [("Wl_begin", "L_compute", "Wl", 4, "Wl_ret"), ("Wc_begin", "Wc_end", "Wc", 4, "Wc_ret")],
                         prefix=f"{NAME}:\n", smart=0)
    hdr = open("concat_heads__gqa_block_cached__gqa_block_cached__near_ridge.s.ref").read().split("\n")
    head = [l for l in hdr if l.startswith(";") and "@launch" not in l]
    s = "\n".join(head) + f"\n; @launch grid=(256,1,1) block=(512,1,1) lds={LDS_BYTES}\n"
    s += f'.amdgcn_target "amdgcn-amd-amdhsa--gfx950"\n.text\n.globl {NAME}\n.p2align 8\n.type {NAME},@function\n{NAME}:\n'
    s += text(body) + "\nL_end:\n    s_endpgm\n"
    s += f""".section .rodata,"a"
.p2align 6
.amdhsa_kernel {NAME}
  .amdhsa_next_free_vgpr 256
  .amdhsa_next_free_sgpr 102
  .amdhsa_accum_offset 256
  .amdhsa_group_segment_fixed_size 0
  .amdhsa_kernarg_size 104
  .amdhsa_user_sgpr_count 2
  .amdhsa_user_sgpr_kernarg_segment_ptr 1
  .amdhsa_system_sgpr_workgroup_id_x 1
.end_amdhsa_kernel
"""
    return s, ld.st.names, cp.st.names


if __name__ == "__main__":
    o = Opt()
    out = sys.argv[1]
    for a in sys.argv[2:]:
        k, v = a.split("=")
        cur = getattr(o, k)
        setattr(o, k, (v == "1") if isinstance(cur, bool) else type(cur)(v))
    s, ln, cn = generate(o)
    open(out, "w").write(s)
    if o.stamps:
        open(out + ".names", "w").write(repr((cn, ln, 0, WS_STAMP)))
    print("generated", out, len(s.splitlines()), "lines")
```

```python
import sys
from asmlib import *

NAME = "concat_heads__gqa_block_cached__gqa_block_cached__near_ridge_kernel"


class Opt:
    stamps = False
    stp1 = False
    stp2 = False
    ldexit = False
    walk = False
    refresh = 5
    rot = 2
    rotoff = 5
    kpos = -1
    budget = 11
    budget1 = 11
    budget0 = 99
    flip = True
    cqrot = 1
    w5first = False
    earlyflag = True
    exq = 5
    exi = 10
    exf = 9
    expoll = 13
    inblk = True
    dg_plain = 0
    wbat = 13
    dg_gap = 0
    dg_gapn = 4
    dg_gapall = 0
    own = True
    fill = 5
    dslat = 120
    dsscale = 1.15
    wards = 8
    warmem = 160
    mlat = 56
    ck1 = 22
    dpos = 13
    age = 24
    gsleep = 0
    fbar = False
    lfirst = 0
    prio_loader = 0
    prio_compute = 0


SLOT = 45056
A_SLOT = [0, SLOT, 2 * SLOT]
K_LDS = 3 * SLOT
P_LDS = K_LDS
V_LDS = [0, 110592]
W_LDS = [24576, 45056, 61440, 77824, 94208]
LDS_BYTES = 163840

WS_P = 0
WS_PM = 256 * 18432
WS_PE = WS_PM + 256 * 24576
WS_FLAG = WS_PE + 256 * 12288
WS_FLAG2 = WS_FLAG + 256 * 128
WS_STAMP = WS_FLAG2 + 256 * 128
OWN_LDS = 0
WS_USED = WS_STAMP + 256 * 512

S_X, S_K, S_V, S_WQ, S_WO = 4, 6, 8, 10, 12
S_OUT, S_DBG, S_WS = 14, 16, 18
R_X, R_WQ, R_K, R_V, R_WO, R_WS, R_OUT, R_DBG = 20, 24, 28, 32, 36, 40, 44, 48
S_BR, S_KQ, S_BP, S_JL, S_J, S_CQ, S_W, S_KC = 52, 53, 54, 55, 56, 57, 58, 59
S_T0, S_T1, S_T2, S_T3, S_T4, S_T5 = 60, 61, 62, 63, 64, 65
S_NON = 66
S_GRP = 68
S_CNT = 69
S_EX = 70
S_EI, S_EO = 70, 71
S_C0 = 72
S_ES, S_EF, S_MS = 74, 75, 100
S_F0, S_F1 = 4, 5
S_GI = 6
S_GO, S_FL, S_MF = 10, 11, 12
S_ST = 76
NSTAMP = 12
SPIN_MAX = 200000


def L(s):
    return [I(x) for x in s.strip().split("\n") if x.strip()]


class Stamper:
    def __init__(self, on):
        self.on, self.n, self.names, self.only = on, 0, [], None

    def __call__(self, name):
        if not self.on or (self.only and not name.startswith(self.only) and name not in ("start", "cyc0")):
            return []
        assert self.n < NSTAMP
        r = S_ST + 2 * self.n
        self.n += 1
        self.names.append(name)
        return [I(f"{'s_memtime' if name.startswith('cyc') else 's_memrealtime'} {sr(r,2)}")]

    def dump(self, role):
        if not self.on:
            return []
        tag = "cl"[role]
        o = L(f"""
s_cmp_lg_u32 s{S_W}, 0
s_cbranch_scc1 L_nostamp_{tag}
s_waitcnt lgkmcnt(0)
s_lshl_b32 s{S_T0}, s2, 9
s_add_u32 s{S_T0}, s{S_T0}, {WS_STAMP + role*256}
v_mov_b32 v1, 0
s_mov_b64 exec, 1
""")
        for i in range(self.n):
            o += L(f"""
v_mov_b32 v2, s{S_ST+2*i}
v_mov_b32 v3, s{S_ST+2*i+1}
buffer_store_dwordx2 v[2:3], v1, {sr(R_WS,4)}, s{S_T0} offen offset:{8*i}
s_nop 1
""")
        o += L(f"s_mov_b64 exec, -1\nL_nostamp_{tag}:")
        return o


def srd(r, ptr, size):
    return L(f"""
s_mov_b32 s{r}, s{ptr}
s_and_b32 s{r+1}, s{ptr+1}, 0xffff
s_mov_b32 s{r+2}, {size}
s_mov_b32 s{r+3}, 0x20000
""")


def srd_off(r, ptr, soff, total):
    return L(f"""
s_add_u32 s{r}, s{ptr}, s{soff}
s_addc_u32 s{r+1}, s{ptr+1}, 0
s_and_b32 s{r+1}, s{r+1}, 0xffff
s_sub_u32 s{r+2}, {total}, s{soff}
s_mov_b32 s{r+3}, 0x20000
""")


def walk_entry(tag):
    c = L("s_mov_b64 exec, 0")
    for w in range(3):
        c += L(f"s_cmp_eq_u32 s{S_W}, {w}\ns_cbranch_scc1 {tag}_w{w}")
    c += L(f"s_branch {tag}_w3\n{tag}_ret:\ns_mov_b64 exec, -1")
    return c


def prologue(o):
    return L(f"""
s_and_b32 s{S_T0}, s2, 7
s_lshr_b32 s{S_BR}, s{S_T0}, 2
s_mul_i32 s{S_T1}, s{S_BR}, 40
s_load_dwordx8 s[4:11], s[0:1], s{S_T1}
s_load_dwordx2 s[12:13], s[0:1], s{S_T1} offset:32
s_load_dwordx2 s[14:15], s[0:1], 80
s_load_dwordx4 s[16:19], s[0:1], 88
s_cmp_ge_u32 s2, 256
s_cbranch_scc1 L_end
v_lshrrev_b32 v1, 6, v0
s_and_b32 s{S_KQ}, s{S_T0}, 3
s_lshr_b32 s{S_T2}, s2, 3
v_readfirstlane_b32 s{S_W}, v1
s_lshr_b32 s{S_BP}, s{S_T2}, 2
s_and_b32 s{S_JL}, s{S_T2}, 3
s_lshl_b32 s{S_J}, s{S_KQ}, 2
s_add_u32 s{S_J}, s{S_J}, s{S_JL}
v_and_b32 v0, 63, v0
s_cmp_lt_u32 s{S_W}, 4
s_cbranch_scc1 L_compute
""")


def common_scalars(o):
    return L(f"""
s_mul_i32 s{S_CQ}, s{S_BP}, {o.cqrot}
s_add_u32 s{S_CQ}, s{S_JL}, s{S_CQ}
s_and_b32 s{S_CQ}, s{S_CQ}, 3
s_lshl_b32 s{S_GRP}, s{S_BR}, 3
s_add_u32 s{S_GRP}, s{S_GRP}, s{S_BP}
s_lshl_b32 s{S_GRP}, s{S_GRP}, 4
s_mul_i32 s{S_T0}, s{S_BR}, 1152
""") + srd_off(R_OUT, S_OUT, S_T0, 1769472) + srd(R_WS, S_WS, WS_USED) + srd(R_DBG, S_DBG, 256)


def gather_scalars(o, m):
    c = L(f"""
s_add_u32 s{S_T0}, s{S_GRP}, s{S_JL}
s_lshl_b32 s{S_T0}, s{S_T0}, 2
s_add_u32 s{S_T0}, s{S_T0}, s{S_KQ}
s_mul_i32 s{S_T0}, s{S_T0}, 6
s_add_u32 s{S_T0}, s{S_T0}, s{m}
s_lshl_b32 s{S_T0}, s{S_T0}, 10
s_add_u32 s{S_T0}, s{S_T0}, {WS_PM}
""")
    for k in range(4):
        if o.own:
            if k < 3:
                c += L(f"""
s_add_u32 s{S_T1}, s{S_KQ}, {k+1}
s_and_b32 s{S_T1}, s{S_T1}, 3
s_mul_i32 s{S_T1}, s{S_T1}, {4*24576}
s_add_u32 s{S_GI+k}, s{S_T0}, s{S_T1}
""")
            else:
                c += L(f"s_lshl_b32 s{S_GI+3}, s{m}, 10")
        else:
            c += L(f"s_add_u32 s{S_GI+k}, s{S_T0}, {k*4*24576}")
    return c + L(f"""
s_cmp_ge_u32 s{m}, 3
s_cselect_b32 s{S_T1}, 1, 0
s_mul_i32 s{S_T2}, s{S_T1}, 3
s_sub_u32 s{S_T2}, s{m}, s{S_T2}
s_lshr_b32 s{S_T3}, s{S_KQ}, 1
s_lshl_b32 s{S_T0}, s{S_BP}, 1
s_add_u32 s{S_T3}, s{S_T3}, s{S_T0}
s_mul_i32 s{S_T3}, s{S_T3}, 48
s_lshl_b32 s{S_T2}, s{S_T2}, 4
s_add_u32 s{S_T3}, s{S_T3}, s{S_T2}
s_mul_i32 s{S_T3}, s{S_T3}, 2304
s_lshl_b32 s{S_T2}, s{S_CQ}, 8
s_add_u32 s{S_T3}, s{S_T3}, s{S_T2}
s_and_b32 s{S_T2}, s{S_KQ}, 1
s_lshl_b32 s{S_T2}, s{S_T2}, 7
s_add_u32 s{S_T3}, s{S_T3}, s{S_T2}
s_lshl_b32 s{S_T1}, s{S_T1}, 6
s_add_u32 s{S_GO}, s{S_T3}, s{S_T1}
s_add_u32 s{S_FL}, s{S_GRP}, s{S_J}
s_lshl_b32 s{S_FL}, s{S_FL}, 7
s_add_u32 s{S_FL}, s{S_FL}, {WS_FLAG2}
""")


def gather_lanes(o, vout, vfl):
    c = L(f"""
v_and_b32 v{vout}, 15, v0
v_mul_u32_u24 v{vout}, 2304, v{vout}
v_bfe_u32 v{vout+1}, v0, 4, 1
v_lshl_add_u32 v{vout}, v{vout+1}, 5, v{vout}
v_lshrrev_b32 v{vout+1}, 5, v0
v_lshl_add_u32 v{vout}, v{vout+1}, 4, v{vout}
v_and_b32 v{vfl}, 3, v0
""")
    if o.own:
        c += L(f"v_min_u32 v{vfl}, 2, v{vfl}\nv_add3_u32 v{vfl}, v{vfl}, s{S_KQ}, 1\nv_and_b32 v{vfl}, 3, v{vfl}")
    return c + L(f"v_lshlrev_b32 v{vfl}, 3, v{vfl}")


def unpack_add(dst, src, first, t):
    r = []
    for i in range(4):
        if first:
            r += L(f"v_lshlrev_b32 v{dst+2*i}, 16, v{src+i}\nv_and_b32 v{dst+2*i+1}, 0xffff0000, v{src+i}")
        else:
            tt = t + 2 * (i & 1)
            r += L(f"""
v_lshlrev_b32 v{tt}, 16, v{src+i}
v_and_b32 v{tt+1}, 0xffff0000, v{src+i}
v_pk_add_f32 v[{dst+2*i}:{dst+2*i+1}], v[{dst+2*i}:{dst+2*i+1}], v[{tt}:{tt+1}]
""")
    return r


GB = 96


def gather_main(o, label, vlin, vout, vfl):
    c = []
    n = 3 if o.own else 4
    if o.own:
        c += L(f"v_add_u32 v{GB+24}, s{S_GI+3}, v{vlin}\nds_read_b128 {vr(GB+12,4)}, v{GB+24} offset:{OWN_LDS}")
        c += unpack_add(GB + 16, GB + 12, True, GB + 24)
    c += L(f"""
s_mov_b32 s{S_CNT}, {SPIN_MAX}
{label}:
buffer_load_dwordx2 {vr(GB+28,2)}, v{vfl}, {sr(R_WS,4)}, s{S_FL} offen sc1
s_sub_u32 s{S_CNT}, s{S_CNT}, 1
s_waitcnt vmcnt(0)
v_cmp_ne_u64 vcc, {sr(S_NON,2)}, {vr(GB+28,2)}
s_cbranch_vccz {label}d
{f's_sleep {o.gsleep}' if o.gsleep else ''}
s_cmp_lg_u32 s{S_CNT}, 0
s_cbranch_scc1 {label}
{label}d:
""")
    for k in range(n):
        c += L(f"buffer_load_dwordx4 {vr(GB+4*k,4)}, v{vlin}, {sr(R_WS,4)}, s{S_GI+k} offen sc1")
    for k in range(n):
        c += L(f"s_waitcnt vmcnt({n-1-k})") + unpack_add(GB + 16, GB + 4 * k, k == 0 and not o.own, GB + 24)
    s = GB + 16
    return c + L(f"""
v_cvt_pk_bf16_f32 v{GB}, v{s}, v{s+1}
v_cvt_pk_bf16_f32 v{GB+1}, v{s+2}, v{s+3}
v_cvt_pk_bf16_f32 v{GB+2}, v{s+4}, v{s+5}
v_cvt_pk_bf16_f32 v{GB+3}, v{s+6}, v{s+7}
v_permlane16_swap_b32 v{GB}, v{GB+2}
v_permlane16_swap_b32 v{GB+1}, v{GB+3}
buffer_store_dwordx4 {vr(GB,4)}, v{vout}, {sr(R_OUT,4)}, s{S_GO} offen
""")


V_WQ = 8
V_XO = 16
V_KV = 19
V_WM = 25
V_WE = 29
V_LIN = 33
V_T = 34
V_FL = 60
V_SV = 66
V_W2 = 140
V_EA, V_MO, V_MF = 144, 156, 158


class Loader:
    SB_WQ, SB_X, SB_KV, SB_W, SB_P0, SB_P12 = 72, 73, 74, 75, 100, 101

    def __init__(self, o):
        self.o, self.c, self.issued, self.q = o, [], [], []
        self.st = Stamper(o.stamps)

    def A(self, s):
        self.c += L(s)

    def wait_for(self, tags):
        last = max([i for i, t in enumerate(self.issued) if t in tags], default=-1)
        if last < 0:
            return
        self.A(f"s_waitcnt vmcnt({len(self.issued) - 1 - last})")
        self.issued = self.issued[last + 1:]

    def barrier(self, tags):
        self.wait_for(tags)
        self.A("s_barrier")

    def push(self, *jobs):
        for tag, setup, items in jobs:
            self.q.append([tag, setup, list(items)])

    def pump(self, need, extra):
        while self.q:
            tag, setup, items = self.q[0]
            if any(j[0] in need for j in self.q):
                n = len(items)
            else:
                last = max([i for i, t in enumerate(self.issued) if t in need], default=-1)
                n = min(len(items), extra - (len(self.issued) - 1 - last))
                if n <= 0:
                    break
            if setup:
                self.A(setup)
            prev = None
            for (rsrc, pol, base, lds, voff, soff, half) in items[:n]:
                self.A("s_addk_i32 m0, 0x400" if prev == (base, lds - 1024) else f"s_add_u32 m0, s{base}, {lds}")
                prev = (base, lds)
                if half:
                    self.A("s_mov_b32 exec_hi, 0")
                self.A(f"buffer_load_dwordx4 v{voff}, {sr(rsrc,4)}, {soff} offen {pol} lds")
                if half:
                    self.A("s_mov_b32 exec_hi, -1")
                self.issued.append(tag)
            assert len(self.issued) <= 63
            del items[:n]
            if items:
                break
            self.q.pop(0)

    def job_s(self, n):
        o = self.o
        slot = A_SLOT[n % 3]
        if o.rot == 4 and n < 8:
            setup = f"s_xor_b32 s{S_T1}, s{S_KC}, {n}\ns_lshl_b32 s{S_T0}, s{S_T1}, 19\ns_lshl_b32 s{S_T1}, s{S_T1}, 7"
        elif o.rot in (1, 2, 3):
            setup = f"s_lshl_b32 s{S_T0}, s{S_KC}, 19\ns_lshl_b32 s{S_T1}, s{S_KC}, 7" if n == 0 else f"""
s_add_u32 s{S_T1}, s{S_KC}, {n}
s_cmp_ge_u32 s{S_T1}, 9
s_cselect_b32 s{S_T0}, 9, 0
s_sub_u32 s{S_T1}, s{S_T1}, s{S_T0}
s_lshl_b32 s{S_T0}, s{S_T1}, 19
s_lshl_b32 s{S_T1}, s{S_T1}, 7
"""
        else:
            setup = f"s_mov_b32 s{S_T0}, {n << 19}\ns_movk_i32 s{S_T1}, {n << 7}"
        it = [(R_X, "", self.SB_X, slot + 32768 + u * 1024, V_XO + u, f"s{S_T1}", False) for u in range(3)]
        it += [(R_WQ, "", self.SB_WQ, slot + u * 1024, V_WQ + u, f"s{S_T0}", False) for u in range(8)]
        return (f"S{n}", setup, it)

    def job_k(self):
        return ("K", "", [(R_K, "", self.SB_KV, K_LDS + u * 1024, V_KV + u, "0", False) for u in range(6)])

    def jjt(self, pos, dst):
        return f"s_add_u32 s{dst}, s{S_JL}, {pos}\ns_and_b32 s{dst}, s{dst}, 3\n"

    def job_v(self, pos):
        return (f"V{pos}", self.jjt(pos, S_T0) + f"s_mul_i32 s{S_T0}, s{S_T0}, 12288",
                [(R_V, "", self.SB_KV, V_LDS[pos % 2] + u * 1024, V_KV + u, f"s{S_T0}", False) for u in range(6)])

    def job_w(self, q, both=0):
        if q < 2:
            setup = f"s_mul_i32 s{S_T0}, s{S_JL}, {256*1152}\ns_add_u32 s{S_T0}, s{S_T0}, {q*128*1152 + 1024}"
            vb = V_WE
        else:
            pos, r = divmod(q - 2, 4)
            setup = self.jjt(pos, S_T0) + f"""
s_mul_i32 s{S_T0}, s{S_T0}, {256*1152}
s_add_u32 s{S_T0}, s{S_T0}, {(r&2)*64*1152}
s_add_u32 s{S_T0}, s{S_T0}, s{S_F0 + (r&1)}
"""
            vb = V_WM
        it = [(R_WO, "", self.SB_W, W_LDS[q % 5] + u * 1024, vb + u, f"s{S_T0}", False) for u in range(4)]
        if both:
            it += [(R_WO, "", self.SB_W, W_LDS[q % 5] + both * 8192 + u * 1024, V_W2 + u, f"s{S_T0}", False) for u in range(4)]
        return (f"W{q}", setup, it)

    def p_block(self, pos):
        return self.jjt(pos, S_T0) + f"""
s_lshl_b32 s{S_T3}, s{S_KQ}, 2
s_add_u32 s{S_T0}, s{S_T0}, s{S_T3}
s_add_u32 s{S_T0}, s{S_T0}, s{S_GRP}
s_mul_i32 s{S_T0}, s{S_T0}, 18432
"""

    def job_p(self, pos, f0, nf, tag, lds):
        sb = self.SB_P0 if nf == 1 else self.SB_P12
        setup = self.p_block(pos) + f"""
s_add_u32 s{S_T0}, s{S_T0}, s{sb}
s_add_u32 s{S_T0}, s{S_T0}, {f0*6144}
s_add_u32 s{S_T1}, s{S_T0}, 1024
s_add_u32 s{S_T2}, s{S_T0}, 2048
"""
        it = [(R_WS, "" if self.o.dg_plain & 4 else "sc1", sb, lds + u * 1024, V_LIN, f"s{S_T0+u}", nf == 1 and u == 1) for u in range(2 if nf == 1 else 3)]
        return (tag, setup, it)

    def code_touch(self):
        self.A(f"""
s_getpc_b64 s[{S_EX}:{S_EX+1}]
L_pcl:
s_sub_u32 s{S_EX}, s{S_EX}, L_pcl-{NAME}
s_subb_u32 s{S_EX+1}, s{S_EX+1}, 0
s_lshl_b32 s{S_T0}, s{S_W}, 13
v_lshlrev_b32 v{V_SV}, 7, v0
v_add_u32 v{V_SV}, s{S_T0}, v{V_SV}
v_min_u32 v{V_SV}, L_end-{NAME}, v{V_SV}
s_cmp_lt_u32 s2, 8
s_cselect_b64 exec, -1, 1
global_load_dword v{V_SV+1}, v{V_SV}, s[{S_EX}:{S_EX+1}]
s_mov_b64 exec, -1
""")
        self.issued.append("code")

    def nonce_issue(self):
        self.A(f"v_mov_b32 v{V_FL}, 0\nbuffer_load_dwordx2 v[{V_FL+2}:{V_FL+3}], v{V_FL}, {sr(R_DBG,4)}, 0 offen sc1")
        self.issued.append("non")

    def nonce_check(self):
        self.wait_for(["non"])
        self.A(f"""
s_mov_b32 s{S_CNT}, {SPIN_MAX}
L_nonce:
v_readfirstlane_b32 s{S_NON}, v{V_FL+2}
v_readfirstlane_b32 s{S_NON+1}, v{V_FL+3}
s_sub_u32 s{S_CNT}, s{S_CNT}, 1
s_cmp_eq_u32 s{S_CNT}, 0
s_cbranch_scc1 L_nonce_done
s_cmp_lg_u32 s{S_NON}, 0
s_cbranch_scc1 L_nonce_done
buffer_load_dwordx2 v[{V_FL+2}:{V_FL+3}], v{V_FL}, {sr(R_DBG,4)}, 0 offen sc1
s_waitcnt vmcnt(0)
s_branch L_nonce
L_nonce_done:
""")

    def flag(self):
        self.wait_for(["pub"])
        self.A(f"""
s_add_u32 s{S_T0}, s{S_GRP}, s{S_J}
s_lshl_b32 s{S_T0}, s{S_T0}, 7
s_lshl_b32 s{S_T1}, s{S_W}, 3
s_add_u32 s{S_T0}, s{S_T0}, s{S_T1}
s_add_u32 s{S_T0}, s{S_T0}, {WS_FLAG}
s_mov_b64 exec, 1
buffer_store_dwordx2 v[{V_FL+2}:{V_FL+3}], v{V_FL}, {sr(R_WS,4)}, s{S_T0} offen {'' if self.o.dg_plain & 2 else 'sc1'}
s_mov_b64 exec, -1
""")
        self.issued.append("flag")

    def publish_setup(self, split):
        self.A(self.p_block(0) + (f"s_and_b32 s{S_T1}, s{S_W}, 1\ns_mul_i32 s{S_T1}, s{S_T1}, 9216" if split else
                                  f"s_mul_i32 s{S_T1}, s{S_W}, 4608") + f"""
s_add_u32 s{S_T0}, s{S_T0}, s{S_T1}
s_add_u32 s{S_T1}, s{S_T1}, {P_LDS}
v_add_u32 v{V_T+4}, s{S_T1}, v{V_LIN}
s_add_u32 s{S_T1}, s{S_T0}, 4096
s_add_u32 s{S_T2}, s{S_T0}, 8192
""")

    def publish(self, split):
        n = 9 if split else 5
        for u in range(n):
            self.A(f"ds_read_b128 {vr(96+4*u,4)}, v{V_T+4} offset:{u*1024}")
        for u in range(n):
            half = not split and u == 4
            if half:
                self.A("s_waitcnt lgkmcnt(0)\ns_mov_b32 exec_hi, 0")
            self.A(f"buffer_store_dwordx4 {vr(96+4*u,4)}, v{V_LIN}, {sr(R_WS,4)}, s{S_T0+u//4} offen offset:{(u%4)*1024} {'' if self.o.dg_plain & 1 else 'sc1'}")
            if half:
                self.A("s_mov_b32 exec_hi, -1")
            self.issued.append("pub")

    def flags_setup(self, split):
        self.A(f"""
{f'v_bfe_u32 v{V_T}, v0, 1, 2' if split else f'v_bfe_u32 v{V_T}, v0, 2, 2'}
{f'v_and_or_b32 v{V_T+1}, v0, 1, 2' if split else f'v_and_b32 v{V_T+1}, 3, v0'}
v_lshlrev_b32 v{V_T}, 7, v{V_T}
v_lshl_add_u32 v{V_T}, v{V_T+1}, 3, v{V_T}
s_lshl_b32 s{S_T5}, s{S_KQ}, 2
s_add_u32 s{S_T5}, s{S_T5}, s{S_GRP}
s_lshl_b32 s{S_T5}, s{S_T5}, 7
s_add_u32 s{S_T5}, s{S_T5}, {WS_FLAG}
""")

    def flags_sample(self):
        self.A(f"buffer_load_dwordx2 v[{V_T+4}:{V_T+5}], v{V_T}, {sr(R_WS,4)}, s{S_T5} offen sc1")
        self.issued.append("smp")

    def flags_wait(self):
        self.wait_for(["smp"])
        self.A(f"""
s_mov_b32 s{S_CNT}, {SPIN_MAX}
L_poll:
v_cmp_ne_u64 vcc, {sr(S_NON,2)}, v[{V_T+4}:{V_T+5}]
s_cbranch_vccz L_polld
s_sub_u32 s{S_CNT}, s{S_CNT}, 1
s_cmp_eq_u32 s{S_CNT}, 0
s_cbranch_scc1 L_polld
buffer_load_dwordx2 v[{V_T+4}:{V_T+5}], v{V_T}, {sr(R_WS,4)}, s{S_T5} offen sc1
s_waitcnt vmcnt(0)
s_branch L_poll
L_polld:
""")

    def extra_setup(self):
        E = V_EA
        self.A(f"""
v_lshrrev_b32 v{E+8}, 2, v0
v_lshlrev_b32 v{E+8}, 7, v{E+8}
v_and_b32 v{E+9}, 3, v0
v_lshl_add_u32 v{E+8}, v{E+9}, 3, v{E+8}
s_lshl_b32 s{S_T4}, s{S_GRP}, 7
s_add_u32 s{S_T4}, s{S_T4}, {WS_FLAG + 64}
s_mul_i32 s{S_T0}, s{S_J}, 48
s_mul_i32 s{S_T1}, s{S_W}, 12
s_add_u32 s{S_T0}, s{S_T0}, s{S_T1}
v_and_b32 v{E+9}, 15, v0
v_min_u32 v{E}, 11, v{E+9}
v_add_u32 v{E}, s{S_T0}, v{E}
v_lshrrev_b32 v{E+2}, 6, v{E}
v_and_b32 v{E+3}, 63, v{E}
v_mul_u32_u24 v{E+4}, 0x56, v{E+2}
v_lshrrev_b32 v{E+4}, 8, v{E+4}
v_mul_u32_u24 v{E+5}, 3, v{E+4}
v_sub_u32 v{E+5}, v{E+2}, v{E+5}
v_lshrrev_b32 v{E+6}, 1, v{E+4}
v_mul_u32_u24 v{E+6}, 48, v{E+6}
v_lshl_add_u32 v{E+6}, v{E+5}, 4, v{E+6}
v_and_b32 v{E+7}, 15, v{E+3}
v_add_u32 v{E+6}, v{E+6}, v{E+7}
v_mul_u32_u24 v{E+1}, 2304, v{E+6}
v_and_b32 v{E+7}, 1, v{E+4}
v_lshl_add_u32 v{E+1}, v{E+7}, 6, v{E+1}
v_lshrrev_b32 v{E+7}, 4, v{E+3}
v_lshl_add_u32 v{E+1}, v{E+7}, 3, v{E+1}
v_lshrrev_b32 v{E+7}, 4, v0
v_and_b32 v{E+2}, 1, v{E+7}
v_lshl_add_u32 v{E+1}, v{E+2}, 2, v{E+1}
v_lshrrev_b32 v{E+2}, 1, v{E+7}
v_lshl_add_u32 v{E+1}, v{E+2}, 5, v{E+1}
v_cmp_gt_u32 vcc, 12, v{E+9}
v_mov_b32 v{E+2}, 0x40000000
v_cndmask_b32 v{E+1}, v{E+2}, v{E+1}, vcc
s_mul_i32 s{S_EO}, s{S_BP}, {96*2304}
s_add_u32 s{S_EO}, s{S_EO}, 1024
v_mul_u32_u24 v{E+7}, {4*12288}, v{E+7}
v_lshl_add_u32 v{E}, v{E}, 4, v{E+7}
s_mul_i32 s{S_EI}, s{S_GRP}, 12288
s_add_u32 s{S_EI}, s{S_EI}, {WS_PE}
s_mov_b32 s{S_CNT}, {SPIN_MAX}
L_polle:
buffer_load_dwordx2 v[{V_T+4}:{V_T+5}], v{E+8}, {sr(R_WS,4)}, s{S_T4} offen sc1
s_sub_u32 s{S_CNT}, s{S_CNT}, 1
s_waitcnt vmcnt(0)
v_cmp_ne_u64 vcc, {sr(S_NON,2)}, v[{V_T+4}:{V_T+5}]
s_cbranch_vccz L_polled
s_sleep 2
s_cmp_lg_u32 s{S_CNT}, 0
s_cbranch_scc1 L_polle
L_polled:
""")
        self.issued = []

    def extra_loads(self):
        for k in range(4):
            self.A(f"buffer_load_dwordx4 {vr(72+4*k,4)}, v{V_EA}, {sr(R_WS,4)}, s{S_EI} offen sc1")
            self.issued.append("ex")
            if k < 3:
                self.A(f"s_add_u32 s{S_EI}, s{S_EI}, 12288")

    def extra_sum(self):
        A = self.A
        self.wait_for(["ex"])
        for k in range(4):
            self.c += unpack_add(48, 72 + 4 * k, k == 0, 56)
        for i in range(4):
            A(f"v_permlane32_swap_b32 v{48+i}, v{52+i}")
        A("""
v_pk_add_f32 v[48:49], v[48:49], v[52:53]
v_pk_add_f32 v[50:51], v[50:51], v[54:55]
v_permlane16_swap_b32 v48, v50
v_permlane16_swap_b32 v49, v51
v_pk_add_f32 v[48:49], v[48:49], v[50:51]
v_cvt_pk_bf16_f32 v56, v48, v49
""")
        A(f"buffer_store_dword v56, v{V_EA+1}, {sr(R_OUT,4)}, s{S_EO} offen")

    def gen(self):
        o = self.o
        A = self.A
        split = not o.w5first
        self.c += self.st("start")
        if o.prio_loader:
            A(f"s_setprio {o.prio_loader}")
        A(f"""
s_sub_u32 s{S_W}, s{S_W}, 4
v_lshrrev_b32 v1, 5, v0
v_and_b32 v2, 31, v0
v_lshlrev_b32 v2, 4, v2
v_lshlrev_b32 v3, 5, v1
v_xor_b32 v2, v2, v3
v_lshl_add_u32 v2, v1, 13, v2
s_lshl_b32 s{S_T0}, s{S_W}, 17
v_add_u32 v{V_WQ}, s{S_T0}, v2
s_movk_i32 s{S_T1}, 0x4000
v_xad_u32 v{V_WQ+1}, v{V_WQ}, 64, s{S_T1}
v_lshrrev_b32 v4, 4, v0
v_and_b32 v5, 7, v0
s_mov_b32 s{S_T2}, 0x8000
v_add_u32 v{V_WQ+2}, s{S_T2}, v{V_WQ}
v_add_u32 v{V_WQ+3}, s{S_T2}, v{V_WQ+1}
v_xor_b32 v{V_WQ+4}, 0x10080, v{V_WQ}
v_xor_b32 v{V_WQ+5}, 0x10080, v{V_WQ+1}
v_add_u32 v{V_WQ+6}, s{S_T2}, v{V_WQ+4}
v_add_u32 v{V_WQ+7}, s{S_T2}, v{V_WQ+5}
v_xor_b32 v5, v5, v4
v_lshlrev_b32 v5, 4, v5
s_and_b32 s{S_T1}, s{S_W}, 1
s_lshl_b32 s{S_T2}, s{S_T1}, 6
v_xor_b32 v5, s{S_T2}, v5
v_lshrrev_b32 v6, 3, v0
v_mul_u32_u24 v6, 1152, v6
s_mul_i32 s{S_T3}, s{S_W}, 27648
v_add3_u32 v{V_XO}, v5, v6, s{S_T3}
v_add_u32 v{V_XO+2}, 18432, v{V_XO}
v_xor_b32 v5, 64, v5
s_add_u32 s{S_T3}, s{S_T3}, 9216
v_add3_u32 v{V_XO+1}, v5, v6, s{S_T3}
s_lshl_b32 s{self.SB_WQ}, s{S_W}, 13
s_mul_i32 s{self.SB_X}, s{S_W}, 3072
s_mul_i32 s{S_T4}, s{S_BP}, 110592
s_lshl_b32 s{S_T5}, s{S_J}, 9
""")
        if o.rot == 1:
            A(f"""
s_lshl_b32 s{S_T1}, s{S_JL}, 1
s_add_u32 s{S_KC}, s{S_BP}, s{S_T1}
s_cmp_ge_u32 s{S_KC}, 9
s_cselect_b32 s{S_T1}, 9, 0
s_sub_u32 s{S_KC}, s{S_KC}, s{S_T1}
""")
        elif o.rot == 3:
            A(f"""
s_add_u32 s{S_KC}, s{S_BP}, s{S_JL}
s_mul_i32 s{S_T1}, s{S_KC}, 0x56
s_lshr_b32 s{S_T1}, s{S_T1}, 8
s_mul_i32 s{S_T1}, s{S_T1}, 3
s_sub_u32 s{S_KC}, s{S_KC}, s{S_T1}
s_mul_i32 s{S_KC}, s{S_KC}, 3
""")
        elif o.rot:
            A(f"s_add_u32 s{S_KC}, s{S_BP}, s{S_JL}\ns_and_b32 s{S_KC}, s{S_KC}, 1")
        if o.rot == 2:
            A(f"s_mul_i32 s{S_KC}, s{S_KC}, {o.rotoff}")
        A("s_waitcnt lgkmcnt(0)")
        self.c += srd_off(R_WQ, S_WQ, S_T5, 4718592)
        self.c += srd_off(R_X, S_X, S_T4, 884736)
        self.c += self.st("karg")
        self.push(self.job_s(0), self.job_s(1), self.job_s(2))
        self.pump(["S0"], o.budget0)
        self.c += self.st("S0iss")
        A(f"""
v_and_b32 v5, 15, v0
v_xor_b32 v5, v5, v4
v_lshlrev_b32 v5, 4, v5
s_and_b32 s{S_T1}, s{S_W}, 1
s_lshl_b32 s{S_T2}, s{S_T1}, 7
v_xor_b32 v5, s{S_T2}, v5
s_mul_i32 s{S_T2}, s{S_T1}, 6144
s_lshr_b32 s{S_T3}, s{S_W}, 1
s_mul_i32 s{S_T3}, s{S_T3}, 196608
s_add_u32 s{S_T2}, s{S_T2}, s{S_T3}
v_lshl_add_u32 v6, v4, 8, s{S_T2}
""")
        for u in range(6):
            cu = (u & 3) << 6
            A(f"v_xor_b32 v7, {cu}, v5\nv_add_u32 v7, v7, v6" if cu else "v_add_u32 v7, v5, v6")
            A(f"v_add_u32 v{V_KV+u}, {u*1024}, v7")
        A(f"""
s_mul_i32 s{self.SB_KV}, s{S_W}, 6144
s_lshl_b32 s{S_T0}, s{S_BP}, 5
s_add_u32 s{S_T1}, s{S_T0}, s{S_J}
s_mul_i32 s{S_T1}, s{S_T1}, 12288
s_lshl_b32 s{S_T4}, s{S_KQ}, 2
s_add_u32 s{S_T4}, s{S_T4}, s{S_T0}
s_mul_i32 s{S_T4}, s{S_T4}, 12288
s_mul_i32 s{S_T5}, s{S_KQ}, {1024*1152}
""")
        self.c += srd_off(R_K, S_K, S_T1, 3145728)
        if o.kpos < 0:
            self.push(self.job_k())
            self.pump(["K"], 0)
        self.c += srd_off(R_V, S_V, S_T4, 3145728)
        self.c += srd_off(R_WO, S_WO, S_T5, 4718592)
        self.c += common_scalars(o)
        A(f"""
v_and_b32 v5, 15, v0
v_lshlrev_b32 v6, 1, v4
v_xor_b32 v5, v5, v6
v_lshlrev_b32 v5, 4, v5
v_mul_u32_u24 v6, 1152, v4
s_mul_i32 s{S_T0}, s{S_W}, {16*1152}
v_add_u32 v6, s{S_T0}, v6
v_add_u32 v{V_WM}, v5, v6
v_add_u32 v{V_WM+1}, {4*1152}, v{V_WM}
v_xor_b32 v5, 128, v5
v_add_u32 v{V_WM+2}, v5, v6
v_add_u32 v{V_WM+2}, {8*1152}, v{V_WM+2}
v_add_u32 v{V_WM+3}, {4*1152}, v{V_WM+2}
v_and_b32 v5, 7, v0
v_and_b32 v6, 1, v4
v_lshlrev_b32 v6, 1, v6
v_xor_b32 v5, v5, v6
v_lshlrev_b32 v5, 4, v5
v_lshrrev_b32 v6, 3, v0
v_mul_u32_u24 v6, 1152, v6
s_lshr_b32 s{S_T1}, s{S_BP}, 2
s_and_b32 s{S_T1}, s{S_T1}, {1 if o.flip else 0}
s_mul_i32 s{S_F0}, s{S_T1}, {64*1152}
s_sub_u32 s{S_F1}, {64*1152}, s{S_F0}
s_lshl_b32 s{S_T2}, s{S_CQ}, 8
s_add_u32 s{S_F0}, s{S_F0}, s{S_T2}
s_add_u32 s{S_F1}, s{S_F1}, s{S_T2}
s_lshl_b32 s{S_T1}, s{S_T1}, 1
s_xor_b32 s{S_T1}, s{S_T1}, s{S_W}
s_mul_i32 s{S_T0}, s{S_T1}, {32*1152}
v_add_u32 v6, s{S_T0}, v6
v_add_u32 v{V_WE}, v5, v6
v_add_u32 v{V_WE+2}, {16*1152}, v{V_WE}
v_xor_b32 v5, 64, v5
v_add_u32 v{V_WE+1}, v5, v6
v_add_u32 v{V_WE+1}, {8*1152}, v{V_WE+1}
v_add_u32 v{V_WE+3}, {16*1152}, v{V_WE+1}
v_lshlrev_b32 v{V_LIN}, 4, v0
s_lshl_b32 s{self.SB_W}, s{S_W}, 12
s_mul_i32 s{self.SB_P0}, s{S_W}, 1536
s_mul_i32 s{self.SB_P12}, s{S_W}, 3072
s_cmp_ge_u32 s{S_W}, 2
s_cselect_b32 s{S_T0}, -1, 1
s_mul_i32 s{S_T0}, s{S_T0}, {32*1152}
v_add_u32 v{V_W2}, s{S_T0}, v{V_WM}
v_add_u32 v{V_W2+1}, s{S_T0}, v{V_WM+1}
v_add_u32 v{V_W2+2}, s{S_T0}, v{V_WM+2}
v_add_u32 v{V_W2+3}, s{S_T0}, v{V_WM+3}
""")
        self.flags_setup(split)
        if o.walk:
            self.c += walk_entry("Wl")
        A("Wl_begin:")
        self.barrier(["S0"])
        self.c += self.st("B0")
        if o.ldexit:
            A("s_endpgm")
        if o.kpos == 2:
            self.push(self.job_k())
        self.pump(["S1"], o.budget1)
        for n in range(0, 9):
            self.barrier([f"S{n+1}"] if n < 8 else ["K"])
            if n == 3:
                self.nonce_issue()
            if n + 3 <= 8:
                self.push(self.job_s(n + 3))
                if o.kpos == n + 3:
                    self.push(self.job_k())
            if n == 6:
                self.push(self.job_v(0), self.job_w(0))
            if n == 7:
                self.push(self.job_w(1), self.job_w(2))
            if n == 8:
                self.push(self.job_w(3), self.job_w(4))
            self.pump([f"S{n+2}"] if n < 7 else ["K"] if n == 7 else ["V0", "W0", "W1"], o.budget1 if n < 6 else o.budget)
            if o.refresh and n == o.refresh:
                self.code_touch()
        self.c += self.st("B9")
        self.nonce_check()
        self.barrier(["V0", "W0", "W1"])
        self.pump(["W4"], 0)
        if split:
            self.publish_setup(True)
        self.barrier([])
        self.c += self.st("B11")
        assert not self.q
        if split:
            base = list(self.issued)
            A(f"s_cmp_ge_u32 s{S_W}, 2\ns_cbranch_scc1 L_pubs")
            self.barrier(["W2", "W3"])
            self.push(self.job_w(5, both=1))
            self.pump(["W5"], 0)
            self.barrier(["W4", "W5"])
            A("s_branch L_pubd\nL_pubs:")
            self.issued = base
            self.publish(True)
            self.barrier(["W2", "W3"])
            self.push(self.job_w(6, both=-1))
            self.pump(["W6"], 0)
        else:
            self.push(self.job_w(5))
            self.pump(["W5"], 0)
            self.publish_setup(False)
            self.publish(False)
            self.barrier(["W2", "W3"])
            self.push(self.job_w(6))
            self.pump(["W6"], 0)
        if o.earlyflag:
            self.flag()
        self.barrier(["W4", "W5"])
        if not o.earlyflag:
            self.flag()
        A("L_pubd:")
        self.c += self.st("pub")

        def needs(d):
            need = [f"W{d+1}", f"W{d+2}"]
            if d % 4 == 1:
                return need + [f"V{(d-1)//4}", f"P{(d-5)//4}b"]
            return need + [f"P{(d-3)//4}a"]
        for d in range(3, 18, 2):
            if d > 3:
                self.barrier(needs(d))
            if d == 5:
                self.c += self.st("D5")
                self.flags_wait()
                self.c += self.st("polled")
            if d in (5, 9, 13):
                self.push(self.job_p((d - 1) // 4, 0, 1, f"P{(d-1)//4}a", P_LDS))
            if d in (7, 11, 15):
                self.push(self.job_p((d - 3) // 4, 1, 2, f"P{(d-3)//4}b", P_LDS + 6144))
            for q in (d + 4, d + 5):
                if q <= 17:
                    self.push(self.job_w(q))
                if d == 3 and q == 7:
                    self.push(self.job_v(1))
            if d in (5, 9):
                self.push(self.job_v((d - 5) // 4 + 2))
            self.pump(needs(d + 2), o.budget - (1 if d == 3 else 0))
            if d == 3:
                self.flags_sample()
            if d == o.wbat and o.dg_plain & 8:
                A(f"s_lshr_b32 s{S_T0}, s2, 3\ns_or_b32 s{S_T0}, s{S_T0}, s{S_W}\ns_cmp_lg_u32 s{S_T0}, 0\ns_cbranch_scc1 L_nowb\nbuffer_wbl2 sc1\nL_nowb:")
            if d == 11:
                A(f"s_add_u32 s{S_T4}, s{S_W}, 4")
                self.c += gather_scalars(o, S_T4) + gather_lanes(o, V_MO, V_MF)
            if d == o.expoll:
                self.extra_setup()
            if d == max(15, o.expoll):
                self.extra_loads()
        assert not self.q
        self.c += self.st("D17")
        self.extra_sum()
        self.c += self.st("edone")
        if o.own or o.fbar:
            A("s_barrier")
        A(f"s_cmp_ge_u32 s{S_W}, 2\ns_cbranch_scc1 L_fin_l")
        if o.lfirst:
            A(f"s_sleep {o.lfirst}")
        self.c += gather_main(o, "L_gl", V_LIN, V_MO, V_MF)
        A("L_fin_l:")
        if o.stamps:
            A("s_waitcnt vmcnt(0)")
            self.c += self.st("end")
            self.c += self.st.dump(1)
        A("s_endpgm")
        return self.c


X_FL, X_OUT, D_PA, X_LIN, X_L0 = 1, 2, 5, 6, 7
D_VA, D_VA2, D_WA, D_WA2 = 8, 12, 16, 20
C_WA, C_XA, C_PW, C_KA = 24, 32, 35, 37
D_EA = 56
C_AF = [64, 96]
C_BF = [128, 140]
C_ACC = 160
D_OUTM, D_OUTE, D_VW, D_F01, D_F2 = 24, 72, 96, 144, 160
D_V = [176, 188]
D_P = [200, 212]
D_W = [224, 240]


def acc(t, st):
    return C_ACC + (t * 3 + st) * 4


def mfma(d, a, b, c):
    cc = "0" if c is None else vr(c, 4)
    return I(f"v_mfma_f32_16x16x32_bf16 {vr(d,4)}, {vr(a,4)}, {vr(b,4)}, {cc}")


class Compute:
    SETS = [list(range(24, 34)), [45, 46, 47, 48, 49, 50, 51, 52, 53, 54], [55, 58, 59, 60, 61, 62, 63, 1, 2, 3]]
    VHOLD = [D_P[0], D_P[1], D_V[0], D_V[1]]

    def __init__(self, o):
        self.o, self.c = o, []
        self.st = Stamper(o.stamps)
        if o.stp1:
            self.st.only = "cycA"
        if o.stp2:
            self.st.only = "cycB"
        self.tok = 0

    def A(self, s):
        self.c += L(s)

    def anchor(self, ins, after):
        self.tok += 1
        t = f"tok{self.tok}"
        after.swr = after.swr | {t}
        ins.srd = ins.srd | {t}
        return ins

    def bar(self, after=None, drain=False):
        r = L("s_waitcnt lgkmcnt(0)\ns_barrier" if drain else "s_barrier")
        for a in (after or []):
            self.anchor(r[0], a)
        return r

    def p1_reads(self, kb, s, n):
        a = self.SETS[n % 3]
        r = [I(f"ds_read_b128 {vr(C_BF[s],4)}, v{a[8+kb]} offset:0")]
        for t in range(8):
            for i in range(2):
                r.append(I(f"ds_read_b64_tr_b16 {vr(C_AF[s]+4*t+2*i,2)}, v{a[t]} offset:{kb*16384+i*2048}"))
            if t == 0:
                r += [I(f"ds_read_b128 {vr(C_BF[s]+4*st,4)}, v{a[8+kb]} offset:{st*2048}") for st in (1, 2)]
        return r

    def p1_mfmas(self, s, first):
        return [mfma(acc(t, st), C_AF[s] + 4 * t, C_BF[s] + 4 * st, None if first else acc(t, st))
                for t in range(8) for st in range(3)]

    def kfrag(self, kt, p):
        i = p * 3 + kt
        if i < 8:
            return C_AF[0] + 4 * i
        if i < 11:
            return C_BF[0] + 4 * (i - 8)
        return 152

    def sacc(self, kt, st):
        i = st * 3 + kt
        return C_AF[1] + 4 * i if i < 8 else C_BF[1]

    def startup(self):
        o, A = self.o, self.A
        A("L_compute:")
        self.c += self.st("start")
        if o.prio_compute:
            A(f"s_setprio {o.prio_compute}")
        A(f"""
s_cmp_ge_u32 s2, 8
s_cbranch_scc1 L_no_pf
s_getpc_b64 s[{S_EX}:{S_EX+1}]
L_pc:
s_sub_u32 s{S_EX}, s{S_EX}, L_pc-{NAME}
s_subb_u32 s{S_EX+1}, s{S_EX+1}, 0
s_lshl_b32 s{S_T0}, s{S_W}, 13
v_lshlrev_b32 v152, 7, v0
v_add_u32 v152, s{S_T0}, v152
v_min_u32 v152, L_end-{NAME}, v152
global_load_dword v153, v152, s[{S_EX}:{S_EX+1}]
L_no_pf:
""")
        if o.walk:
            self.c += walk_entry("Wc")
        A(f"""
s_lshr_b32 s{S_T0}, s{S_W}, 1
s_and_b32 s{S_T1}, s{S_W}, 1
v_lshrrev_b32 v48, 4, v0
v_bfe_u32 v49, v0, 2, 2
v_and_b32 v50, 3, v0
v_and_b32 v51, 15, v0
v_and_b32 v52, 1, v48
v_lshl_or_b32 v52, v52, 2, v49
v_lshl_add_u32 v53, v48, 3, v49
v_lshlrev_b32 v54, 9, v53
v_lshl_add_u32 v54, v52, 5, v54
v_lshl_add_u32 v54, v50, 3, v54
s_lshl_b32 s{S_T2}, s{S_T1}, 8
v_add_u32 v{C_WA}, s{S_T2}, v54
""")
        for t in range(1, 8):
            A(f"v_xor_b32 v{C_WA+t}, {t<<5}, v{C_WA}")
        A(f"""
v_lshrrev_b32 v54, 1, v51
v_xor_b32 v54, v54, v48
v_lshlrev_b32 v54, 4, v54
v_lshl_add_u32 v54, v51, 7, v54
s_mul_i32 s{S_T2}, s{S_T0}, 6144
s_add_u32 s{S_T2}, s{S_T2}, 32768
v_add_u32 v{C_XA}, s{S_T2}, v54
v_xor_b32 v{C_XA+1}, 64, v{C_XA}
v_lshrrev_b32 v54, 1, v48
v_xor_b32 v54, v54, v51
v_lshlrev_b32 v54, 4, v54
v_lshl_add_u32 v54, v51, 8, v54
v_and_b32 v55, 1, v48
v_lshl_add_u32 v54, v55, 3, v54
s_mul_i32 s{S_T2}, s{S_T0}, 12288
s_add_u32 s{S_T3}, s{S_T2}, {K_LDS}
v_add_u32 v{C_KA}, s{S_T3}, v54
""")
        for pe in range(1, 8):
            A(f"v_xor_b32 v{C_KA+pe}, {pe<<5}, v{C_KA}")
        A(f"""
s_mul_i32 s{S_T3}, s{S_T0}, 3072
s_add_u32 s{S_T3}, s{S_T3}, {P_LDS}
v_lshl_add_u32 v{D_PA}, v0, 4, s{S_T3}
s_mul_i32 s{S_T3}, s{S_T1}, 6144
v_add_u32 v{C_PW}, s{S_T3}, v{D_PA}
s_lshl_b32 s{S_T3}, s{S_T1}, 3
v_add_u32 v{C_PW+1}, s{S_T3}, v{D_PA}
v_xor_b32 v54, v48, v51
v_lshlrev_b32 v54, 4, v54
v_lshl_add_u32 v54, v51, 8, v54
s_lshr_b32 s{S_T3}, s{S_BP}, 2
s_and_b32 s{S_T3}, s{S_T3}, {1 if o.flip else 0}
s_lshl_b32 s{S_T3}, s{S_T3}, 7
v_xor_b32 v54, s{S_T3}, v54
v_add_u32 v{D_VA}, s{S_T2}, v54
v_xor_b32 v{D_VA+1}, 64, v{D_VA}
v_xor_b32 v{D_VA+2}, 128, v{D_VA}
v_xor_b32 v{D_VA+3}, 192, v{D_VA}
v_lshlrev_b32 v54, 8, v53
v_lshl_add_u32 v54, v50, 3, v54
s_lshl_b32 s{S_T3}, s{S_T1}, 2
v_xor_b32 v55, s{S_T3}, v52
v_lshl_add_u32 v54, v55, 5, v54
v_add_u32 v{D_WA}, {W_LDS[0]}, v54
v_xor_b32 v{D_WA+1}, 32, v{D_WA}
v_xor_b32 v{D_WA+2}, 64, v{D_WA}
v_xor_b32 v{D_WA+3}, 96, v{D_WA}
v_lshlrev_b32 v54, 7, v53
v_lshl_add_u32 v54, v50, 3, v54
v_and_b32 v55, 1, v48
v_lshlrev_b32 v55, 1, v55
v_lshrrev_b32 v58, 1, v49
v_or_b32 v55, v55, v58
s_lshl_b32 s{S_T3}, s{S_T1}, 1
v_xor_b32 v55, s{S_T3}, v55
v_lshl_add_u32 v54, v55, 5, v54
v_add_u32 v{D_EA}, {W_LDS[0]}, v54
v_xor_b32 v{D_EA+1}, 32, v{D_EA}
""")
        for t in range(4):
            A(f"v_add_u32 v{D_WA2+t}, {W_LDS[3]-W_LDS[0]}, v{D_WA+t}\nv_add_u32 v{D_VA2+t}, {V_LDS[1]-V_LDS[0]}, v{D_VA+t}")
        A(f"""
v_lshlrev_b32 v{X_LIN}, 4, v0
s_mov_b32 s{S_C0}, 0x3e0293ee
s_mov_b32 s{S_C0+1}, 0x3e0293ee
v_cmp_eq_u32 vcc, 0, v0
v_mov_b32 v54, 0x40000000
v_cndmask_b32 v{X_L0}, v54, 0, vcc
""")
        for k in (1, 2):
            for i in range(10):
                A(f"v_add_u32 v{self.SETS[k][i]}, {A_SLOT[k]}, v{self.SETS[0][i]}")
        A("s_waitcnt lgkmcnt(0)")
        self.c += common_scalars(o) + gather_scalars(o, S_W)
        A(f"""
s_add_u32 s{S_T0}, s{S_GRP}, s{S_J}
s_lshl_b32 s{S_EF}, s{S_T0}, 7
s_lshl_b32 s{S_T1}, s{S_W}, 3
s_add_u32 s{S_EF}, s{S_EF}, s{S_T1}
s_add_u32 s{S_EF}, s{S_EF}, {WS_FLAG + 64}
s_lshl_b32 s{S_T0}, s{S_T0}, 2
s_add_u32 s{S_T0}, s{S_T0}, s{S_W}
s_mul_i32 s{S_ES}, s{S_T0}, 3072
s_add_u32 s{S_ES}, s{S_ES}, {WS_PE}
s_mul_i32 s{S_MS}, s{S_T0}, 6144
s_add_u32 s{S_MS}, s{S_MS}, {WS_PM}
{f's_cmp_eq_u32 s{S_W}, s{S_KQ}' if o.own else ''}
{f's_cselect_b32 s{S_MS}, 0x40000000, s{S_MS}' if o.own else ''}
s_add_u32 s{S_MS+1}, s{S_MS}, 3072
s_lshl_b32 s{S_MF}, s{S_W}, 2
s_add_u32 s{S_MF}, s{S_MF}, s{S_GRP}
s_add_u32 s{S_MF}, s{S_MF}, s{S_JL}
s_lshl_b32 s{S_MF}, s{S_MF}, 7
s_lshl_b32 s{S_T1}, s{S_KQ}, 3
s_add_u32 s{S_MF}, s{S_MF}, s{S_T1}
s_add_u32 s{S_MF}, s{S_MF}, {WS_FLAG2}
s_or_b32 s{S_T0}, s2, s{S_W}
s_cmp_lg_u32 s{S_T0}, 0
s_cbranch_scc1 L_no_nonce
s_memrealtime {sr(S_NON,2)}
s_waitcnt lgkmcnt(0)
s_or_b32 s{S_NON}, s{S_NON}, 1
v_mov_b32 v154, s{S_NON}
v_mov_b32 v155, s{S_NON+1}
s_mov_b64 exec, 1
buffer_store_dwordx2 v[154:155], v{X_LIN}, {sr(R_DBG,4)}, 0 offen sc1
s_mov_b64 exec, -1
L_no_nonce:
Wc_begin:
s_barrier
""")
        self.c += self.st("B0")
        self.c += self.st("cyc0")

    def softmax(self, st):
        M, R = 46 + 2 * st, (52, 54, 58)[st]
        T = M + 1
        U0, U1 = (60, 62) if st != 1 else (152, 154)
        v = [self.sacc(kt, st) + r for kt in range(3) for r in range(4)]
        s = f"""
v_max3_f32 v{M}, v{v[0]}, v{v[1]}, v{v[2]}
v_max3_f32 v{T}, v{v[3]}, v{v[4]}, v{v[5]}
v_max3_f32 v{M}, v{M}, v{v[6]}, v{v[7]}
v_max3_f32 v{T}, v{T}, v{v[8]}, v{v[9]}
v_max3_f32 v{M}, v{M}, v{v[10]}, v{v[11]}
v_max_f32 v{M}, v{M}, v{T}
"""
        for sw in ("v_permlane32_swap_b32", "v_permlane16_swap_b32"):
            s += f"v_mov_b32 v{T}, v{M}\n{sw} v{T}, v{M}\nv_max_f32 v{M}, v{M}, v{T}\n"
        s += f"v_mul_f32 v{M}, s{S_C0}, v{M}\n"
        for i in range(0, 12, 2):
            s += f"v_pk_fma_f32 {vr(v[i],2)}, {vr(v[i],2)}, {sr(S_C0,2)}, {vr(M,2)} op_sel_hi:[1,1,0] neg_lo:[0,0,1] neg_hi:[0,0,1]\n"
        for x in v:
            s += f"v_exp_f32 v{x}, v{x}\n"
        s += f"v_pk_add_f32 {vr(U0,2)}, {vr(v[0],2)}, {vr(v[2],2)}\nv_pk_add_f32 {vr(U1,2)}, {vr(v[4],2)}, {vr(v[6],2)}\n"
        s += f"v_pk_add_f32 {vr(U0,2)}, {vr(U0,2)}, {vr(v[8],2)}\nv_pk_add_f32 {vr(U1,2)}, {vr(U1,2)}, {vr(v[10],2)}\n"
        s += f"v_pk_add_f32 {vr(U0,2)}, {vr(U0,2)}, {vr(U1,2)}\nv_add_f32 v{R}, v{U0}, v{U0+1}\n"
        for sw in ("v_permlane32_swap_b32", "v_permlane16_swap_b32"):
            s += f"v_mov_b32 v{R+1}, v{R}\n{sw} v{R+1}, v{R}\nv_add_f32 v{R}, v{R}, v{R+1}\n"
        s += f"v_rcp_f32 v{R}, v{R}\n"
        for i in range(0, 12, 2):
            s += f"v_pk_mul_f32 {vr(v[i],2)}, {vr(v[i],2)}, {vr(R,2)} op_sel_hi:[1,0]\n"
        a, c2 = v[0], v[8]
        for i in range(4):
            s += f"v_cvt_pk_bf16_f32 v{a+i}, v{v[2*i]}, v{v[2*i+1]}\n"
        for i in range(2):
            s += f"v_cvt_pk_bf16_f32 v{c2+i}, v{v[8+2*i]}, v{v[9+2*i]}\n"
        return L(s + f"ds_write_b128 v{C_PW}, {vr(a,4)} offset:{st*1024}\nds_write_b64 v{C_PW+1}, {vr(c2,2)} offset:{12288+st*1024}")

    def v_reads(self, ks, dst, buf=0):
        a = (D_VA if buf == 0 else D_VA2) + ks
        return [I(f"ds_read_b128 {vr(dst+4*kt,4)}, v{a} offset:{kt*4096}") for kt in range(3)]

    def step_reads(self, q, step):
        if q < 2:
            so = W_LDS[q] - W_LDS[0]
            return [I(f"ds_read_b64_tr_b16 {vr(D_W[step]+4*(2*kk+t)+2*i,2)}, v{D_EA+t} offset:{so+(2*step+kk)*4096+i*512}")
                    for kk in range(2) for t in range(2) for i in range(2)]
        pos, r4 = divmod(q - 2, 4)
        sl = q % 5
        base, so = (D_WA, W_LDS[sl] - W_LDS[0]) if sl < 3 else (D_WA2, W_LDS[sl] - W_LDS[3])
        w = [I(f"ds_read_b64_tr_b16 {vr(D_W[step]+4*t+2*i,2)}, v{base+t} offset:{so+step*8192+i*1024}")
             for t in range(4) for i in range(2)]
        if q < 4:
            return w
        v = self.v_reads(2 * (r4 & 1) + step, D_V[step], pos % 2)
        return [v[0], w[0], w[1], v[1], v[2]] + w[2:]

    def p_reads(self, f, s):
        return [I(f"ds_read_b128 {vr(D_P[s]+4*st,4)}, v{D_PA} offset:{f*6144+st*1024}") for st in range(3)]

    def vw(self, t, kt):
        return D_VW + (t * 3 + kt) * 4

    def cvt_tile(self, t, f01, f2, h):
        r = []
        for kt in range(3):
            s = self.vw(t, kt)
            d = f01 + 2 * kt if kt < 2 else f2 + 2 * h
            r += L(f"v_cvt_pk_bf16_f32 v{d}, v{s}, v{s+1}\nv_cvt_pk_bf16_f32 v{d+1}, v{s+2}, v{s+3}")
        return r

    def finals(self, outb, fb, ps, nt, first=False):
        return [mfma(outb + (t * 3 + st) * 4, fb + 4 * t, D_P[ps] + 4 * st, None if first else outb + (t * 3 + st) * 4)
                for t in range(nt) for st in range(3)]

    def blocks(self, base, soff):
        val, sto = [], []
        for st in range(3):
            a, b = base + 4 * st, base + 12 + 4 * st
            val += L(f"""
v_cvt_pk_bf16_f32 v{a}, v{a}, v{a+1}
v_cvt_pk_bf16_f32 v{a+1}, v{a+2}, v{a+3}
v_cvt_pk_bf16_f32 v{a+2}, v{b}, v{b+1}
v_cvt_pk_bf16_f32 v{a+3}, v{b+2}, v{b+3}
""")
            sto.append(I(f"buffer_store_dwordx4 {vr(a,4)}, v{X_LIN}, {sr(R_WS,4)}, s{soff} offen offset:{st*1024} sc1"))
        return val, sto

    def main_block(self):
        o = self.o
        b = []
        b += self.p1_reads(0, 0, 0)
        for n in range(9):
            mA = self.p1_mfmas(0, n == 0)
            mB = self.p1_mfmas(1, False)
            b += self.p1_reads(1, 1, n) + mA + self.bar([mA[o.ck1]], drain=True)
            if (o.dg_gap and n == o.dg_gapn) or o.dg_gapall:
                g = self.anchor(I(f"s_sleep {o.dg_gap or o.dg_gapall}"), mA[-1])
                g.note = "chain"
                b.append(g)
                self.anchor(mB[0], g)
            if o.stp1:
                b += [self.anchor(x, mA[-1]) for x in self.st(f"cycA{n}")]
            if n < 8:
                b += self.p1_reads(0, 0, n + 1)
            else:
                for p in range(4):
                    for kt in range(3):
                        for e in range(2):
                            b.append(I(f"ds_read_b64 {vr(self.kfrag(kt,p)+2*e,2)}, v{C_KA+2*p+e} offset:{kt*4096}"))
            b += mB
        b += [self.anchor(x, mB[-1]) for x in self.st("Qdone") + self.st("cyc1")]
        qk = []
        for st in range(3):
            for p in range(4):
                a, c = acc(2 * p, st), acc(2 * p + 1, st)
                b += L(f"""
v_cvt_pk_bf16_f32 v{a}, v{a}, v{a+1}
v_cvt_pk_bf16_f32 v{a+1}, v{a+2}, v{a+3}
v_cvt_pk_bf16_f32 v{a+2}, v{c}, v{c+1}
v_cvt_pk_bf16_f32 v{a+3}, v{c+2}, v{c+3}
""")
            m = [mfma(self.sacc(kt, st), self.kfrag(kt, p), acc(2 * p, st), None if p == 0 else self.sacc(kt, st))
                 for p in range(4) for kt in range(3)]
            qk += m
            b += m
        b += self.bar(qk)
        first = []
        for ks in range(4):
            first += self.v_reads(ks, self.VHOLD[ks])
        w0 = self.step_reads(0, 0)
        b += first[0:3] + w0[0:4] + first[3:6] + w0[4:8] + first[6:12]
        if o.w5first:
            b += self.step_reads(0, 1)
        for st in range(3):
            b += self.softmax(st)
        b += self.bar(drain=True)
        b += self.st("Pw") + self.st("cycP")
        b += gather_lanes(o, X_OUT, X_FL)
        NV = D_OUTE + 12
        EF = [D_OUTM, D_OUTM + 8, D_OUTM + 16]
        for q in range(18):
            pos, r4 = divmod(q - 2, 4) if q >= 2 else (0, -1)
            vwm = []
            for step in range(2):
                if q < 2:
                    vwm.append([mfma(self.vw(2 * q + t, kt), self.VHOLD[2 * step + kk] + 4 * kt, D_W[step] + 4 * (2 * kk + t),
                                     None if (step == 0 and kk == 0) else self.vw(2 * q + t, kt))
                                for kk in range(2) for t in range(2) for kt in range(3)])
                else:
                    ks = 2 * (r4 & 1) + step
                    vb = self.VHOLD[ks] if q in (2, 3) else D_V[step]
                    vwm.append([mfma(self.vw(t, kt), vb + 4 * kt, D_W[step] + 4 * t, None if ks == 0 else self.vw(t, kt))
                                for t in range(4) for kt in range(3)])
            fin, pr = [], []
            if q == 3:
                fin, pr = self.finals(D_OUTE, EF[0], 0, 2, first=True), self.p_reads(0, 0)
            elif q == 4:
                fin = self.finals(D_OUTE, EF[1], 1, 2) + self.finals(D_OUTE, EF[2], 0, 2)
                pr = self.p_reads(1, 1) + self.p_reads(2, 0)
            elif q >= 2 and r4 == 3:
                fin, pr = self.finals(D_OUTM, D_F01, 1, 4, first=(pos == 0)), self.p_reads(0, 1)
            elif q >= 6 and r4 == 0:
                fin, pr = self.finals(D_OUTM, D_F01, 0, 4), self.p_reads(1, 0)
            elif q >= 6 and r4 == 1:
                fin, pr = self.finals(D_OUTM, D_F2, 1, 4), self.p_reads(2, 1)
            mA = vwm[0] + fin
            lt = []
            if q == o.exq:
                val, sto = self.blocks(D_OUTE, S_ES)
                lt = val + [self.anchor(sto[0], mA[min(len(mA) - 1, o.exi)])] + sto[1:] + \
                    L(f"buffer_load_dwordx2 {vr(NV,2)}, v{X_L0}, {sr(R_DBG,4)}, 0 offen sc1")
            if q == o.exf:
                lt = L(f"s_waitcnt vmcnt(0)\nbuffer_store_dwordx2 {vr(NV,2)}, v{X_L0}, {sr(R_WS,4)}, s{S_EF} offen sc1")
                self.anchor(lt[0], mA[o.dpos - 3])
                lt[0].wr = {NV, NV + 1}
                lt += L(f"v_readfirstlane_b32 s{S_NON}, v{NV}\nv_readfirstlane_b32 s{S_NON+1}, v{NV+1}")
            r1 = [] if (q == 0 and o.w5first) else self.step_reads(q, 1)
            b += pr + (lt + r1 if (o.exi < 8 and q == o.exq) else r1 + lt) + mA
            if q % 2 == 1:
                b += self.bar([mA[min(o.dpos, len(mA) - 2)]], drain=True)
                if o.stp2:
                    b += [self.anchor(x, mA[-1]) for x in self.st(f"cycB{q}")]
            b += self.step_reads(q + 1, 0) if q < 17 else self.p_reads(1, 0) + self.p_reads(2, 1)
            b += vwm[1]
            if q < 2:
                for t in range(2):
                    b += self.cvt_tile(2 * q + t, EF[q] + 4 * t, EF[2] + 4 * t, q)
            elif r4 & 1:
                for t in range(4):
                    b += self.cvt_tile(t, D_F01 + 4 * t, D_F2 + 4 * t, r4 >> 1)
        f1 = self.finals(D_OUTM, D_F01, 0, 4)
        f2 = self.finals(D_OUTM, D_F2, 1, 4)
        for tp in range(2):
            b += f1[6 * tp:6 * tp + 6] + f2[6 * tp:6 * tp + 6]
        b += [self.anchor(x, f2[-1]) for x in self.st("P2done") + self.st("cyc2")]
        for tp in range(2):
            val, sto = self.blocks(D_OUTM + 24 * tp, S_MS + tp)
            b += val
            if o.own and not o.inblk:
                self.final_stores = getattr(self, "final_stores", []) + sto
            else:
                b += sto
        return b

    def gen(self):
        o = self.o
        self.startup()
        Sched.FILL, Sched.DS_LAT, Sched.DS_SCALE, Sched.WAR_DS, Sched.WAR_MEM, Sched.MFMA_LAT = \
            o.fill, o.dslat, o.dsscale, o.wards, o.warmem, o.mlat
        self.c += schedule(self.main_block())
        print("modelled cycles:", schedule.last_time)
        NV = D_OUTE + 12
        flag = L(f"s_waitcnt vmcnt(0)\nbuffer_store_dwordx2 {vr(NV,2)}, v{X_L0}, {sr(R_WS,4)}, s{S_MF} offen sc1")
        if o.own:
            self.A(f"s_cmp_eq_u32 s{S_W}, s{S_KQ}\ns_cbranch_scc1 L_own")
            self.c += getattr(self, "final_stores", []) + L("s_barrier") + flag + L("s_branch L_ownd\nL_own:")
            for i in range(6):
                self.A(f"ds_write_b128 v{X_LIN}, {vr(D_OUTM + 24 * (i // 3) + 4 * (i % 3), 4)} offset:{OWN_LDS + i * 1024}")
            self.A("s_waitcnt lgkmcnt(0)\ns_barrier")
            if o.lfirst:
                self.A(f"s_sleep {o.lfirst}")
            self.A("L_ownd:")
        else:
            if o.fbar:
                self.A("s_barrier")
            self.c += flag
        self.c += self.st("stored")
        self.c += gather_main(o, "L_gc", X_LIN, X_OUT, X_FL)
        if o.stamps:
            self.A("s_waitcnt vmcnt(0)")
            self.c += self.st("end")
            self.c += self.st.dump(0)
        self.A("s_endpgm\nWc_end:")
        return self.c


def generate(o):
    ld, cp = Loader(o), Compute(o)
    body = finalize(prologue(o)) + finalize(ld.gen()) + finalize(cp.gen(), age=o.age)
    if o.walk:
        body = add_stubs(body, [("Wl_begin", "L_compute", "Wl", 4, "Wl_ret"), ("Wc_begin", "Wc_end", "Wc", 4, "Wc_ret")],
                         prefix=f"{NAME}:\n", smart=0)
    hdr = open("concat_heads__gqa_block_cached__gqa_block_cached__near_ridge.s.ref").read().split("\n")
    head = [l for l in hdr if l.startswith(";") and "@launch" not in l]
    s = "\n".join(head) + f"\n; @launch grid=(256,1,1) block=(512,1,1) lds={LDS_BYTES}\n"
    s += f'.amdgcn_target "amdgcn-amd-amdhsa--gfx950"\n.text\n.globl {NAME}\n.p2align 8\n.type {NAME},@function\n{NAME}:\n'
    s += text(body) + "\nL_end:\n    s_endpgm\n"
    s += f""".section .rodata,"a"
.p2align 6
.amdhsa_kernel {NAME}
  .amdhsa_next_free_vgpr 256
  .amdhsa_next_free_sgpr 102
  .amdhsa_accum_offset 256
  .amdhsa_group_segment_fixed_size 0
  .amdhsa_kernarg_size 104
  .amdhsa_user_sgpr_count 2
  .amdhsa_user_sgpr_kernarg_segment_ptr 1
  .amdhsa_system_sgpr_workgroup_id_x 1
.end_amdhsa_kernel
"""
    return s, ld.st.names, cp.st.names


if __name__ == "__main__":
    o = Opt()
    out = sys.argv[1]
    for a in sys.argv[2:]:
        k, v = a.split("=")
        cur = getattr(o, k)
        setattr(o, k, (v == "1") if isinstance(cur, bool) else type(cur)(v))
    s, ln, cn = generate(o)
    open(out, "w").write(s)
    if o.stamps:
        open(out + ".names", "w").write(repr((cn, ln, 0, WS_STAMP)))
    print("generated", out, len(s.splitlines()), "lines")
```

```python
import sys
from asmlib import *

NAME = "concat_heads__gqa_block_cached__gqa_block_cached__near_ridge_kernel"


class Opt:
    stamps = False
    stp1 = False
    stp2 = False
    ldexit = False
    walk = False
    refresh = 5
    rot = 2
    rotoff = 5
    kpos = -1
    budget = 11
    budget1 = 5
    budget0 = 99
    flip = True
    cqrot = 1
    w5first = False
    earlyflag = True
    exq = 5
    exi = 10
    exf = 9
    expoll = 13
    inblk = True
    dg_plain = 0
    wbat = 13
    dg_gap = 0
    dg_gapn = 4
    dg_gapall = 0
    dg_n = 0
    kspread = False
    vspread = False
    pace2 = 0
    stag = 0
    blist = '555bbbb'
    pol = ''
    ldfirst = False
    own = True
    fill = 5
    dslat = 120
    dsscale = 1.15
    wards = 8
    warmem = 160
    mlat = 56
    ck1 = 22
    dpos = 13
    age = 24
    gsleep = 0
    fbar = False
    lfirst = 0
    prio_loader = 0
    prio_compute = 0


SLOT = 45056
A_SLOT = [0, SLOT, 2 * SLOT]
K_LDS = 3 * SLOT
P_LDS = K_LDS
V_LDS = [0, 110592]
W_LDS = [24576, 45056, 61440, 77824, 94208]
LDS_BYTES = 163840

WS_P = 0
WS_PM = 256 * 18432
WS_PE = WS_PM + 256 * 24576
WS_FLAG = WS_PE + 256 * 12288
WS_FLAG2 = WS_FLAG + 256 * 128
WS_STAMP = WS_FLAG2 + 256 * 128
OWN_LDS = 0
WS_USED = WS_STAMP + 256 * 512

S_X, S_K, S_V, S_WQ, S_WO = 4, 6, 8, 10, 12
S_OUT, S_DBG, S_WS = 14, 16, 18
R_X, R_WQ, R_K, R_V, R_WO, R_WS, R_OUT, R_DBG = 20, 24, 28, 32, 36, 40, 44, 48
S_BR, S_KQ, S_BP, S_JL, S_J, S_CQ, S_W, S_KC = 52, 53, 54, 55, 56, 57, 58, 59
S_T0, S_T1, S_T2, S_T3, S_T4, S_T5 = 60, 61, 62, 63, 64, 65
S_NON = 66
S_GRP = 68
S_CNT = 69
S_EX = 70
S_EI, S_EO = 70, 71
S_C0 = 72
S_ES, S_EF, S_MS = 74, 75, 100
S_F0, S_F1 = 4, 5
S_GI = 6
S_GO, S_FL, S_MF = 10, 11, 12
S_ST = 76
NSTAMP = 12
SPIN_MAX = 200000


def L(s):
    return [I(x) for x in s.strip().split("\n") if x.strip()]


class Stamper:
    def __init__(self, on):
        self.on, self.n, self.names, self.only = on, 0, [], None

    def __call__(self, name):
        if not self.on or (self.only and not name.startswith(self.only) and name not in ("start", "cyc0")):
            return []
        assert self.n < NSTAMP
        r = S_ST + 2 * self.n
        self.n += 1
        self.names.append(name)
        return [I(f"{'s_memtime' if name.startswith('cyc') else 's_memrealtime'} {sr(r,2)}")]

    def dump(self, role):
        if not self.on:
            return []
        tag = "cl"[role]
        o = L(f"""
s_cmp_lg_u32 s{S_W}, 0
s_cbranch_scc1 L_nostamp_{tag}
s_waitcnt lgkmcnt(0)
s_lshl_b32 s{S_T0}, s2, 9
s_add_u32 s{S_T0}, s{S_T0}, {WS_STAMP + role*256}
v_mov_b32 v1, 0
s_mov_b64 exec, 1
""")
        for i in range(self.n):
            o += L(f"""
v_mov_b32 v2, s{S_ST+2*i}
v_mov_b32 v3, s{S_ST+2*i+1}
buffer_store_dwordx2 v[2:3], v1, {sr(R_WS,4)}, s{S_T0} offen offset:{8*i}
s_nop 1
""")
        o += L(f"s_mov_b64 exec, -1\nL_nostamp_{tag}:")
        return o


def srd(r, ptr, size):
    return L(f"""
s_mov_b32 s{r}, s{ptr}
s_and_b32 s{r+1}, s{ptr+1}, 0xffff
s_mov_b32 s{r+2}, {size}
s_mov_b32 s{r+3}, 0x20000
""")


def srd_off(r, ptr, soff, total):
    return L(f"""
s_add_u32 s{r}, s{ptr}, s{soff}
s_addc_u32 s{r+1}, s{ptr+1}, 0
s_and_b32 s{r+1}, s{r+1}, 0xffff
s_sub_u32 s{r+2}, {total}, s{soff}
s_mov_b32 s{r+3}, 0x20000
""")


def walk_entry(tag):
    c = L("s_mov_b64 exec, 0")
    for w in range(3):
        c += L(f"s_cmp_eq_u32 s{S_W}, {w}\ns_cbranch_scc1 {tag}_w{w}")
    c += L(f"s_branch {tag}_w3\n{tag}_ret:\ns_mov_b64 exec, -1")
    return c


def prologue(o):
    return L(f"""
s_and_b32 s{S_T0}, s2, 7
s_lshr_b32 s{S_BR}, s{S_T0}, 2
s_mul_i32 s{S_T1}, s{S_BR}, 40
s_load_dwordx8 s[4:11], s[0:1], s{S_T1}
s_load_dwordx2 s[12:13], s[0:1], s{S_T1} offset:32
s_load_dwordx2 s[14:15], s[0:1], 80
s_load_dwordx4 s[16:19], s[0:1], 88
s_cmp_ge_u32 s2, 256
s_cbranch_scc1 L_end
v_lshrrev_b32 v1, 6, v0
s_and_b32 s{S_KQ}, s{S_T0}, 3
s_lshr_b32 s{S_T2}, s2, 3
v_readfirstlane_b32 s{S_W}, v1
s_lshr_b32 s{S_BP}, s{S_T2}, 2
s_and_b32 s{S_JL}, s{S_T2}, 3
s_lshl_b32 s{S_J}, s{S_KQ}, 2
s_add_u32 s{S_J}, s{S_J}, s{S_JL}
v_and_b32 v0, 63, v0
{f's_xor_b32 s{S_W}, s{S_W}, 4' if o.ldfirst else ''}
s_cmp_lt_u32 s{S_W}, 4
s_cbranch_scc1 L_compute
""")


def common_scalars(o):
    return L(f"""
s_mul_i32 s{S_CQ}, s{S_BP}, {o.cqrot}
s_add_u32 s{S_CQ}, s{S_JL}, s{S_CQ}
s_and_b32 s{S_CQ}, s{S_CQ}, 3
s_lshl_b32 s{S_GRP}, s{S_BR}, 3
s_add_u32 s{S_GRP}, s{S_GRP}, s{S_BP}
s_lshl_b32 s{S_GRP}, s{S_GRP}, 4
s_mul_i32 s{S_T0}, s{S_BR}, 1152
""") + srd_off(R_OUT, S_OUT, S_T0, 1769472) + srd(R_WS, S_WS, WS_USED) + srd(R_DBG, S_DBG, 256)


def gather_scalars(o, m):
    c = L(f"""
s_add_u32 s{S_T0}, s{S_GRP}, s{S_JL}
s_lshl_b32 s{S_T0}, s{S_T0}, 2
s_add_u32 s{S_T0}, s{S_T0}, s{S_KQ}
s_mul_i32 s{S_T0}, s{S_T0}, 6
s_add_u32 s{S_T0}, s{S_T0}, s{m}
s_lshl_b32 s{S_T0}, s{S_T0}, 10
s_add_u32 s{S_T0}, s{S_T0}, {WS_PM}
""")
    for k in range(4):
        if o.own:
            if k < 3:
                c += L(f"""
s_add_u32 s{S_T1}, s{S_KQ}, {k+1}
s_and_b32 s{S_T1}, s{S_T1}, 3
s_mul_i32 s{S_T1}, s{S_T1}, {4*24576}
s_add_u32 s{S_GI+k}, s{S_T0}, s{S_T1}
""")
            else:
                c += L(f"s_lshl_b32 s{S_GI+3}, s{m}, 10")
        else:
            c += L(f"s_add_u32 s{S_GI+k}, s{S_T0}, {k*4*24576}")
    return c + L(f"""
s_cmp_ge_u32 s{m}, 3
s_cselect_b32 s{S_T1}, 1, 0
s_mul_i32 s{S_T2}, s{S_T1}, 3
s_sub_u32 s{S_T2}, s{m}, s{S_T2}
s_lshr_b32 s{S_T3}, s{S_KQ}, 1
s_lshl_b32 s{S_T0}, s{S_BP}, 1
s_add_u32 s{S_T3}, s{S_T3}, s{S_T0}
s_mul_i32 s{S_T3}, s{S_T3}, 48
s_lshl_b32 s{S_T2}, s{S_T2}, 4
s_add_u32 s{S_T3}, s{S_T3}, s{S_T2}
s_mul_i32 s{S_T3}, s{S_T3}, 2304
s_lshl_b32 s{S_T2}, s{S_CQ}, 8
s_add_u32 s{S_T3}, s{S_T3}, s{S_T2}
s_and_b32 s{S_T2}, s{S_KQ}, 1
s_lshl_b32 s{S_T2}, s{S_T2}, 7
s_add_u32 s{S_T3}, s{S_T3}, s{S_T2}
s_lshl_b32 s{S_T1}, s{S_T1}, 6
s_add_u32 s{S_GO}, s{S_T3}, s{S_T1}
s_add_u32 s{S_FL}, s{S_GRP}, s{S_J}
s_lshl_b32 s{S_FL}, s{S_FL}, 7
s_add_u32 s{S_FL}, s{S_FL}, {WS_FLAG2}
""")


def gather_lanes(o, vout, vfl):
    c = L(f"""
v_and_b32 v{vout}, 15, v0
v_mul_u32_u24 v{vout}, 2304, v{vout}
v_bfe_u32 v{vout+1}, v0, 4, 1
v_lshl_add_u32 v{vout}, v{vout+1}, 5, v{vout}
v_lshrrev_b32 v{vout+1}, 5, v0
v_lshl_add_u32 v{vout}, v{vout+1}, 4, v{vout}
v_and_b32 v{vfl}, 3, v0
""")
    if o.own:
        c += L(f"v_min_u32 v{vfl}, 2, v{vfl}\nv_add3_u32 v{vfl}, v{vfl}, s{S_KQ}, 1\nv_and_b32 v{vfl}, 3, v{vfl}")
    return c + L(f"v_lshlrev_b32 v{vfl}, 3, v{vfl}")


def unpack_add(dst, src, first, t):
    r = []
    for i in range(4):
        if first:
            r += L(f"v_lshlrev_b32 v{dst+2*i}, 16, v{src+i}\nv_and_b32 v{dst+2*i+1}, 0xffff0000, v{src+i}")
        else:
            tt = t + 2 * (i & 1)
            r += L(f"""
v_lshlrev_b32 v{tt}, 16, v{src+i}
v_and_b32 v{tt+1}, 0xffff0000, v{src+i}
v_pk_add_f32 v[{dst+2*i}:{dst+2*i+1}], v[{dst+2*i}:{dst+2*i+1}], v[{tt}:{tt+1}]
""")
    return r


GB = 96


def gather_main(o, label, vlin, vout, vfl):
    c = []
    n = 3 if o.own else 4
    if o.own:
        c += L(f"v_add_u32 v{GB+24}, s{S_GI+3}, v{vlin}\nds_read_b128 {vr(GB+12,4)}, v{GB+24} offset:{OWN_LDS}")
        c += unpack_add(GB + 16, GB + 12, True, GB + 24)
    c += L(f"""
s_mov_b32 s{S_CNT}, {SPIN_MAX}
{label}:
buffer_load_dwordx2 {vr(GB+28,2)}, v{vfl}, {sr(R_WS,4)}, s{S_FL} offen sc1
s_sub_u32 s{S_CNT}, s{S_CNT}, 1
s_waitcnt vmcnt(0)
v_cmp_ne_u64 vcc, {sr(S_NON,2)}, {vr(GB+28,2)}
{'s_branch' if o.dg_n & 16 else 's_cbranch_vccz'} {label}d
{f's_sleep {o.gsleep}' if o.gsleep else ''}
s_cmp_lg_u32 s{S_CNT}, 0
s_cbranch_scc1 {label}
{label}d:
""")
    for k in range(n):
        c += L(f"buffer_load_dwordx4 {vr(GB+4*k,4)}, v{vlin}, {sr(R_WS,4)}, s{S_GI+k} offen sc1")
    for k in range(n):
        c += L(f"s_waitcnt vmcnt({n-1-k})") + unpack_add(GB + 16, GB + 4 * k, k == 0 and not o.own, GB + 24)
    s = GB + 16
    return c + L(f"""
v_cvt_pk_bf16_f32 v{GB}, v{s}, v{s+1}
v_cvt_pk_bf16_f32 v{GB+1}, v{s+2}, v{s+3}
v_cvt_pk_bf16_f32 v{GB+2}, v{s+4}, v{s+5}
v_cvt_pk_bf16_f32 v{GB+3}, v{s+6}, v{s+7}
v_permlane16_swap_b32 v{GB}, v{GB+2}
v_permlane16_swap_b32 v{GB+1}, v{GB+3}
buffer_store_dwordx4 {vr(GB,4)}, v{vout}, {sr(R_OUT,4)}, s{S_GO} offen
""")


V_WQ = 8
V_XO = 16
V_KV = 19
V_WM = 25
V_WE = 29
V_LIN = 33
V_T = 34
V_FL = 60
V_SV = 66
V_W2 = 140
V_EA, V_MO, V_MF = 144, 156, 158


class Loader:
    SB_WQ, SB_X, SB_KV, SB_W, SB_P0, SB_P12 = 72, 73, 74, 75, 100, 101

    def __init__(self, o):
        self.o, self.c, self.issued, self.q = o, [], [], []
        self.pace = 0
        self.st = Stamper(o.stamps)

    def A(self, s):
        self.c += L(s)

    def wait_for(self, tags):
        last = max([i for i, t in enumerate(self.issued) if t in tags], default=-1)
        if last < 0:
            return
        self.A(f"s_waitcnt vmcnt({len(self.issued) - 1 - last})")
        self.issued = self.issued[last + 1:]

    def barrier(self, tags):
        self.wait_for(tags)
        self.A("s_barrier")

    def push(self, *jobs):
        for tag, setup, items in jobs:
            self.q.append([tag, setup, list(items)])

    def pump(self, need, extra):
        while self.q:
            tag, setup, items = self.q[0]
            if any(j[0] in need for j in self.q):
                n = len(items)
            else:
                last = max([i for i, t in enumerate(self.issued) if t in need], default=-1)
                n = min(len(items), extra - (len(self.issued) - 1 - last))
                if n <= 0:
                    break
            if setup:
                self.A(setup)
            prev = None
            for (rsrc, pol, base, lds, voff, soff, half) in items[:n]:
                self.A("s_addk_i32 m0, 0x400" if prev == (base, lds - 1024) else f"s_add_u32 m0, s{base}, {lds}")
                prev = (base, lds)
                if half:
                    self.A("s_mov_b32 exec_hi, 0")
                self.A(f"buffer_load_dwordx4 v{voff}, {sr(rsrc,4)}, {soff} offen {pol} lds")
                if half:
                    self.A("s_mov_b32 exec_hi, -1")
                self.issued.append(tag)
                if self.pace:
                    self.A(f"s_sleep {self.pace}")
            assert len(self.issued) <= 63
            del items[:n]
            if items:
                break
            self.q.pop(0)

    def job_s(self, n):
        o = self.o
        slot = A_SLOT[n % 3]
        if o.rot == 4 and n < 8:
            setup = f"s_xor_b32 s{S_T1}, s{S_KC}, {n}\ns_lshl_b32 s{S_T0}, s{S_T1}, 19\ns_lshl_b32 s{S_T1}, s{S_T1}, 7"
        elif o.rot in (1, 2, 3):
            setup = f"s_lshl_b32 s{S_T0}, s{S_KC}, 19\ns_lshl_b32 s{S_T1}, s{S_KC}, 7" if n == 0 else f"""
s_add_u32 s{S_T1}, s{S_KC}, {n}
s_cmp_ge_u32 s{S_T1}, 9
s_cselect_b32 s{S_T0}, 9, 0
s_sub_u32 s{S_T1}, s{S_T1}, s{S_T0}
s_lshl_b32 s{S_T0}, s{S_T1}, 19
s_lshl_b32 s{S_T1}, s{S_T1}, 7
"""
        else:
            setup = f"s_mov_b32 s{S_T0}, {n << 19}\ns_movk_i32 s{S_T1}, {n << 7}"
        it = [(R_X, o.pol, self.SB_X, slot + 32768 + u * 1024, V_XO + u, f"s{S_T1}", False) for u in range(3)]
        it += [(R_WQ, o.pol, self.SB_WQ, slot + u * 1024, V_WQ + u, f"s{S_T0}", False) for u in range(8)]
        return (f"S{n}", setup, it)

    def job_k(self):
        return ("K", "", [(R_K, self.o.pol, self.SB_KV, K_LDS + u * 1024, V_KV + u, "0", False) for u in range(6)])

    def jjt(self, pos, dst):
        return f"s_add_u32 s{dst}, s{S_JL}, {pos}\ns_and_b32 s{dst}, s{dst}, 3\n"

    def job_v(self, pos):
        return (f"V{pos}", self.jjt(pos, S_T0) + f"s_mul_i32 s{S_T0}, s{S_T0}, 12288",
                [(R_V, self.o.pol, self.SB_KV, V_LDS[pos % 2] + u * 1024, V_KV + u, f"s{S_T0}", False) for u in range(6)])

    def job_w(self, q, both=0):
        if q < 2:
            setup = f"s_mul_i32 s{S_T0}, s{S_JL}, {256*1152}\ns_add_u32 s{S_T0}, s{S_T0}, {q*128*1152 + 1024}"
            vb = V_WE
        else:
            pos, r = divmod(q - 2, 4)
            setup = self.jjt(pos, S_T0) + f"""
s_mul_i32 s{S_T0}, s{S_T0}, {256*1152}
s_add_u32 s{S_T0}, s{S_T0}, {(r&2)*64*1152}
s_add_u32 s{S_T0}, s{S_T0}, s{S_F0 + (r&1)}
"""
            vb = V_WM
        it = [(R_WO, self.o.pol, self.SB_W, W_LDS[q % 5] + u * 1024, vb + u, f"s{S_T0}", False) for u in range(4)]
        if both:
            it += [(R_WO, self.o.pol, self.SB_W, W_LDS[q % 5] + both * 8192 + u * 1024, V_W2 + u, f"s{S_T0}", False) for u in range(4)]
        return (f"W{q}", setup, it)

    def p_block(self, pos):
        return self.jjt(pos, S_T0) + f"""
s_lshl_b32 s{S_T3}, s{S_KQ}, 2
s_add_u32 s{S_T0}, s{S_T0}, s{S_T3}
s_add_u32 s{S_T0}, s{S_T0}, s{S_GRP}
s_mul_i32 s{S_T0}, s{S_T0}, 18432
"""

    def job_p(self, pos, f0, nf, tag, lds):
        sb = self.SB_P0 if nf == 1 else self.SB_P12
        setup = self.p_block(pos) + f"""
s_add_u32 s{S_T0}, s{S_T0}, s{sb}
s_add_u32 s{S_T0}, s{S_T0}, {f0*6144}
s_add_u32 s{S_T1}, s{S_T0}, 1024
s_add_u32 s{S_T2}, s{S_T0}, 2048
"""
        it = [(R_WS, "" if self.o.dg_plain & 4 else "sc1", sb, lds + u * 1024, V_LIN, f"s{S_T0+u}", nf == 1 and u == 1) for u in range(2 if nf == 1 else 3)]
        return (tag, setup, it)

    def code_touch(self):
        self.A(f"""
s_getpc_b64 s[{S_EX}:{S_EX+1}]
L_pcl:
s_sub_u32 s{S_EX}, s{S_EX}, L_pcl-{NAME}
s_subb_u32 s{S_EX+1}, s{S_EX+1}, 0
s_lshl_b32 s{S_T0}, s{S_W}, 13
v_lshlrev_b32 v{V_SV}, 7, v0
v_add_u32 v{V_SV}, s{S_T0}, v{V_SV}
v_min_u32 v{V_SV}, L_end-{NAME}, v{V_SV}
s_cmp_lt_u32 s2, 8
s_cselect_b64 exec, -1, 1
global_load_dword v{V_SV+1}, v{V_SV}, s[{S_EX}:{S_EX+1}]
s_mov_b64 exec, -1
""")
        self.issued.append("code")

    def nonce_issue(self):
        self.A(f"v_mov_b32 v{V_FL}, 0\nbuffer_load_dwordx2 v[{V_FL+2}:{V_FL+3}], v{V_FL}, {sr(R_DBG,4)}, 0 offen sc1")
        self.issued.append("non")

    def nonce_check(self):
        self.wait_for(["non"])
        self.A(f"""
s_mov_b32 s{S_CNT}, {SPIN_MAX}
L_nonce:
v_readfirstlane_b32 s{S_NON}, v{V_FL+2}
v_readfirstlane_b32 s{S_NON+1}, v{V_FL+3}
s_sub_u32 s{S_CNT}, s{S_CNT}, 1
s_cmp_eq_u32 s{S_CNT}, 0
s_cbranch_scc1 L_nonce_done
s_cmp_lg_u32 s{S_NON}, 0
s_cbranch_scc1 L_nonce_done
buffer_load_dwordx2 v[{V_FL+2}:{V_FL+3}], v{V_FL}, {sr(R_DBG,4)}, 0 offen sc1
s_waitcnt vmcnt(0)
s_branch L_nonce
L_nonce_done:
""")

    def flag(self):
        self.wait_for(["pub"])
        self.A(f"""
s_add_u32 s{S_T0}, s{S_GRP}, s{S_J}
s_lshl_b32 s{S_T0}, s{S_T0}, 7
s_lshl_b32 s{S_T1}, s{S_W}, 3
s_add_u32 s{S_T0}, s{S_T0}, s{S_T1}
s_add_u32 s{S_T0}, s{S_T0}, {WS_FLAG}
s_mov_b64 exec, 1
buffer_store_dwordx2 v[{V_FL+2}:{V_FL+3}], v{V_FL}, {sr(R_WS,4)}, s{S_T0} offen {'' if self.o.dg_plain & 2 else 'sc1'}
s_mov_b64 exec, -1
""")
        self.issued.append("flag")

    def publish_setup(self, split):
        self.A(self.p_block(0) + (f"s_and_b32 s{S_T1}, s{S_W}, 1\ns_mul_i32 s{S_T1}, s{S_T1}, 9216" if split else
                                  f"s_mul_i32 s{S_T1}, s{S_W}, 4608") + f"""
s_add_u32 s{S_T0}, s{S_T0}, s{S_T1}
s_add_u32 s{S_T1}, s{S_T1}, {P_LDS}
v_add_u32 v{V_T+4}, s{S_T1}, v{V_LIN}
s_add_u32 s{S_T1}, s{S_T0}, 4096
s_add_u32 s{S_T2}, s{S_T0}, 8192
""")

    def publish(self, split):
        n = 9 if split else 5
        for u in range(n):
            self.A(f"ds_read_b128 {vr(96+4*u,4)}, v{V_T+4} offset:{u*1024}")
        for u in range(n):
            half = not split and u == 4
            if half:
                self.A("s_waitcnt lgkmcnt(0)\ns_mov_b32 exec_hi, 0")
            self.A(f"buffer_store_dwordx4 {vr(96+4*u,4)}, v{V_LIN}, {sr(R_WS,4)}, s{S_T0+u//4} offen offset:{(u%4)*1024} {'' if self.o.dg_plain & 1 else 'sc1'}")
            if half:
                self.A("s_mov_b32 exec_hi, -1")
            self.issued.append("pub")

    def flags_setup(self, split):
        self.A(f"""
{f'v_bfe_u32 v{V_T}, v0, 1, 2' if split else f'v_bfe_u32 v{V_T}, v0, 2, 2'}
{f'v_and_or_b32 v{V_T+1}, v0, 1, 2' if split else f'v_and_b32 v{V_T+1}, 3, v0'}
v_lshlrev_b32 v{V_T}, 7, v{V_T}
v_lshl_add_u32 v{V_T}, v{V_T+1}, 3, v{V_T}
s_lshl_b32 s{S_T5}, s{S_KQ}, 2
s_add_u32 s{S_T5}, s{S_T5}, s{S_GRP}
s_lshl_b32 s{S_T5}, s{S_T5}, 7
s_add_u32 s{S_T5}, s{S_T5}, {WS_FLAG}
""")

    def flags_sample(self):
        self.A(f"buffer_load_dwordx2 v[{V_T+4}:{V_T+5}], v{V_T}, {sr(R_WS,4)}, s{S_T5} offen sc1")
        self.issued.append("smp")

    def flags_wait(self):
        self.wait_for(["smp"])
        self.A(f"""
s_mov_b32 s{S_CNT}, {SPIN_MAX}
L_poll:
v_cmp_ne_u64 vcc, {sr(S_NON,2)}, v[{V_T+4}:{V_T+5}]
s_cbranch_vccz L_polld
s_sub_u32 s{S_CNT}, s{S_CNT}, 1
s_cmp_eq_u32 s{S_CNT}, 0
s_cbranch_scc1 L_polld
buffer_load_dwordx2 v[{V_T+4}:{V_T+5}], v{V_T}, {sr(R_WS,4)}, s{S_T5} offen sc1
s_waitcnt vmcnt(0)
s_branch L_poll
L_polld:
""")

    def extra_setup(self):
        E = V_EA
        self.A(f"""
v_lshrrev_b32 v{E+8}, 2, v0
v_lshlrev_b32 v{E+8}, 7, v{E+8}
v_and_b32 v{E+9}, 3, v0
v_lshl_add_u32 v{E+8}, v{E+9}, 3, v{E+8}
s_lshl_b32 s{S_T4}, s{S_GRP}, 7
s_add_u32 s{S_T4}, s{S_T4}, {WS_FLAG + 64}
s_mul_i32 s{S_T0}, s{S_J}, 48
s_mul_i32 s{S_T1}, s{S_W}, 12
s_add_u32 s{S_T0}, s{S_T0}, s{S_T1}
v_and_b32 v{E+9}, 15, v0
v_min_u32 v{E}, 11, v{E+9}
v_add_u32 v{E}, s{S_T0}, v{E}
v_lshrrev_b32 v{E+2}, 6, v{E}
v_and_b32 v{E+3}, 63, v{E}
v_mul_u32_u24 v{E+4}, 0x56, v{E+2}
v_lshrrev_b32 v{E+4}, 8, v{E+4}
v_mul_u32_u24 v{E+5}, 3, v{E+4}
v_sub_u32 v{E+5}, v{E+2}, v{E+5}
v_lshrrev_b32 v{E+6}, 1, v{E+4}
v_mul_u32_u24 v{E+6}, 48, v{E+6}
v_lshl_add_u32 v{E+6}, v{E+5}, 4, v{E+6}
v_and_b32 v{E+7}, 15, v{E+3}
v_add_u32 v{E+6}, v{E+6}, v{E+7}
v_mul_u32_u24 v{E+1}, 2304, v{E+6}
v_and_b32 v{E+7}, 1, v{E+4}
v_lshl_add_u32 v{E+1}, v{E+7}, 6, v{E+1}
v_lshrrev_b32 v{E+7}, 4, v{E+3}
v_lshl_add_u32 v{E+1}, v{E+7}, 3, v{E+1}
v_lshrrev_b32 v{E+7}, 4, v0
v_and_b32 v{E+2}, 1, v{E+7}
v_lshl_add_u32 v{E+1}, v{E+2}, 2, v{E+1}
v_lshrrev_b32 v{E+2}, 1, v{E+7}
v_lshl_add_u32 v{E+1}, v{E+2}, 5, v{E+1}
v_cmp_gt_u32 vcc, 12, v{E+9}
v_mov_b32 v{E+2}, 0x40000000
v_cndmask_b32 v{E+1}, v{E+2}, v{E+1}, vcc
s_mul_i32 s{S_EO}, s{S_BP}, {96*2304}
s_add_u32 s{S_EO}, s{S_EO}, 1024
v_mul_u32_u24 v{E+7}, {4*12288}, v{E+7}
v_lshl_add_u32 v{E}, v{E}, 4, v{E+7}
s_mul_i32 s{S_EI}, s{S_GRP}, 12288
s_add_u32 s{S_EI}, s{S_EI}, {WS_PE}
s_mov_b32 s{S_CNT}, {SPIN_MAX}
L_polle:
buffer_load_dwordx2 v[{V_T+4}:{V_T+5}], v{E+8}, {sr(R_WS,4)}, s{S_T4} offen sc1
s_sub_u32 s{S_CNT}, s{S_CNT}, 1
s_waitcnt vmcnt(0)
v_cmp_ne_u64 vcc, {sr(S_NON,2)}, v[{V_T+4}:{V_T+5}]
s_cbranch_vccz L_polled
s_sleep 2
s_cmp_lg_u32 s{S_CNT}, 0
s_cbranch_scc1 L_polle
L_polled:
""")
        self.issued = []

    def extra_loads(self):
        for k in range(4):
            self.A(f"buffer_load_dwordx4 {vr(72+4*k,4)}, v{V_EA}, {sr(R_WS,4)}, s{S_EI} offen sc1")
            self.issued.append("ex")
            if k < 3:
                self.A(f"s_add_u32 s{S_EI}, s{S_EI}, 12288")

    def extra_sum(self):
        A = self.A
        self.wait_for(["ex"])
        for k in range(4):
            self.c += unpack_add(48, 72 + 4 * k, k == 0, 56)
        for i in range(4):
            A(f"v_permlane32_swap_b32 v{48+i}, v{52+i}")
        A("""
v_pk_add_f32 v[48:49], v[48:49], v[52:53]
v_pk_add_f32 v[50:51], v[50:51], v[54:55]
v_permlane16_swap_b32 v48, v50
v_permlane16_swap_b32 v49, v51
v_pk_add_f32 v[48:49], v[48:49], v[50:51]
v_cvt_pk_bf16_f32 v56, v48, v49
""")
        A(f"buffer_store_dword v56, v{V_EA+1}, {sr(R_OUT,4)}, s{S_EO} offen")

    def gen(self):
        o = self.o
        A = self.A
        split = not o.w5first
        self.c += self.st("start")
        if o.prio_loader:
            A(f"s_setprio {o.prio_loader}")
        A(f"""
s_sub_u32 s{S_W}, s{S_W}, 4
v_lshrrev_b32 v1, 5, v0
v_and_b32 v2, 31, v0
v_lshlrev_b32 v2, 4, v2
v_lshlrev_b32 v3, 5, v1
v_xor_b32 v2, v2, v3
v_lshl_add_u32 v2, v1, 13, v2
s_lshl_b32 s{S_T0}, s{S_W}, 17
v_add_u32 v{V_WQ}, s{S_T0}, v2
s_movk_i32 s{S_T1}, 0x4000
v_xad_u32 v{V_WQ+1}, v{V_WQ}, 64, s{S_T1}
v_lshrrev_b32 v4, 4, v0
v_and_b32 v5, 7, v0
s_mov_b32 s{S_T2}, 0x8000
v_add_u32 v{V_WQ+2}, s{S_T2}, v{V_WQ}
v_add_u32 v{V_WQ+3}, s{S_T2}, v{V_WQ+1}
v_xor_b32 v{V_WQ+4}, 0x10080, v{V_WQ}
v_xor_b32 v{V_WQ+5}, 0x10080, v{V_WQ+1}
v_add_u32 v{V_WQ+6}, s{S_T2}, v{V_WQ+4}
v_add_u32 v{V_WQ+7}, s{S_T2}, v{V_WQ+5}
v_xor_b32 v5, v5, v4
v_lshlrev_b32 v5, 4, v5
s_and_b32 s{S_T1}, s{S_W}, 1
s_lshl_b32 s{S_T2}, s{S_T1}, 6
v_xor_b32 v5, s{S_T2}, v5
v_lshrrev_b32 v6, 3, v0
v_mul_u32_u24 v6, 1152, v6
s_mul_i32 s{S_T3}, s{S_W}, 27648
v_add3_u32 v{V_XO}, v5, v6, s{S_T3}
v_add_u32 v{V_XO+2}, 18432, v{V_XO}
v_xor_b32 v5, 64, v5
s_add_u32 s{S_T3}, s{S_T3}, 9216
v_add3_u32 v{V_XO+1}, v5, v6, s{S_T3}
s_lshl_b32 s{self.SB_WQ}, s{S_W}, 13
s_mul_i32 s{self.SB_X}, s{S_W}, 3072
s_mul_i32 s{S_T4}, s{S_BP}, 110592
s_lshl_b32 s{S_T5}, s{S_J}, 9
""")
        if o.rot == 1:
            A(f"""
s_lshl_b32 s{S_T1}, s{S_JL}, 1
s_add_u32 s{S_KC}, s{S_BP}, s{S_T1}
s_cmp_ge_u32 s{S_KC}, 9
s_cselect_b32 s{S_T1}, 9, 0
s_sub_u32 s{S_KC}, s{S_KC}, s{S_T1}
""")
        elif o.rot == 3:
            A(f"""
s_add_u32 s{S_KC}, s{S_BP}, s{S_JL}
s_mul_i32 s{S_T1}, s{S_KC}, 0x56
s_lshr_b32 s{S_T1}, s{S_T1}, 8
s_mul_i32 s{S_T1}, s{S_T1}, 3
s_sub_u32 s{S_KC}, s{S_KC}, s{S_T1}
s_mul_i32 s{S_KC}, s{S_KC}, 3
""")
        elif o.rot:
            A(f"s_add_u32 s{S_KC}, s{S_BP}, s{S_JL}\ns_and_b32 s{S_KC}, s{S_KC}, 1")
        if o.rot == 2:
            A(f"s_mul_i32 s{S_KC}, s{S_KC}, {o.rotoff}")
        A("s_waitcnt lgkmcnt(0)")
        self.c += srd_off(R_WQ, S_WQ, S_T5, 4718592)
        self.c += srd_off(R_X, S_X, S_T4, 884736)
        self.c += self.st("karg")
        self.push(self.job_s(0), self.job_s(1), self.job_s(2))
        self.pump(["S0"], o.budget0)
        self.c += self.st("S0iss")
        A(f"""
v_and_b32 v5, 15, v0
v_xor_b32 v5, v5, v4
v_lshlrev_b32 v5, 4, v5
s_and_b32 s{S_T1}, s{S_W}, 1
s_lshl_b32 s{S_T2}, s{S_T1}, 7
v_xor_b32 v5, s{S_T2}, v5
s_mul_i32 s{S_T2}, s{S_T1}, 6144
s_lshr_b32 s{S_T3}, s{S_W}, 1
s_mul_i32 s{S_T3}, s{S_T3}, 196608
s_add_u32 s{S_T2}, s{S_T2}, s{S_T3}
v_lshl_add_u32 v6, v4, 8, s{S_T2}
""")
        for u in range(6):
            cu = (u & 3) << 6
            A(f"v_xor_b32 v7, {cu}, v5\nv_add_u32 v7, v7, v6" if cu else "v_add_u32 v7, v5, v6")
            A(f"v_add_u32 v{V_KV+u}, {u*1024}, v7")
        A(f"""
s_mul_i32 s{self.SB_KV}, s{S_W}, 6144
s_lshl_b32 s{S_T0}, s{S_BP}, 5
s_add_u32 s{S_T1}, s{S_T0}, s{S_J}
s_mul_i32 s{S_T1}, s{S_T1}, 12288
s_lshl_b32 s{S_T4}, s{S_KQ}, 2
s_add_u32 s{S_T4}, s{S_T4}, s{S_T0}
s_mul_i32 s{S_T4}, s{S_T4}, 12288
s_mul_i32 s{S_T5}, s{S_KQ}, {1024*1152}
""")
        self.c += srd_off(R_K, S_K, S_T1, 3145728)
        if o.kpos < 0 and not o.kspread:
            self.push(self.job_k())
            self.pump(["K"], 0)
        self.c += srd_off(R_V, S_V, S_T4, 3145728)
        self.c += srd_off(R_WO, S_WO, S_T5, 4718592)
        self.c += common_scalars(o)
        A(f"""
v_and_b32 v5, 15, v0
v_lshlrev_b32 v6, 1, v4
v_xor_b32 v5, v5, v6
v_lshlrev_b32 v5, 4, v5
v_mul_u32_u24 v6, 1152, v4
s_mul_i32 s{S_T0}, s{S_W}, {16*1152}
v_add_u32 v6, s{S_T0}, v6
v_add_u32 v{V_WM}, v5, v6
v_add_u32 v{V_WM+1}, {4*1152}, v{V_WM}
v_xor_b32 v5, 128, v5
v_add_u32 v{V_WM+2}, v5, v6
v_add_u32 v{V_WM+2}, {8*1152}, v{V_WM+2}
v_add_u32 v{V_WM+3}, {4*1152}, v{V_WM+2}
v_and_b32 v5, 7, v0
v_and_b32 v6, 1, v4
v_lshlrev_b32 v6, 1, v6
v_xor_b32 v5, v5, v6
v_lshlrev_b32 v5, 4, v5
v_lshrrev_b32 v6, 3, v0
v_mul_u32_u24 v6, 1152, v6
s_lshr_b32 s{S_T1}, s{S_BP}, 2
s_and_b32 s{S_T1}, s{S_T1}, {1 if o.flip else 0}
s_mul_i32 s{S_F0}, s{S_T1}, {64*1152}
s_sub_u32 s{S_F1}, {64*1152}, s{S_F0}
s_lshl_b32 s{S_T2}, s{S_CQ}, 8
s_add_u32 s{S_F0}, s{S_F0}, s{S_T2}
s_add_u32 s{S_F1}, s{S_F1}, s{S_T2}
s_lshl_b32 s{S_T1}, s{S_T1}, 1
s_xor_b32 s{S_T1}, s{S_T1}, s{S_W}
s_mul_i32 s{S_T0}, s{S_T1}, {32*1152}
v_add_u32 v6, s{S_T0}, v6
v_add_u32 v{V_WE}, v5, v6
v_add_u32 v{V_WE+2}, {16*1152}, v{V_WE}
v_xor_b32 v5, 64, v5
v_add_u32 v{V_WE+1}, v5, v6
v_add_u32 v{V_WE+1}, {8*1152}, v{V_WE+1}
v_add_u32 v{V_WE+3}, {16*1152}, v{V_WE+1}
v_lshlrev_b32 v{V_LIN}, 4, v0
s_lshl_b32 s{self.SB_W}, s{S_W}, 12
s_mul_i32 s{self.SB_P0}, s{S_W}, 1536
s_mul_i32 s{self.SB_P12}, s{S_W}, 3072
s_cmp_ge_u32 s{S_W}, 2
s_cselect_b32 s{S_T0}, -1, 1
s_mul_i32 s{S_T0}, s{S_T0}, {32*1152}
v_add_u32 v{V_W2}, s{S_T0}, v{V_WM}
v_add_u32 v{V_W2+1}, s{S_T0}, v{V_WM+1}
v_add_u32 v{V_W2+2}, s{S_T0}, v{V_WM+2}
v_add_u32 v{V_W2+3}, s{S_T0}, v{V_WM+3}
""")
        self.flags_setup(split)
        if o.walk:
            self.c += walk_entry("Wl")
        A("Wl_begin:")
        self.barrier(["S0"])
        self.c += self.st("B0")
        if o.ldexit:
            A("s_endpgm")
        if o.kpos == 2:
            self.push(self.job_k())
        self.pump(["S1"], int(o.blist[0], 16) if o.blist else o.budget1)
        for n in range(0, 9):
            self.barrier([f"S{n+1}"] if n < 8 else ["K"])
            if n == 3:
                self.nonce_issue()
            if n + 3 <= 8:
                self.push(self.job_s(n + 3))
                if o.kpos == n + 3:
                    self.push(self.job_k())
            if o.kspread and n < 6:
                t, su, it = self.job_k()
                self.push((t, su, it[n:n + 1]))
            if n == 6:
                self.pace = o.pace2
                if o.stag:
                    A(f"s_mul_i32 s{S_CNT}, s{S_BP}, {o.stag}\nL_stag:\ns_cmp_eq_u32 s{S_CNT}, 0\ns_cbranch_scc1 L_stagd\ns_sleep 1\ns_sub_u32 s{S_CNT}, s{S_CNT}, 1\ns_branch L_stag\nL_stagd:")
                self.push(self.job_v(0), self.job_w(0))
            if n == 7:
                self.push(self.job_w(1), self.job_w(2))
            if n == 8:
                self.push(self.job_w(3), self.job_w(4))
            self.pump([f"S{n+2}"] if n < 7 else ["K"] if n == 7 else ["V0", "W0", "W1"], (int(o.blist[n + 1], 16) if o.blist else o.budget1) if n < 6 else o.budget)
            if o.vspread and n < 6:
                A(f"""
s_mul_i32 s{S_T0}, s{S_JL}, 12288
s_lshr_b32 s{S_T1}, s{S_W}, 1
s_mul_i32 s{S_T1}, s{S_T1}, 196608
s_add_u32 s{S_T0}, s{S_T0}, s{S_T1}
s_and_b32 s{S_T1}, s{S_W}, 1
s_mul_i32 s{S_T1}, s{S_T1}, 6144
s_add_u32 s{S_T0}, s{S_T0}, s{S_T1}
v_lshlrev_b32 v{V_SV}, 7, v0
s_mov_b64 exec, 0xff
buffer_load_dword v{V_SV+1}, v{V_SV}, {sr(R_V,4)}, s{S_T0} offen offset:{(n % 4) * 1024}
s_mov_b64 exec, -1
""".replace(f"s_add_u32 s{S_T0}, s{S_T0}, s{S_T1}\nv_lshl", f"s_add_u32 s{S_T0}, s{S_T0}, s{S_T1}\ns_add_u32 s{S_T0}, s{S_T0}, {(n // 4) * 4096}\nv_lshl"))
                self.issued.append("vt")
            if o.refresh and n == o.refresh:
                self.code_touch()
        self.pace = 0
        self.c += self.st("B9")
        self.nonce_check()
        self.barrier(["V0", "W0", "W1"])
        self.pump(["W4"], 0)
        if split:
            self.publish_setup(True)
        self.barrier([])
        self.c += self.st("B11")
        assert not self.q
        if split:
            base = list(self.issued)
            A(f"s_cmp_ge_u32 s{S_W}, 2\ns_cbranch_scc1 L_pubs")
            self.barrier(["W2", "W3"])
            self.push(self.job_w(5, both=1))
            self.pump(["W5"], 0)
            self.barrier(["W4", "W5"])
            A("s_branch L_pubd\nL_pubs:")
            self.issued = base
            self.publish(True)
            self.barrier(["W2", "W3"])
            self.push(self.job_w(6, both=-1))
            self.pump(["W6"], 0)
        else:
            self.push(self.job_w(5))
            self.pump(["W5"], 0)
            self.publish_setup(False)
            self.publish(False)
            self.barrier(["W2", "W3"])
            self.push(self.job_w(6))
            self.pump(["W6"], 0)
        if o.earlyflag:
            self.flag()
        self.barrier(["W4", "W5"])
        if not o.earlyflag:
            self.flag()
        A("L_pubd:")
        self.c += self.st("pub")

        def needs(d):
            need = [f"W{d+1}", f"W{d+2}"]
            if d % 4 == 1:
                return need + [f"V{(d-1)//4}", f"P{(d-5)//4}b"]
            return need + [f"P{(d-3)//4}a"]
        for d in range(3, 18, 2):
            if d > 3:
                self.barrier(needs(d))
            if d == 5:
                self.c += self.st("D5")
                self.flags_wait()
                self.c += self.st("polled")
            if d in (5, 9, 13):
                self.push(self.job_p((d - 1) // 4, 0, 1, f"P{(d-1)//4}a", P_LDS))
            if d in (7, 11, 15):
                self.push(self.job_p((d - 3) // 4, 1, 2, f"P{(d-3)//4}b", P_LDS + 6144))
            for q in (d + 4, d + 5):
                if q <= 17:
                    self.push(self.job_w(q))
                if d == 3 and q == 7:
                    self.push(self.job_v(1))
            if d in (5, 9):
                self.push(self.job_v((d - 5) // 4 + 2))
            self.pump(needs(d + 2), o.budget - (1 if d == 3 else 0))
            if d == 3:
                self.flags_sample()
            if d == o.wbat and o.dg_plain & 8:
                A(f"s_lshr_b32 s{S_T0}, s2, 3\ns_or_b32 s{S_T0}, s{S_T0}, s{S_W}\ns_cmp_lg_u32 s{S_T0}, 0\ns_cbranch_scc1 L_nowb\nbuffer_wbl2 sc1\nL_nowb:")
            if d == 11:
                A(f"s_add_u32 s{S_T4}, s{S_W}, 4")
                self.c += gather_scalars(o, S_T4) + gather_lanes(o, V_MO, V_MF)
            if d == o.expoll:
                self.extra_setup()
            if d == max(15, o.expoll):
                self.extra_loads()
        assert not self.q
        self.c += self.st("D17")
        self.extra_sum()
        self.c += self.st("edone")
        if o.own or o.fbar:
            A("s_barrier")
        A(f"s_cmp_ge_u32 s{S_W}, 2\ns_cbranch_scc1 L_fin_l")
        if o.lfirst:
            A(f"s_sleep {o.lfirst}")
        self.c += gather_main(o, "L_gl", V_LIN, V_MO, V_MF)
        A("L_fin_l:")
        if o.stamps:
            A("s_waitcnt vmcnt(0)")
            self.c += self.st("end")
            self.c += self.st.dump(1)
        A("s_endpgm")
        return self.c


X_FL, X_OUT, D_PA, X_LIN, X_L0 = 1, 2, 5, 6, 7
D_VA, D_VA2, D_WA, D_WA2 = 8, 12, 16, 20
C_WA, C_XA, C_PW, C_KA = 24, 32, 35, 37
D_EA = 56
C_AF = [64, 96]
C_BF = [128, 140]
C_ACC = 160
D_OUTM, D_OUTE, D_VW, D_F01, D_F2 = 24, 72, 96, 144, 160
D_V = [176, 188]
D_P = [200, 212]
D_W = [224, 240]


def acc(t, st):
    return C_ACC + (t * 3 + st) * 4


def mfma(d, a, b, c):
    cc = "0" if c is None else vr(c, 4)
    return I(f"v_mfma_f32_16x16x32_bf16 {vr(d,4)}, {vr(a,4)}, {vr(b,4)}, {cc}")


class Compute:
    SETS = [list(range(24, 34)), [45, 46, 47, 48, 49, 50, 51, 52, 53, 54], [55, 58, 59, 60, 61, 62, 63, 1, 2, 3]]
    VHOLD = [D_P[0], D_P[1], D_V[0], D_V[1]]

    def __init__(self, o):
        self.o, self.c = o, []
        self.st = Stamper(o.stamps)
        if o.stp1:
            self.st.only = "cycA"
        if o.stp2:
            self.st.only = "cycB"
        self.tok = 0

    def A(self, s):
        self.c += L(s)

    def anchor(self, ins, after):
        self.tok += 1
        t = f"tok{self.tok}"
        after.swr = after.swr | {t}
        ins.srd = ins.srd | {t}
        return ins

    def bar(self, after=None, drain=False):
        r = L("s_waitcnt lgkmcnt(0)\ns_barrier" if drain else "s_barrier")
        for a in (after or []):
            self.anchor(r[0], a)
        return r

    def p1_reads(self, kb, s, n):
        a = self.SETS[n % 3]
        r = [I(f"ds_read_b128 {vr(C_BF[s],4)}, v{a[8+kb]} offset:0")]
        for t in range(8):
            for i in range(2):
                r.append(I(f"ds_read_b64_tr_b16 {vr(C_AF[s]+4*t+2*i,2)}, v{a[t]} offset:{kb*16384+i*2048}"))
            if t == 0:
                r += [I(f"ds_read_b128 {vr(C_BF[s]+4*st,4)}, v{a[8+kb]} offset:{st*2048}") for st in (1, 2)]
        return r

    def p1_mfmas(self, s, first):
        return [mfma(acc(t, st), C_AF[s] + 4 * t, C_BF[s] + 4 * st, None if first else acc(t, st))
                for t in range(8) for st in range(3)]

    def kfrag(self, kt, p):
        i = p * 3 + kt
        if i < 8:
            return C_AF[0] + 4 * i
        if i < 11:
            return C_BF[0] + 4 * (i - 8)
        return 152

    def sacc(self, kt, st):
        i = st * 3 + kt
        return C_AF[1] + 4 * i if i < 8 else C_BF[1]

    def startup(self):
        o, A = self.o, self.A
        A("L_compute:")
        self.c += self.st("start")
        if o.prio_compute:
            A(f"s_setprio {o.prio_compute}")
        A(f"""
s_cmp_ge_u32 s2, 8
s_cbranch_scc1 L_no_pf
s_getpc_b64 s[{S_EX}:{S_EX+1}]
L_pc:
s_sub_u32 s{S_EX}, s{S_EX}, L_pc-{NAME}
s_subb_u32 s{S_EX+1}, s{S_EX+1}, 0
s_lshl_b32 s{S_T0}, s{S_W}, 13
v_lshlrev_b32 v152, 7, v0
v_add_u32 v152, s{S_T0}, v152
v_min_u32 v152, L_end-{NAME}, v152
global_load_dword v153, v152, s[{S_EX}:{S_EX+1}]
L_no_pf:
""")
        if o.walk:
            self.c += walk_entry("Wc")
        A(f"""
s_lshr_b32 s{S_T0}, s{S_W}, 1
s_and_b32 s{S_T1}, s{S_W}, 1
v_lshrrev_b32 v48, 4, v0
v_bfe_u32 v49, v0, 2, 2
v_and_b32 v50, 3, v0
v_and_b32 v51, 15, v0
v_and_b32 v52, 1, v48
v_lshl_or_b32 v52, v52, 2, v49
v_lshl_add_u32 v53, v48, 3, v49
v_lshlrev_b32 v54, 9, v53
v_lshl_add_u32 v54, v52, 5, v54
v_lshl_add_u32 v54, v50, 3, v54
s_lshl_b32 s{S_T2}, s{S_T1}, 8
v_add_u32 v{C_WA}, s{S_T2}, v54
""")
        for t in range(1, 8):
            A(f"v_xor_b32 v{C_WA+t}, {t<<5}, v{C_WA}")
        A(f"""
v_lshrrev_b32 v54, 1, v51
v_xor_b32 v54, v54, v48
v_lshlrev_b32 v54, 4, v54
v_lshl_add_u32 v54, v51, 7, v54
s_mul_i32 s{S_T2}, s{S_T0}, 6144
s_add_u32 s{S_T2}, s{S_T2}, 32768
v_add_u32 v{C_XA}, s{S_T2}, v54
v_xor_b32 v{C_XA+1}, 64, v{C_XA}
v_lshrrev_b32 v54, 1, v48
v_xor_b32 v54, v54, v51
v_lshlrev_b32 v54, 4, v54
v_lshl_add_u32 v54, v51, 8, v54
v_and_b32 v55, 1, v48
v_lshl_add_u32 v54, v55, 3, v54
s_mul_i32 s{S_T2}, s{S_T0}, 12288
s_add_u32 s{S_T3}, s{S_T2}, {K_LDS}
v_add_u32 v{C_KA}, s{S_T3}, v54
""")
        for pe in range(1, 8):
            A(f"v_xor_b32 v{C_KA+pe}, {pe<<5}, v{C_KA}")
        A(f"""
s_mul_i32 s{S_T3}, s{S_T0}, 3072
s_add_u32 s{S_T3}, s{S_T3}, {P_LDS}
v_lshl_add_u32 v{D_PA}, v0, 4, s{S_T3}
s_mul_i32 s{S_T3}, s{S_T1}, 6144
v_add_u32 v{C_PW}, s{S_T3}, v{D_PA}
s_lshl_b32 s{S_T3}, s{S_T1}, 3
v_add_u32 v{C_PW+1}, s{S_T3}, v{D_PA}
v_xor_b32 v54, v48, v51
v_lshlrev_b32 v54, 4, v54
v_lshl_add_u32 v54, v51, 8, v54
s_lshr_b32 s{S_T3}, s{S_BP}, 2
s_and_b32 s{S_T3}, s{S_T3}, {1 if o.flip else 0}
s_lshl_b32 s{S_T3}, s{S_T3}, 7
v_xor_b32 v54, s{S_T3}, v54
v_add_u32 v{D_VA}, s{S_T2}, v54
v_xor_b32 v{D_VA+1}, 64, v{D_VA}
v_xor_b32 v{D_VA+2}, 128, v{D_VA}
v_xor_b32 v{D_VA+3}, 192, v{D_VA}
v_lshlrev_b32 v54, 8, v53
v_lshl_add_u32 v54, v50, 3, v54
s_lshl_b32 s{S_T3}, s{S_T1}, 2
v_xor_b32 v55, s{S_T3}, v52
v_lshl_add_u32 v54, v55, 5, v54
v_add_u32 v{D_WA}, {W_LDS[0]}, v54
v_xor_b32 v{D_WA+1}, 32, v{D_WA}
v_xor_b32 v{D_WA+2}, 64, v{D_WA}
v_xor_b32 v{D_WA+3}, 96, v{D_WA}
v_lshlrev_b32 v54, 7, v53
v_lshl_add_u32 v54, v50, 3, v54
v_and_b32 v55, 1, v48
v_lshlrev_b32 v55, 1, v55
v_lshrrev_b32 v58, 1, v49
v_or_b32 v55, v55, v58
s_lshl_b32 s{S_T3}, s{S_T1}, 1
v_xor_b32 v55, s{S_T3}, v55
v_lshl_add_u32 v54, v55, 5, v54
v_add_u32 v{D_EA}, {W_LDS[0]}, v54
v_xor_b32 v{D_EA+1}, 32, v{D_EA}
""")
        for t in range(4):
            A(f"v_add_u32 v{D_WA2+t}, {W_LDS[3]-W_LDS[0]}, v{D_WA+t}\nv_add_u32 v{D_VA2+t}, {V_LDS[1]-V_LDS[0]}, v{D_VA+t}")
        A(f"""
v_lshlrev_b32 v{X_LIN}, 4, v0
s_mov_b32 s{S_C0}, 0x3e0293ee
s_mov_b32 s{S_C0+1}, 0x3e0293ee
v_cmp_eq_u32 vcc, 0, v0
v_mov_b32 v54, 0x40000000
v_cndmask_b32 v{X_L0}, v54, 0, vcc
""")
        for k in (1, 2):
            for i in range(10):
                A(f"v_add_u32 v{self.SETS[k][i]}, {A_SLOT[k]}, v{self.SETS[0][i]}")
        A("s_waitcnt lgkmcnt(0)")
        self.c += common_scalars(o) + gather_scalars(o, S_W)
        A(f"""
s_add_u32 s{S_T0}, s{S_GRP}, s{S_J}
s_lshl_b32 s{S_EF}, s{S_T0}, 7
s_lshl_b32 s{S_T1}, s{S_W}, 3
s_add_u32 s{S_EF}, s{S_EF}, s{S_T1}
s_add_u32 s{S_EF}, s{S_EF}, {WS_FLAG + 64}
s_lshl_b32 s{S_T0}, s{S_T0}, 2
s_add_u32 s{S_T0}, s{S_T0}, s{S_W}
s_mul_i32 s{S_ES}, s{S_T0}, 3072
s_add_u32 s{S_ES}, s{S_ES}, {WS_PE}
s_mul_i32 s{S_MS}, s{S_T0}, 6144
s_add_u32 s{S_MS}, s{S_MS}, {WS_PM}
{f's_cmp_eq_u32 s{S_W}, s{S_KQ}' if o.own else ''}
{f's_cselect_b32 s{S_MS}, 0x40000000, s{S_MS}' if o.own else ''}
s_add_u32 s{S_MS+1}, s{S_MS}, 3072
s_lshl_b32 s{S_MF}, s{S_W}, 2
s_add_u32 s{S_MF}, s{S_MF}, s{S_GRP}
s_add_u32 s{S_MF}, s{S_MF}, s{S_JL}
s_lshl_b32 s{S_MF}, s{S_MF}, 7
s_lshl_b32 s{S_T1}, s{S_KQ}, 3
s_add_u32 s{S_MF}, s{S_MF}, s{S_T1}
s_add_u32 s{S_MF}, s{S_MF}, {WS_FLAG2}
s_or_b32 s{S_T0}, s2, s{S_W}
s_cmp_lg_u32 s{S_T0}, 0
s_cbranch_scc1 L_no_nonce
s_memrealtime {sr(S_NON,2)}
s_waitcnt lgkmcnt(0)
s_or_b32 s{S_NON}, s{S_NON}, 1
v_mov_b32 v154, s{S_NON}
v_mov_b32 v155, s{S_NON+1}
s_mov_b64 exec, 1
buffer_store_dwordx2 v[154:155], v{X_LIN}, {sr(R_DBG,4)}, 0 offen sc1
s_mov_b64 exec, -1
L_no_nonce:
Wc_begin:
s_barrier
""")
        self.c += self.st("B0")
        self.c += self.st("cyc0")

    def softmax(self, st):
        M, R = 46 + 2 * st, (52, 54, 58)[st]
        T = M + 1
        U0, U1 = (60, 62) if st != 1 else (152, 154)
        v = [self.sacc(kt, st) + r for kt in range(3) for r in range(4)]
        s = f"""
v_max3_f32 v{M}, v{v[0]}, v{v[1]}, v{v[2]}
v_max3_f32 v{T}, v{v[3]}, v{v[4]}, v{v[5]}
v_max3_f32 v{M}, v{M}, v{v[6]}, v{v[7]}
v_max3_f32 v{T}, v{T}, v{v[8]}, v{v[9]}
v_max3_f32 v{M}, v{M}, v{v[10]}, v{v[11]}
v_max_f32 v{M}, v{M}, v{T}
"""
        for sw in ("v_permlane32_swap_b32", "v_permlane16_swap_b32"):
            s += f"v_mov_b32 v{T}, v{M}\n{sw} v{T}, v{M}\nv_max_f32 v{M}, v{M}, v{T}\n"
        s += f"v_mul_f32 v{M}, s{S_C0}, v{M}\n"
        for i in range(0, 12, 2):
            s += f"v_pk_fma_f32 {vr(v[i],2)}, {vr(v[i],2)}, {sr(S_C0,2)}, {vr(M,2)} op_sel_hi:[1,1,0] neg_lo:[0,0,1] neg_hi:[0,0,1]\n"
        for x in v:
            s += f"v_exp_f32 v{x}, v{x}\n"
        s += f"v_pk_add_f32 {vr(U0,2)}, {vr(v[0],2)}, {vr(v[2],2)}\nv_pk_add_f32 {vr(U1,2)}, {vr(v[4],2)}, {vr(v[6],2)}\n"
        s += f"v_pk_add_f32 {vr(U0,2)}, {vr(U0,2)}, {vr(v[8],2)}\nv_pk_add_f32 {vr(U1,2)}, {vr(U1,2)}, {vr(v[10],2)}\n"
        s += f"v_pk_add_f32 {vr(U0,2)}, {vr(U0,2)}, {vr(U1,2)}\nv_add_f32 v{R}, v{U0}, v{U0+1}\n"
        for sw in ("v_permlane32_swap_b32", "v_permlane16_swap_b32"):
            s += f"v_mov_b32 v{R+1}, v{R}\n{sw} v{R+1}, v{R}\nv_add_f32 v{R}, v{R}, v{R+1}\n"
        s += f"v_rcp_f32 v{R}, v{R}\n"
        for i in range(0, 12, 2):
            s += f"v_pk_mul_f32 {vr(v[i],2)}, {vr(v[i],2)}, {vr(R,2)} op_sel_hi:[1,0]\n"
        a, c2 = v[0], v[8]
        for i in range(4):
            s += f"v_cvt_pk_bf16_f32 v{a+i}, v{v[2*i]}, v{v[2*i+1]}\n"
        for i in range(2):
            s += f"v_cvt_pk_bf16_f32 v{c2+i}, v{v[8+2*i]}, v{v[9+2*i]}\n"
        if self.o.dg_n & 2:
            s = "\n".join(l for l in s.split("\n") if "cvt" in l) + "\n"
        return L(s + f"ds_write_b128 v{C_PW}, {vr(a,4)} offset:{st*1024}\nds_write_b64 v{C_PW+1}, {vr(c2,2)} offset:{12288+st*1024}")

    def v_reads(self, ks, dst, buf=0):
        a = (D_VA if buf == 0 else D_VA2) + ks
        return [I(f"ds_read_b128 {vr(dst+4*kt,4)}, v{a} offset:{kt*4096}") for kt in range(3)]

    def step_reads(self, q, step):
        if q < 2:
            so = W_LDS[q] - W_LDS[0]
            return [I(f"ds_read_b64_tr_b16 {vr(D_W[step]+4*(2*kk+t)+2*i,2)}, v{D_EA+t} offset:{so+(2*step+kk)*4096+i*512}")
                    for kk in range(2) for t in range(2) for i in range(2)]
        pos, r4 = divmod(q - 2, 4)
        sl = q % 5
        base, so = (D_WA, W_LDS[sl] - W_LDS[0]) if sl < 3 else (D_WA2, W_LDS[sl] - W_LDS[3])
        w = [I(f"ds_read_b64_tr_b16 {vr(D_W[step]+4*t+2*i,2)}, v{base+t} offset:{so+step*8192+i*1024}")
             for t in range(4) for i in range(2)]
        if q < 4:
            return w
        v = self.v_reads(2 * (r4 & 1) + step, D_V[step], pos % 2)
        return [v[0], w[0], w[1], v[1], v[2]] + w[2:]

    def p_reads(self, f, s):
        return [I(f"ds_read_b128 {vr(D_P[s]+4*st,4)}, v{D_PA} offset:{f*6144+st*1024}") for st in range(3)]

    def vw(self, t, kt):
        return D_VW + (t * 3 + kt) * 4

    def cvt_tile(self, t, f01, f2, h):
        r = []
        for kt in range(3):
            s = self.vw(t, kt)
            d = f01 + 2 * kt if kt < 2 else f2 + 2 * h
            r += L(f"v_cvt_pk_bf16_f32 v{d}, v{s}, v{s+1}\nv_cvt_pk_bf16_f32 v{d+1}, v{s+2}, v{s+3}")
        return r

    def finals(self, outb, fb, ps, nt, first=False):
        return [mfma(outb + (t * 3 + st) * 4, fb + 4 * t, D_P[ps] + 4 * st, None if first else outb + (t * 3 + st) * 4)
                for t in range(nt) for st in range(3)]

    def blocks(self, base, soff):
        val, sto = [], []
        for st in range(3):
            a, b = base + 4 * st, base + 12 + 4 * st
            val += L(f"""
v_cvt_pk_bf16_f32 v{a}, v{a}, v{a+1}
v_cvt_pk_bf16_f32 v{a+1}, v{a+2}, v{a+3}
v_cvt_pk_bf16_f32 v{a+2}, v{b}, v{b+1}
v_cvt_pk_bf16_f32 v{a+3}, v{b+2}, v{b+3}
""")
            sto.append(I(f"buffer_store_dwordx4 {vr(a,4)}, v{X_LIN}, {sr(R_WS,4)}, s{soff} offen offset:{st*1024} sc1"))
        return val, sto

    def main_block(self):
        o = self.o
        b = []
        b += self.p1_reads(0, 0, 0)
        for n in range(9):
            mA = self.p1_mfmas(0, n == 0)
            mB = self.p1_mfmas(1, False)
            if o.dg_n & 1:
                mB = mB[:12]
            b += self.p1_reads(1, 1, n) + mA + self.bar([mA[o.ck1]], drain=True)
            if (o.dg_gap and n == o.dg_gapn) or o.dg_gapall:
                g = self.anchor(I(f"s_sleep {o.dg_gap or o.dg_gapall}"), mA[-1])
                g.note = "chain"
                b.append(g)
                self.anchor(mB[0], g)
            if o.stp1:
                b += [self.anchor(x, mA[-1]) for x in self.st(f"cycA{n}")]
            if n < 8:
                b += self.p1_reads(0, 0, n + 1)
            else:
                for p in range(4):
                    for kt in range(3):
                        for e in range(2):
                            b.append(I(f"ds_read_b64 {vr(self.kfrag(kt,p)+2*e,2)}, v{C_KA+2*p+e} offset:{kt*4096}"))
            b += mB
        b += [self.anchor(x, mB[-1]) for x in self.st("Qdone") + self.st("cyc1")]
        qk = []
        for st in range(3):
            for p in range(4):
                a, c = acc(2 * p, st), acc(2 * p + 1, st)
                b += L(f"""
v_cvt_pk_bf16_f32 v{a}, v{a}, v{a+1}
v_cvt_pk_bf16_f32 v{a+1}, v{a+2}, v{a+3}
v_cvt_pk_bf16_f32 v{a+2}, v{c}, v{c+1}
v_cvt_pk_bf16_f32 v{a+3}, v{c+2}, v{c+3}
""")
            m = [mfma(self.sacc(kt, st), self.kfrag(kt, p), acc(2 * p, st), None if p == 0 else self.sacc(kt, st))
                 for p in range(4) for kt in range(3)]
            qk += m
            b += m
        b += self.bar(qk)
        first = []
        for ks in range(4):
            first += self.v_reads(ks, self.VHOLD[ks])
        w0 = self.step_reads(0, 0)
        b += first[0:3] + w0[0:4] + first[3:6] + w0[4:8] + first[6:12]
        if o.w5first:
            b += self.step_reads(0, 1)
        for st in range(3):
            b += self.softmax(st)
        b += self.bar(drain=True)
        b += self.st("Pw") + self.st("cycP")
        b += gather_lanes(o, X_OUT, X_FL)
        NV = D_OUTE + 12
        EF = [D_OUTM, D_OUTM + 8, D_OUTM + 16]
        for q in range(18):
            pos, r4 = divmod(q - 2, 4) if q >= 2 else (0, -1)
            vwm = []
            for step in range(2):
                if q < 2:
                    vwm.append([mfma(self.vw(2 * q + t, kt), self.VHOLD[2 * step + kk] + 4 * kt, D_W[step] + 4 * (2 * kk + t),
                                     None if (step == 0 and kk == 0) else self.vw(2 * q + t, kt))
                                for kk in range(2) for t in range(2) for kt in range(3)])
                else:
                    ks = 2 * (r4 & 1) + step
                    vb = self.VHOLD[ks] if q in (2, 3) else D_V[step]
                    vwm.append([mfma(self.vw(t, kt), vb + 4 * kt, D_W[step] + 4 * t, None if ks == 0 else self.vw(t, kt))
                                for t in range(4) for kt in range(3)])
            fin, pr = [], []
            if q == 3:
                fin, pr = self.finals(D_OUTE, EF[0], 0, 2, first=True), self.p_reads(0, 0)
            elif q == 4:
                fin = self.finals(D_OUTE, EF[1], 1, 2) + self.finals(D_OUTE, EF[2], 0, 2)
                pr = self.p_reads(1, 1) + self.p_reads(2, 0)
            elif q >= 2 and r4 == 3:
                fin, pr = self.finals(D_OUTM, D_F01, 1, 4, first=(pos == 0)), self.p_reads(0, 1)
            elif q >= 6 and r4 == 0:
                fin, pr = self.finals(D_OUTM, D_F01, 0, 4), self.p_reads(1, 0)
            elif q >= 6 and r4 == 1:
                fin, pr = self.finals(D_OUTM, D_F2, 1, 4), self.p_reads(2, 1)
            if (o.dg_n & 4 and 5 <= q <= 9) or (o.dg_n & 8 and q >= 10):
                fin = fin[:1]
            mA = vwm[0] + fin
            lt = []
            if q == o.exq:
                val, sto = self.blocks(D_OUTE, S_ES)
                lt = val + [self.anchor(sto[0], mA[min(len(mA) - 1, o.exi)])] + sto[1:] + \
                    L(f"buffer_load_dwordx2 {vr(NV,2)}, v{X_L0}, {sr(R_DBG,4)}, 0 offen sc1")
            if q == o.exf:
                lt = L(f"s_waitcnt vmcnt(0)\nbuffer_store_dwordx2 {vr(NV,2)}, v{X_L0}, {sr(R_WS,4)}, s{S_EF} offen sc1")
                self.anchor(lt[0], mA[min(len(mA) - 1, o.dpos - 3)])
                lt[0].wr = {NV, NV + 1}
                lt += L(f"v_readfirstlane_b32 s{S_NON}, v{NV}\nv_readfirstlane_b32 s{S_NON+1}, v{NV+1}")
            r1 = [] if (q == 0 and o.w5first) else self.step_reads(q, 1)
            b += pr + (lt + r1 if (o.exi < 8 and q == o.exq) else r1 + lt) + mA
            if q % 2 == 1:
                b += self.bar([mA[min(o.dpos, len(mA) - 2)]], drain=True)
                if o.stp2:
                    b += [self.anchor(x, mA[-1]) for x in self.st(f"cycB{q}")]
            b += self.step_reads(q + 1, 0) if q < 17 else self.p_reads(1, 0) + self.p_reads(2, 1)
            b += vwm[1]
            if q < 2:
                for t in range(2):
                    b += self.cvt_tile(2 * q + t, EF[q] + 4 * t, EF[2] + 4 * t, q)
            elif r4 & 1:
                for t in range(4):
                    b += self.cvt_tile(t, D_F01 + 4 * t, D_F2 + 4 * t, r4 >> 1)
        f1 = self.finals(D_OUTM, D_F01, 0, 4)
        f2 = self.finals(D_OUTM, D_F2, 1, 4)
        for tp in range(2):
            b += f1[6 * tp:6 * tp + 6] + f2[6 * tp:6 * tp + 6]
        b += [self.anchor(x, f2[-1]) for x in self.st("P2done") + self.st("cyc2")]
        for tp in range(2):
            val, sto = self.blocks(D_OUTM + 24 * tp, S_MS + tp)
            b += val
            if o.own and not o.inblk:
                self.final_stores = getattr(self, "final_stores", []) + sto
            else:
                b += sto
        return b

    def gen(self):
        o = self.o
        self.startup()
        Sched.FILL, Sched.DS_LAT, Sched.DS_SCALE, Sched.WAR_DS, Sched.WAR_MEM, Sched.MFMA_LAT = \
            o.fill, o.dslat, o.dsscale, o.wards, o.warmem, o.mlat
        self.c += schedule(self.main_block())
        print("modelled cycles:", schedule.last_time)
        NV = D_OUTE + 12
        flag = L(f"s_waitcnt vmcnt(0)\nbuffer_store_dwordx2 {vr(NV,2)}, v{X_L0}, {sr(R_WS,4)}, s{S_MF} offen sc1")
        if o.own:
            self.A(f"s_cmp_eq_u32 s{S_W}, s{S_KQ}\ns_cbranch_scc1 L_own")
            self.c += getattr(self, "final_stores", []) + L("s_barrier") + flag + L("s_branch L_ownd\nL_own:")
            for i in range(6):
                self.A(f"ds_write_b128 v{X_LIN}, {vr(D_OUTM + 24 * (i // 3) + 4 * (i % 3), 4)} offset:{OWN_LDS + i * 1024}")
            self.A("s_waitcnt lgkmcnt(0)\ns_barrier")
            if o.lfirst:
                self.A(f"s_sleep {o.lfirst}")
            self.A("L_ownd:")
        else:
            if o.fbar:
                self.A("s_barrier")
            self.c += flag
        self.c += self.st("stored")
        self.c += gather_main(o, "L_gc", X_LIN, X_OUT, X_FL)
        if o.stamps:
            self.A("s_waitcnt vmcnt(0)")
            self.c += self.st("end")
            self.c += self.st.dump(0)
        self.A("s_endpgm\nWc_end:")
        return self.c


def generate(o):
    o.pol = o.pol.replace('+', ' ')
    ld, cp = Loader(o), Compute(o)
    body = finalize(prologue(o)) + finalize(ld.gen()) + finalize(cp.gen(), age=o.age)
    if o.walk:
        body = add_stubs(body, [("Wl_begin", "L_compute", "Wl", 4, "Wl_ret"), ("Wc_begin", "Wc_end", "Wc", 4, "Wc_ret")],
                         prefix=f"{NAME}:\n", smart=0)
    hdr = open("concat_heads__gqa_block_cached__gqa_block_cached__near_ridge.s.ref").read().split("\n")
    head = [l for l in hdr if l.startswith(";") and "@launch" not in l]
    s = "\n".join(head) + f"\n; @launch grid=(256,1,1) block=(512,1,1) lds={LDS_BYTES}\n"
    s += f'.amdgcn_target "amdgcn-amd-amdhsa--gfx950"\n.text\n.globl {NAME}\n.p2align 8\n.type {NAME},@function\n{NAME}:\n'
    s += text(body) + "\nL_end:\n    s_endpgm\n"
    s += f""".section .rodata,"a"
.p2align 6
.amdhsa_kernel {NAME}
  .amdhsa_next_free_vgpr 256
  .amdhsa_next_free_sgpr 102
  .amdhsa_accum_offset 256
  .amdhsa_group_segment_fixed_size 0
  .amdhsa_kernarg_size 104
  .amdhsa_user_sgpr_count 2
  .amdhsa_user_sgpr_kernarg_segment_ptr 1
  .amdhsa_system_sgpr_workgroup_id_x 1
.end_amdhsa_kernel
"""
    return s, ld.st.names, cp.st.names


if __name__ == "__main__":
    o = Opt()
    out = sys.argv[1]
    for a in sys.argv[2:]:
        k, v = a.split("=")
        cur = getattr(o, k)
        setattr(o, k, (v == "1") if isinstance(cur, bool) else type(cur)(v))
    s, ln, cn = generate(o)
    open(out, "w").write(s)
    if o.stamps:
        open(out + ".names", "w").write(repr((cn, ln, 0, WS_STAMP)))
    print("generated", out, len(s.splitlines()), "lines")
```

```python
import sys
from asmlib import *

NAME = "concat_heads__gqa_block_cached__gqa_block_cached__near_ridge_kernel"


class Opt:
    stamps = False
    stp1 = False
    stp2 = False
    ldexit = False
    walk = False
    refresh = 5
    rot = 2
    rotoff = 5
    kpos = -1
    budget = 11
    budget1 = 5
    budget0 = 99
    flip = True
    cqrot = 1
    w5first = False
    earlyflag = True
    exq = 5
    exi = 10
    exf = 9
    expoll = 13
    inblk = True
    dg_plain = 0
    wbat = 13
    dg_gap = 0
    dg_gapn = 4
    dg_gapall = 0
    dg_n = 0
    kspread = False
    vspread = False
    pace2 = 0
    stag = 0
    blist = '5555bbb'
    pol = ''
    ldfirst = False
    fsh = 3
    vfirst = 0
    own = True
    fill = 5
    dslat = 120
    dsscale = 1.15
    wards = 8
    warmem = 160
    mlat = 56
    ck1 = 22
    dpos = 13
    age = 24
    gsleep = 0
    fbar = False
    lfirst = 0
    prio_loader = 0
    prio_compute = 0


SLOT = 45056
A_SLOT = [0, SLOT, 2 * SLOT]
K_LDS = 3 * SLOT
P_LDS = K_LDS
V_LDS = [0, 110592]
W_LDS = [24576, 45056, 61440, 77824, 94208]
LDS_BYTES = 163840

WS_P = 0
WS_PM = 256 * 18432
WS_PE = WS_PM + 256 * 24576
WS_FLAG = WS_PE + 256 * 12288
WS_FLAG2 = WS_FLAG + 256 * 128
WS_STAMP = WS_FLAG2 + 256 * 512
OWN_LDS = 0
WS_USED = WS_STAMP + 256 * 512

S_X, S_K, S_V, S_WQ, S_WO = 4, 6, 8, 10, 12
S_OUT, S_DBG, S_WS = 14, 16, 18
R_X, R_WQ, R_K, R_V, R_WO, R_WS, R_OUT, R_DBG = 20, 24, 28, 32, 36, 40, 44, 48
S_BR, S_KQ, S_BP, S_JL, S_J, S_CQ, S_W, S_KC = 52, 53, 54, 55, 56, 57, 58, 59
S_T0, S_T1, S_T2, S_T3, S_T4, S_T5 = 60, 61, 62, 63, 64, 65
S_NON = 66
S_GRP = 68
S_CNT = 69
S_EX = 70
S_EI, S_EO = 70, 71
S_C0 = 72
S_ES, S_EF, S_MS = 74, 75, 100
S_F0, S_F1 = 4, 5
S_GI = 6
S_GO, S_FL, S_MF = 10, 11, 12
S_ST = 76
NSTAMP = 12
SPIN_MAX = 200000


def L(s):
    return [I(x) for x in s.strip().split("\n") if x.strip()]


class Stamper:
    def __init__(self, on):
        self.on, self.n, self.names, self.only = on, 0, [], None

    def __call__(self, name):
        if not self.on or (self.only and not name.startswith(self.only) and name not in ("start", "cyc0")):
            return []
        assert self.n < NSTAMP
        r = S_ST + 2 * self.n
        self.n += 1
        self.names.append(name)
        return [I(f"{'s_memtime' if name.startswith('cyc') else 's_memrealtime'} {sr(r,2)}")]

    def dump(self, role):
        if not self.on:
            return []
        tag = "cl"[role]
        o = L(f"""
s_cmp_lg_u32 s{S_W}, 0
s_cbranch_scc1 L_nostamp_{tag}
s_waitcnt lgkmcnt(0)
s_lshl_b32 s{S_T0}, s2, 9
s_add_u32 s{S_T0}, s{S_T0}, {WS_STAMP + role*256}
v_mov_b32 v1, 0
s_mov_b64 exec, 1
""")
        for i in range(self.n):
            o += L(f"""
v_mov_b32 v2, s{S_ST+2*i}
v_mov_b32 v3, s{S_ST+2*i+1}
buffer_store_dwordx2 v[2:3], v1, {sr(R_WS,4)}, s{S_T0} offen offset:{8*i}
s_nop 1
""")
        o += L(f"s_mov_b64 exec, -1\nL_nostamp_{tag}:")
        return o


def srd(r, ptr, size):
    return L(f"""
s_mov_b32 s{r}, s{ptr}
s_and_b32 s{r+1}, s{ptr+1}, 0xffff
s_mov_b32 s{r+2}, {size}
s_mov_b32 s{r+3}, 0x20000
""")


def srd_off(r, ptr, soff, total):
    return L(f"""
s_add_u32 s{r}, s{ptr}, s{soff}
s_addc_u32 s{r+1}, s{ptr+1}, 0
s_and_b32 s{r+1}, s{r+1}, 0xffff
s_sub_u32 s{r+2}, {total}, s{soff}
s_mov_b32 s{r+3}, 0x20000
""")


def walk_entry(tag):
    c = L("s_mov_b64 exec, 0")
    for w in range(3):
        c += L(f"s_cmp_eq_u32 s{S_W}, {w}\ns_cbranch_scc1 {tag}_w{w}")
    c += L(f"s_branch {tag}_w3\n{tag}_ret:\ns_mov_b64 exec, -1")
    return c


def prologue(o):
    return L(f"""
s_and_b32 s{S_T0}, s2, 7
s_lshr_b32 s{S_BR}, s{S_T0}, 2
s_mul_i32 s{S_T1}, s{S_BR}, 40
s_load_dwordx8 s[4:11], s[0:1], s{S_T1}
s_load_dwordx2 s[12:13], s[0:1], s{S_T1} offset:32
s_load_dwordx2 s[14:15], s[0:1], 80
s_load_dwordx4 s[16:19], s[0:1], 88
s_cmp_ge_u32 s2, 256
s_cbranch_scc1 L_end
v_lshrrev_b32 v1, 6, v0
s_and_b32 s{S_KQ}, s{S_T0}, 3
s_lshr_b32 s{S_T2}, s2, 3
v_readfirstlane_b32 s{S_W}, v1
s_lshr_b32 s{S_BP}, s{S_T2}, 2
s_and_b32 s{S_JL}, s{S_T2}, 3
s_lshl_b32 s{S_J}, s{S_KQ}, 2
s_add_u32 s{S_J}, s{S_J}, s{S_JL}
v_and_b32 v0, 63, v0
{f's_xor_b32 s{S_W}, s{S_W}, 4' if o.ldfirst else ''}
s_cmp_lt_u32 s{S_W}, 4
s_cbranch_scc1 L_compute
""")


def common_scalars(o):
    return L(f"""
s_mul_i32 s{S_CQ}, s{S_BP}, {o.cqrot}
s_add_u32 s{S_CQ}, s{S_JL}, s{S_CQ}
s_and_b32 s{S_CQ}, s{S_CQ}, 3
s_lshl_b32 s{S_GRP}, s{S_BR}, 3
s_add_u32 s{S_GRP}, s{S_GRP}, s{S_BP}
s_lshl_b32 s{S_GRP}, s{S_GRP}, 4
s_mul_i32 s{S_T0}, s{S_BR}, 1152
""") + srd_off(R_OUT, S_OUT, S_T0, 1769472) + srd(R_WS, S_WS, WS_USED) + srd(R_DBG, S_DBG, 256)


def gather_scalars(o, m):
    c = L(f"""
s_add_u32 s{S_T0}, s{S_GRP}, s{S_JL}
s_lshl_b32 s{S_T0}, s{S_T0}, 2
s_add_u32 s{S_T0}, s{S_T0}, s{S_KQ}
s_mul_i32 s{S_T0}, s{S_T0}, 6
s_add_u32 s{S_T0}, s{S_T0}, s{m}
s_lshl_b32 s{S_T0}, s{S_T0}, 10
s_add_u32 s{S_T0}, s{S_T0}, {WS_PM}
""")
    for k in range(4):
        if o.own:
            if k < 3:
                c += L(f"""
s_add_u32 s{S_T1}, s{S_KQ}, {k+1}
s_and_b32 s{S_T1}, s{S_T1}, 3
s_mul_i32 s{S_T1}, s{S_T1}, {4*24576}
s_add_u32 s{S_GI+k}, s{S_T0}, s{S_T1}
""")
            else:
                c += L(f"s_lshl_b32 s{S_GI+3}, s{m}, 10")
        else:
            c += L(f"s_add_u32 s{S_GI+k}, s{S_T0}, {k*4*24576}")
    return c + L(f"""
s_cmp_ge_u32 s{m}, 3
s_cselect_b32 s{S_T1}, 1, 0
s_mul_i32 s{S_T2}, s{S_T1}, 3
s_sub_u32 s{S_T2}, s{m}, s{S_T2}
s_lshr_b32 s{S_T3}, s{S_KQ}, 1
s_lshl_b32 s{S_T0}, s{S_BP}, 1
s_add_u32 s{S_T3}, s{S_T3}, s{S_T0}
s_mul_i32 s{S_T3}, s{S_T3}, 48
s_lshl_b32 s{S_T2}, s{S_T2}, 4
s_add_u32 s{S_T3}, s{S_T3}, s{S_T2}
s_mul_i32 s{S_T3}, s{S_T3}, 2304
s_lshl_b32 s{S_T2}, s{S_CQ}, 8
s_add_u32 s{S_T3}, s{S_T3}, s{S_T2}
s_and_b32 s{S_T2}, s{S_KQ}, 1
s_lshl_b32 s{S_T2}, s{S_T2}, 7
s_add_u32 s{S_T3}, s{S_T3}, s{S_T2}
s_lshl_b32 s{S_T1}, s{S_T1}, 6
s_add_u32 s{S_GO}, s{S_T3}, s{S_T1}
s_add_u32 s{S_FL}, s{S_GRP}, s{S_J}
s_lshl_b32 s{S_FL}, s{S_FL}, 9
s_add_u32 s{S_FL}, s{S_FL}, {WS_FLAG2}
""")


def gather_lanes(o, vout, vfl):
    c = L(f"""
v_and_b32 v{vout}, 15, v0
v_mul_u32_u24 v{vout}, 2304, v{vout}
v_bfe_u32 v{vout+1}, v0, 4, 1
v_lshl_add_u32 v{vout}, v{vout+1}, 5, v{vout}
v_lshrrev_b32 v{vout+1}, 5, v0
v_lshl_add_u32 v{vout}, v{vout+1}, 4, v{vout}
v_and_b32 v{vfl}, 3, v0
""")
    if o.own:
        c += L(f"v_min_u32 v{vfl}, 2, v{vfl}\nv_add3_u32 v{vfl}, v{vfl}, s{S_KQ}, 1\nv_and_b32 v{vfl}, 3, v{vfl}")
    return c + L(f"v_lshlrev_b32 v{vfl}, {o.fsh}, v{vfl}")


def unpack_add(dst, src, first, t):
    r = []
    for i in range(4):
        if first:
            r += L(f"v_lshlrev_b32 v{dst+2*i}, 16, v{src+i}\nv_and_b32 v{dst+2*i+1}, 0xffff0000, v{src+i}")
        else:
            tt = t + 2 * (i & 1)
            r += L(f"""
v_lshlrev_b32 v{tt}, 16, v{src+i}
v_and_b32 v{tt+1}, 0xffff0000, v{src+i}
v_pk_add_f32 v[{dst+2*i}:{dst+2*i+1}], v[{dst+2*i}:{dst+2*i+1}], v[{tt}:{tt+1}]
""")
    return r


GB = 96


def gather_main(o, label, vlin, vout, vfl):
    c = []
    n = 3 if o.own else 4
    if o.own:
        c += L(f"v_add_u32 v{GB+24}, s{S_GI+3}, v{vlin}\nds_read_b128 {vr(GB+12,4)}, v{GB+24} offset:{OWN_LDS}")
        c += unpack_add(GB + 16, GB + 12, True, GB + 24)
    c += L(f"""
s_mov_b32 s{S_CNT}, {SPIN_MAX}
{label}:
buffer_load_dwordx2 {vr(GB+28,2)}, v{vfl}, {sr(R_WS,4)}, s{S_FL} offen sc1
s_sub_u32 s{S_CNT}, s{S_CNT}, 1
s_waitcnt vmcnt(0)
v_cmp_ne_u64 vcc, {sr(S_NON,2)}, {vr(GB+28,2)}
{'s_branch' if o.dg_n & 16 else 's_cbranch_vccz'} {label}d
{f's_sleep {o.gsleep}' if o.gsleep else ''}
s_cmp_lg_u32 s{S_CNT}, 0
s_cbranch_scc1 {label}
{label}d:
""")
    for k in range(n):
        c += L(f"buffer_load_dwordx4 {vr(GB+4*k,4)}, v{vlin}, {sr(R_WS,4)}, s{S_GI+k} offen sc1")
    for k in range(n):
        c += L(f"s_waitcnt vmcnt({n-1-k})") + unpack_add(GB + 16, GB + 4 * k, k == 0 and not o.own, GB + 24)
    s = GB + 16
    return c + L(f"""
v_cvt_pk_bf16_f32 v{GB}, v{s}, v{s+1}
v_cvt_pk_bf16_f32 v{GB+1}, v{s+2}, v{s+3}
v_cvt_pk_bf16_f32 v{GB+2}, v{s+4}, v{s+5}
v_cvt_pk_bf16_f32 v{GB+3}, v{s+6}, v{s+7}
v_permlane16_swap_b32 v{GB}, v{GB+2}
v_permlane16_swap_b32 v{GB+1}, v{GB+3}
buffer_store_dwordx4 {vr(GB,4)}, v{vout}, {sr(R_OUT,4)}, s{S_GO} offen
""")


V_WQ = 8
V_XO = 16
V_KV = 19
V_WM = 25
V_WE = 29
V_LIN = 33
V_T = 34
V_FL = 60
V_SV = 66
V_W2 = 140
V_EA, V_MO, V_MF = 144, 156, 158


class Loader:
    SB_WQ, SB_X, SB_KV, SB_W, SB_P0, SB_P12 = 72, 73, 74, 75, 100, 101

    def __init__(self, o):
        self.o, self.c, self.issued, self.q = o, [], [], []
        self.pace = 0
        self.st = Stamper(o.stamps)

    def A(self, s):
        self.c += L(s)

    def wait_for(self, tags):
        last = max([i for i, t in enumerate(self.issued) if t in tags], default=-1)
        if last < 0:
            return
        self.A(f"s_waitcnt vmcnt({len(self.issued) - 1 - last})")
        self.issued = self.issued[last + 1:]

    def barrier(self, tags):
        self.wait_for(tags)
        self.A("s_barrier")

    def push(self, *jobs):
        for tag, setup, items in jobs:
            self.q.append([tag, setup, list(items)])

    def pump(self, need, extra):
        while self.q:
            tag, setup, items = self.q[0]
            if any(j[0] in need for j in self.q):
                n = len(items)
            else:
                last = max([i for i, t in enumerate(self.issued) if t in need], default=-1)
                n = min(len(items), extra - (len(self.issued) - 1 - last))
                if n <= 0:
                    break
            if setup:
                self.A(setup)
            prev = None
            for (rsrc, pol, base, lds, voff, soff, half) in items[:n]:
                self.A("s_addk_i32 m0, 0x400" if prev == (base, lds - 1024) else f"s_add_u32 m0, s{base}, {lds}")
                prev = (base, lds)
                if half:
                    self.A("s_mov_b32 exec_hi, 0")
                self.A(f"buffer_load_dwordx4 v{voff}, {sr(rsrc,4)}, {soff} offen {pol} lds")
                if half:
                    self.A("s_mov_b32 exec_hi, -1")
                self.issued.append(tag)
                if self.pace:
                    self.A(f"s_sleep {self.pace}")
            assert len(self.issued) <= 63
            del items[:n]
            if items:
                break
            self.q.pop(0)

    def job_s(self, n):
        o = self.o
        slot = A_SLOT[n % 3]
        if o.rot == 4 and n < 8:
            setup = f"s_xor_b32 s{S_T1}, s{S_KC}, {n}\ns_lshl_b32 s{S_T0}, s{S_T1}, 19\ns_lshl_b32 s{S_T1}, s{S_T1}, 7"
        elif o.rot in (1, 2, 3):
            setup = f"s_lshl_b32 s{S_T0}, s{S_KC}, 19\ns_lshl_b32 s{S_T1}, s{S_KC}, 7" if n == 0 else f"""
s_add_u32 s{S_T1}, s{S_KC}, {n}
s_cmp_ge_u32 s{S_T1}, 9
s_cselect_b32 s{S_T0}, 9, 0
s_sub_u32 s{S_T1}, s{S_T1}, s{S_T0}
s_lshl_b32 s{S_T0}, s{S_T1}, 19
s_lshl_b32 s{S_T1}, s{S_T1}, 7
"""
        else:
            setup = f"s_mov_b32 s{S_T0}, {n << 19}\ns_movk_i32 s{S_T1}, {n << 7}"
        it = [(R_X, o.pol, self.SB_X, slot + 32768 + u * 1024, V_XO + u, f"s{S_T1}", False) for u in range(3)]
        it += [(R_WQ, o.pol, self.SB_WQ, slot + u * 1024, V_WQ + u, f"s{S_T0}", False) for u in range(8)]
        return (f"S{n}", setup, it)

    def job_k(self):
        return ("K", "", [(R_K, self.o.pol, self.SB_KV, K_LDS + u * 1024, V_KV + u, "0", False) for u in range(6)])

    def jjt(self, pos, dst):
        return f"s_add_u32 s{dst}, s{S_JL}, {pos}\ns_and_b32 s{dst}, s{dst}, 3\n"

    def job_v(self, pos):
        return (f"V{pos}", self.jjt(pos, S_T0) + f"s_mul_i32 s{S_T0}, s{S_T0}, 12288",
                [(R_V, self.o.pol, self.SB_KV, V_LDS[pos % 2] + u * 1024, V_KV + u, f"s{S_T0}", False) for u in range(6)])

    def job_w(self, q, both=0):
        if q < 2:
            setup = f"s_mul_i32 s{S_T0}, s{S_JL}, {256*1152}\ns_add_u32 s{S_T0}, s{S_T0}, {q*128*1152 + 1024}"
            vb = V_WE
        else:
            pos, r = divmod(q - 2, 4)
            setup = self.jjt(pos, S_T0) + f"""
s_mul_i32 s{S_T0}, s{S_T0}, {256*1152}
s_add_u32 s{S_T0}, s{S_T0}, {(r&2)*64*1152}
s_add_u32 s{S_T0}, s{S_T0}, s{S_F0 + (r&1)}
"""
            vb = V_WM
        it = [(R_WO, self.o.pol, self.SB_W, W_LDS[q % 5] + u * 1024, vb + u, f"s{S_T0}", False) for u in range(4)]
        if both:
            it += [(R_WO, self.o.pol, self.SB_W, W_LDS[q % 5] + both * 8192 + u * 1024, V_W2 + u, f"s{S_T0}", False) for u in range(4)]
        return (f"W{q}", setup, it)

    def p_block(self, pos):
        return self.jjt(pos, S_T0) + f"""
s_lshl_b32 s{S_T3}, s{S_KQ}, 2
s_add_u32 s{S_T0}, s{S_T0}, s{S_T3}
s_add_u32 s{S_T0}, s{S_T0}, s{S_GRP}
s_mul_i32 s{S_T0}, s{S_T0}, 18432
"""

    def job_p(self, pos, f0, nf, tag, lds):
        sb = self.SB_P0 if nf == 1 else self.SB_P12
        setup = self.p_block(pos) + f"""
s_add_u32 s{S_T0}, s{S_T0}, s{sb}
s_add_u32 s{S_T0}, s{S_T0}, {f0*6144}
s_add_u32 s{S_T1}, s{S_T0}, 1024
s_add_u32 s{S_T2}, s{S_T0}, 2048
"""
        it = [(R_WS, "" if self.o.dg_plain & 4 else "sc1", sb, lds + u * 1024, V_LIN, f"s{S_T0+u}", nf == 1 and u == 1) for u in range(2 if nf == 1 else 3)]
        return (tag, setup, it)

    def code_touch(self):
        self.A(f"""
s_getpc_b64 s[{S_EX}:{S_EX+1}]
L_pcl:
s_sub_u32 s{S_EX}, s{S_EX}, L_pcl-{NAME}
s_subb_u32 s{S_EX+1}, s{S_EX+1}, 0
s_lshl_b32 s{S_T0}, s{S_W}, 13
v_lshlrev_b32 v{V_SV}, 7, v0
v_add_u32 v{V_SV}, s{S_T0}, v{V_SV}
v_min_u32 v{V_SV}, L_end-{NAME}, v{V_SV}
s_cmp_lt_u32 s2, 8
s_cselect_b64 exec, -1, 1
global_load_dword v{V_SV+1}, v{V_SV}, s[{S_EX}:{S_EX+1}]
s_mov_b64 exec, -1
""")
        self.issued.append("code")

    def nonce_issue(self):
        self.A(f"v_mov_b32 v{V_FL}, 0\nbuffer_load_dwordx2 v[{V_FL+2}:{V_FL+3}], v{V_FL}, {sr(R_DBG,4)}, 0 offen sc1")
        self.issued.append("non")

    def nonce_check(self):
        self.wait_for(["non"])
        self.A(f"""
s_mov_b32 s{S_CNT}, {SPIN_MAX}
L_nonce:
v_readfirstlane_b32 s{S_NON}, v{V_FL+2}
v_readfirstlane_b32 s{S_NON+1}, v{V_FL+3}
s_sub_u32 s{S_CNT}, s{S_CNT}, 1
s_cmp_eq_u32 s{S_CNT}, 0
s_cbranch_scc1 L_nonce_done
s_cmp_lg_u32 s{S_NON}, 0
s_cbranch_scc1 L_nonce_done
buffer_load_dwordx2 v[{V_FL+2}:{V_FL+3}], v{V_FL}, {sr(R_DBG,4)}, 0 offen sc1
s_waitcnt vmcnt(0)
s_branch L_nonce
L_nonce_done:
""")

    def flag(self):
        self.wait_for(["pub"])
        self.A(f"""
s_add_u32 s{S_T0}, s{S_GRP}, s{S_J}
s_lshl_b32 s{S_T0}, s{S_T0}, 7
s_lshl_b32 s{S_T1}, s{S_W}, 3
s_add_u32 s{S_T0}, s{S_T0}, s{S_T1}
s_add_u32 s{S_T0}, s{S_T0}, {WS_FLAG}
s_mov_b64 exec, 1
buffer_store_dwordx2 v[{V_FL+2}:{V_FL+3}], v{V_FL}, {sr(R_WS,4)}, s{S_T0} offen {'' if self.o.dg_plain & 2 else 'sc1'}
s_mov_b64 exec, -1
""")
        self.issued.append("flag")

    def publish_setup(self, split):
        self.A(self.p_block(0) + (f"s_and_b32 s{S_T1}, s{S_W}, 1\ns_mul_i32 s{S_T1}, s{S_T1}, 9216" if split else
                                  f"s_mul_i32 s{S_T1}, s{S_W}, 4608") + f"""
s_add_u32 s{S_T0}, s{S_T0}, s{S_T1}
s_add_u32 s{S_T1}, s{S_T1}, {P_LDS}
v_add_u32 v{V_T+4}, s{S_T1}, v{V_LIN}
s_add_u32 s{S_T1}, s{S_T0}, 4096
s_add_u32 s{S_T2}, s{S_T0}, 8192
""")

    def publish(self, split):
        n = 9 if split else 5
        for u in range(n):
            self.A(f"ds_read_b128 {vr(96+4*u,4)}, v{V_T+4} offset:{u*1024}")
        for u in range(n):
            half = not split and u == 4
            if half:
                self.A("s_waitcnt lgkmcnt(0)\ns_mov_b32 exec_hi, 0")
            self.A(f"buffer_store_dwordx4 {vr(96+4*u,4)}, v{V_LIN}, {sr(R_WS,4)}, s{S_T0+u//4} offen offset:{(u%4)*1024} {'' if self.o.dg_plain & 1 else 'sc1'}")
            if half:
                self.A("s_mov_b32 exec_hi, -1")
            self.issued.append("pub")

    def flags_setup(self, split):
        self.A(f"""
{f'v_bfe_u32 v{V_T}, v0, 1, 2' if split else f'v_bfe_u32 v{V_T}, v0, 2, 2'}
{f'v_and_or_b32 v{V_T+1}, v0, 1, 2' if split else f'v_and_b32 v{V_T+1}, 3, v0'}
v_lshlrev_b32 v{V_T}, 7, v{V_T}
v_lshl_add_u32 v{V_T}, v{V_T+1}, 3, v{V_T}
s_lshl_b32 s{S_T5}, s{S_KQ}, 2
s_add_u32 s{S_T5}, s{S_T5}, s{S_GRP}
s_lshl_b32 s{S_T5}, s{S_T5}, 7
s_add_u32 s{S_T5}, s{S_T5}, {WS_FLAG}
""")

    def flags_sample(self):
        self.A(f"buffer_load_dwordx2 v[{V_T+4}:{V_T+5}], v{V_T}, {sr(R_WS,4)}, s{S_T5} offen sc1")
        self.issued.append("smp")

    def flags_wait(self):
        self.wait_for(["smp"])
        self.A(f"""
s_mov_b32 s{S_CNT}, {SPIN_MAX}
L_poll:
v_cmp_ne_u64 vcc, {sr(S_NON,2)}, v[{V_T+4}:{V_T+5}]
s_cbranch_vccz L_polld
s_sub_u32 s{S_CNT}, s{S_CNT}, 1
s_cmp_eq_u32 s{S_CNT}, 0
s_cbranch_scc1 L_polld
buffer_load_dwordx2 v[{V_T+4}:{V_T+5}], v{V_T}, {sr(R_WS,4)}, s{S_T5} offen sc1
s_waitcnt vmcnt(0)
s_branch L_poll
L_polld:
""")

    def extra_setup(self):
        E = V_EA
        self.A(f"""
v_lshrrev_b32 v{E+8}, 2, v0
v_lshlrev_b32 v{E+8}, 7, v{E+8}
v_and_b32 v{E+9}, 3, v0
v_lshl_add_u32 v{E+8}, v{E+9}, 3, v{E+8}
s_lshl_b32 s{S_T4}, s{S_GRP}, 7
s_add_u32 s{S_T4}, s{S_T4}, {WS_FLAG + 64}
s_mul_i32 s{S_T0}, s{S_J}, 48
s_mul_i32 s{S_T1}, s{S_W}, 12
s_add_u32 s{S_T0}, s{S_T0}, s{S_T1}
v_and_b32 v{E+9}, 15, v0
v_min_u32 v{E}, 11, v{E+9}
v_add_u32 v{E}, s{S_T0}, v{E}
v_lshrrev_b32 v{E+2}, 6, v{E}
v_and_b32 v{E+3}, 63, v{E}
v_mul_u32_u24 v{E+4}, 0x56, v{E+2}
v_lshrrev_b32 v{E+4}, 8, v{E+4}
v_mul_u32_u24 v{E+5}, 3, v{E+4}
v_sub_u32 v{E+5}, v{E+2}, v{E+5}
v_lshrrev_b32 v{E+6}, 1, v{E+4}
v_mul_u32_u24 v{E+6}, 48, v{E+6}
v_lshl_add_u32 v{E+6}, v{E+5}, 4, v{E+6}
v_and_b32 v{E+7}, 15, v{E+3}
v_add_u32 v{E+6}, v{E+6}, v{E+7}
v_mul_u32_u24 v{E+1}, 2304, v{E+6}
v_and_b32 v{E+7}, 1, v{E+4}
v_lshl_add_u32 v{E+1}, v{E+7}, 6, v{E+1}
v_lshrrev_b32 v{E+7}, 4, v{E+3}
v_lshl_add_u32 v{E+1}, v{E+7}, 3, v{E+1}
v_lshrrev_b32 v{E+7}, 4, v0
v_and_b32 v{E+2}, 1, v{E+7}
v_lshl_add_u32 v{E+1}, v{E+2}, 2, v{E+1}
v_lshrrev_b32 v{E+2}, 1, v{E+7}
v_lshl_add_u32 v{E+1}, v{E+2}, 5, v{E+1}
v_cmp_gt_u32 vcc, 12, v{E+9}
v_mov_b32 v{E+2}, 0x40000000
v_cndmask_b32 v{E+1}, v{E+2}, v{E+1}, vcc
s_mul_i32 s{S_EO}, s{S_BP}, {96*2304}
s_add_u32 s{S_EO}, s{S_EO}, 1024
v_mul_u32_u24 v{E+7}, {4*12288}, v{E+7}
v_lshl_add_u32 v{E}, v{E}, 4, v{E+7}
s_mul_i32 s{S_EI}, s{S_GRP}, 12288
s_add_u32 s{S_EI}, s{S_EI}, {WS_PE}
s_mov_b32 s{S_CNT}, {SPIN_MAX}
L_polle:
buffer_load_dwordx2 v[{V_T+4}:{V_T+5}], v{E+8}, {sr(R_WS,4)}, s{S_T4} offen sc1
s_sub_u32 s{S_CNT}, s{S_CNT}, 1
s_waitcnt vmcnt(0)
v_cmp_ne_u64 vcc, {sr(S_NON,2)}, v[{V_T+4}:{V_T+5}]
s_cbranch_vccz L_polled
s_sleep 2
s_cmp_lg_u32 s{S_CNT}, 0
s_cbranch_scc1 L_polle
L_polled:
""")
        self.issued = []

    def extra_loads(self):
        for k in range(4):
            self.A(f"buffer_load_dwordx4 {vr(72+4*k,4)}, v{V_EA}, {sr(R_WS,4)}, s{S_EI} offen sc1")
            self.issued.append("ex")
            if k < 3:
                self.A(f"s_add_u32 s{S_EI}, s{S_EI}, 12288")

    def extra_sum(self):
        A = self.A
        self.wait_for(["ex"])
        for k in range(4):
            self.c += unpack_add(48, 72 + 4 * k, k == 0, 56)
        for i in range(4):
            A(f"v_permlane32_swap_b32 v{48+i}, v{52+i}")
        A("""
v_pk_add_f32 v[48:49], v[48:49], v[52:53]
v_pk_add_f32 v[50:51], v[50:51], v[54:55]
v_permlane16_swap_b32 v48, v50
v_permlane16_swap_b32 v49, v51
v_pk_add_f32 v[48:49], v[48:49], v[50:51]
v_cvt_pk_bf16_f32 v56, v48, v49
""")
        A(f"buffer_store_dword v56, v{V_EA+1}, {sr(R_OUT,4)}, s{S_EO} offen")

    def gen(self):
        o = self.o
        A = self.A
        split = not o.w5first
        self.c += self.st("start")
        if o.prio_loader:
            A(f"s_setprio {o.prio_loader}")
        A(f"""
s_sub_u32 s{S_W}, s{S_W}, 4
v_lshrrev_b32 v1, 5, v0
v_and_b32 v2, 31, v0
v_lshlrev_b32 v2, 4, v2
v_lshlrev_b32 v3, 5, v1
v_xor_b32 v2, v2, v3
v_lshl_add_u32 v2, v1, 13, v2
s_lshl_b32 s{S_T0}, s{S_W}, 17
v_add_u32 v{V_WQ}, s{S_T0}, v2
s_movk_i32 s{S_T1}, 0x4000
v_xad_u32 v{V_WQ+1}, v{V_WQ}, 64, s{S_T1}
v_lshrrev_b32 v4, 4, v0
v_and_b32 v5, 7, v0
s_mov_b32 s{S_T2}, 0x8000
v_add_u32 v{V_WQ+2}, s{S_T2}, v{V_WQ}
v_add_u32 v{V_WQ+3}, s{S_T2}, v{V_WQ+1}
v_xor_b32 v{V_WQ+4}, 0x10080, v{V_WQ}
v_xor_b32 v{V_WQ+5}, 0x10080, v{V_WQ+1}
v_add_u32 v{V_WQ+6}, s{S_T2}, v{V_WQ+4}
v_add_u32 v{V_WQ+7}, s{S_T2}, v{V_WQ+5}
v_xor_b32 v5, v5, v4
v_lshlrev_b32 v5, 4, v5
s_and_b32 s{S_T1}, s{S_W}, 1
s_lshl_b32 s{S_T2}, s{S_T1}, 6
v_xor_b32 v5, s{S_T2}, v5
v_lshrrev_b32 v6, 3, v0
v_mul_u32_u24 v6, 1152, v6
s_mul_i32 s{S_T3}, s{S_W}, 27648
v_add3_u32 v{V_XO}, v5, v6, s{S_T3}
v_add_u32 v{V_XO+2}, 18432, v{V_XO}
v_xor_b32 v5, 64, v5
s_add_u32 s{S_T3}, s{S_T3}, 9216
v_add3_u32 v{V_XO+1}, v5, v6, s{S_T3}
s_lshl_b32 s{self.SB_WQ}, s{S_W}, 13
s_mul_i32 s{self.SB_X}, s{S_W}, 3072
s_mul_i32 s{S_T4}, s{S_BP}, 110592
s_lshl_b32 s{S_T5}, s{S_J}, 9
""")
        if o.rot == 1:
            A(f"""
s_lshl_b32 s{S_T1}, s{S_JL}, 1
s_add_u32 s{S_KC}, s{S_BP}, s{S_T1}
s_cmp_ge_u32 s{S_KC}, 9
s_cselect_b32 s{S_T1}, 9, 0
s_sub_u32 s{S_KC}, s{S_KC}, s{S_T1}
""")
        elif o.rot == 3:
            A(f"""
s_add_u32 s{S_KC}, s{S_BP}, s{S_JL}
s_mul_i32 s{S_T1}, s{S_KC}, 0x56
s_lshr_b32 s{S_T1}, s{S_T1}, 8
s_mul_i32 s{S_T1}, s{S_T1}, 3
s_sub_u32 s{S_KC}, s{S_KC}, s{S_T1}
s_mul_i32 s{S_KC}, s{S_KC}, 3
""")
        elif o.rot:
            A(f"s_add_u32 s{S_KC}, s{S_BP}, s{S_JL}\ns_and_b32 s{S_KC}, s{S_KC}, 1")
        if o.rot == 2:
            A(f"s_mul_i32 s{S_KC}, s{S_KC}, {o.rotoff}")
        A("s_waitcnt lgkmcnt(0)")
        self.c += srd_off(R_WQ, S_WQ, S_T5, 4718592)
        self.c += srd_off(R_X, S_X, S_T4, 884736)
        self.c += self.st("karg")
        self.push(self.job_s(0), self.job_s(1), self.job_s(2))
        self.pump(["S0"], o.budget0)
        self.c += self.st("S0iss")
        A(f"""
v_and_b32 v5, 15, v0
v_xor_b32 v5, v5, v4
v_lshlrev_b32 v5, 4, v5
s_and_b32 s{S_T1}, s{S_W}, 1
s_lshl_b32 s{S_T2}, s{S_T1}, 7
v_xor_b32 v5, s{S_T2}, v5
s_mul_i32 s{S_T2}, s{S_T1}, 6144
s_lshr_b32 s{S_T3}, s{S_W}, 1
s_mul_i32 s{S_T3}, s{S_T3}, 196608
s_add_u32 s{S_T2}, s{S_T2}, s{S_T3}
v_lshl_add_u32 v6, v4, 8, s{S_T2}
""")
        for u in range(6):
            cu = (u & 3) << 6
            A(f"v_xor_b32 v7, {cu}, v5\nv_add_u32 v7, v7, v6" if cu else "v_add_u32 v7, v5, v6")
            A(f"v_add_u32 v{V_KV+u}, {u*1024}, v7")
        A(f"""
s_mul_i32 s{self.SB_KV}, s{S_W}, 6144
s_lshl_b32 s{S_T0}, s{S_BP}, 5
s_add_u32 s{S_T1}, s{S_T0}, s{S_J}
s_mul_i32 s{S_T1}, s{S_T1}, 12288
s_lshl_b32 s{S_T4}, s{S_KQ}, 2
s_add_u32 s{S_T4}, s{S_T4}, s{S_T0}
s_mul_i32 s{S_T4}, s{S_T4}, 12288
s_mul_i32 s{S_T5}, s{S_KQ}, {1024*1152}
""")
        self.c += srd_off(R_K, S_K, S_T1, 3145728)
        if o.kpos < 0 and not o.kspread:
            self.push(self.job_k())
            self.pump(["K"], 0)
        self.c += srd_off(R_V, S_V, S_T4, 3145728)
        self.c += srd_off(R_WO, S_WO, S_T5, 4718592)
        self.c += common_scalars(o)
        A(f"""
v_and_b32 v5, 15, v0
v_lshlrev_b32 v6, 1, v4
v_xor_b32 v5, v5, v6
v_lshlrev_b32 v5, 4, v5
v_mul_u32_u24 v6, 1152, v4
s_mul_i32 s{S_T0}, s{S_W}, {16*1152}
v_add_u32 v6, s{S_T0}, v6
v_add_u32 v{V_WM}, v5, v6
v_add_u32 v{V_WM+1}, {4*1152}, v{V_WM}
v_xor_b32 v5, 128, v5
v_add_u32 v{V_WM+2}, v5, v6
v_add_u32 v{V_WM+2}, {8*1152}, v{V_WM+2}
v_add_u32 v{V_WM+3}, {4*1152}, v{V_WM+2}
v_and_b32 v5, 7, v0
v_and_b32 v6, 1, v4
v_lshlrev_b32 v6, 1, v6
v_xor_b32 v5, v5, v6
v_lshlrev_b32 v5, 4, v5
v_lshrrev_b32 v6, 3, v0
v_mul_u32_u24 v6, 1152, v6
s_lshr_b32 s{S_T1}, s{S_BP}, 2
s_and_b32 s{S_T1}, s{S_T1}, {1 if o.flip else 0}
s_mul_i32 s{S_F0}, s{S_T1}, {64*1152}
s_sub_u32 s{S_F1}, {64*1152}, s{S_F0}
s_lshl_b32 s{S_T2}, s{S_CQ}, 8
s_add_u32 s{S_F0}, s{S_F0}, s{S_T2}
s_add_u32 s{S_F1}, s{S_F1}, s{S_T2}
s_lshl_b32 s{S_T1}, s{S_T1}, 1
s_xor_b32 s{S_T1}, s{S_T1}, s{S_W}
s_mul_i32 s{S_T0}, s{S_T1}, {32*1152}
v_add_u32 v6, s{S_T0}, v6
v_add_u32 v{V_WE}, v5, v6
v_add_u32 v{V_WE+2}, {16*1152}, v{V_WE}
v_xor_b32 v5, 64, v5
v_add_u32 v{V_WE+1}, v5, v6
v_add_u32 v{V_WE+1}, {8*1152}, v{V_WE+1}
v_add_u32 v{V_WE+3}, {16*1152}, v{V_WE+1}
v_lshlrev_b32 v{V_LIN}, 4, v0
s_lshl_b32 s{self.SB_W}, s{S_W}, 12
s_mul_i32 s{self.SB_P0}, s{S_W}, 1536
s_mul_i32 s{self.SB_P12}, s{S_W}, 3072
s_cmp_ge_u32 s{S_W}, 2
s_cselect_b32 s{S_T0}, -1, 1
s_mul_i32 s{S_T0}, s{S_T0}, {32*1152}
v_add_u32 v{V_W2}, s{S_T0}, v{V_WM}
v_add_u32 v{V_W2+1}, s{S_T0}, v{V_WM+1}
v_add_u32 v{V_W2+2}, s{S_T0}, v{V_WM+2}
v_add_u32 v{V_W2+3}, s{S_T0}, v{V_WM+3}
""")
        if o.vfirst:
            A(f"""
s_mul_i32 s{S_T0}, s{S_JL}, 12288
s_lshr_b32 s{S_T1}, s{S_W}, 1
s_mul_i32 s{S_T1}, s{S_T1}, 196608
s_add_u32 s{S_T0}, s{S_T0}, s{S_T1}
s_and_b32 s{S_T1}, s{S_W}, 1
s_mul_i32 s{S_T1}, s{S_T1}, 6144
s_add_u32 s{S_T0}, s{S_T0}, s{S_T1}
v_lshlrev_b32 v{V_SV}, 7, v0
s_mov_b32 exec_hi, 0xffff
buffer_load_dword v{V_SV+1}, v{V_SV}, {sr(R_V,4)}, s{S_T0} offen
s_mov_b32 exec_hi, -1
""")
            self.issued.append("vt")
        if o.vfirst >= 2:
            A(f"""
s_mul_i32 s{S_T0}, s{S_JL}, {256*1152}
s_mul_i32 s{S_T1}, s{S_W}, {16*1152}
s_add_u32 s{S_T0}, s{S_T0}, s{S_T1}
s_add_u32 s{S_T0}, s{S_T0}, s{S_F0}
v_bfe_u32 v{V_T+2}, v0, 1, 4
v_lshrrev_b32 v{V_T+3}, 5, v0
v_lshl_add_u32 v{V_T+2}, v{V_T+3}, 7, v{V_T+2}
v_mul_u32_u24 v{V_T+2}, 1152, v{V_T+2}
v_and_b32 v{V_T+3}, 1, v0
v_lshl_add_u32 v{V_T+2}, v{V_T+3}, 7, v{V_T+2}
buffer_load_dword v{V_SV+1}, v{V_T+2}, {sr(R_WO,4)}, s{S_T0} offen
""")
            self.issued.append("vt")
        self.flags_setup(split)
        if o.walk:
            self.c += walk_entry("Wl")
        A("Wl_begin:")
        self.barrier(["S0"])
        self.c += self.st("B0")
        if o.ldexit:
            A("s_endpgm")
        if o.kpos == 2:
            self.push(self.job_k())
        self.pump(["S1"], int(o.blist[0], 16) if o.blist else o.budget1)
        for n in range(0, 9):
            self.barrier([f"S{n+1}"] if n < 8 else ["K"])
            if n == 3:
                self.nonce_issue()
            if n + 3 <= 8:
                self.push(self.job_s(n + 3))
                if o.kpos == n + 3:
                    self.push(self.job_k())
            if o.kspread and n < 6:
                t, su, it = self.job_k()
                self.push((t, su, it[n:n + 1]))
            if n == 6:
                self.pace = o.pace2
                if o.stag:
                    A(f"s_mul_i32 s{S_CNT}, s{S_BP}, {o.stag}\nL_stag:\ns_cmp_eq_u32 s{S_CNT}, 0\ns_cbranch_scc1 L_stagd\ns_sleep 1\ns_sub_u32 s{S_CNT}, s{S_CNT}, 1\ns_branch L_stag\nL_stagd:")
                self.push(self.job_v(0), self.job_w(0))
            if n == 7:
                self.push(self.job_w(1), self.job_w(2))
            if n == 8:
                self.push(self.job_w(3), self.job_w(4))
            self.pump([f"S{n+2}"] if n < 7 else ["K"] if n == 7 else ["V0", "W0", "W1"], (int(o.blist[n + 1], 16) if o.blist else o.budget1) if n < 6 else o.budget)
            if o.vspread and n < 6:
                A(f"""
s_mul_i32 s{S_T0}, s{S_JL}, 12288
s_lshr_b32 s{S_T1}, s{S_W}, 1
s_mul_i32 s{S_T1}, s{S_T1}, 196608
s_add_u32 s{S_T0}, s{S_T0}, s{S_T1}
s_and_b32 s{S_T1}, s{S_W}, 1
s_mul_i32 s{S_T1}, s{S_T1}, 6144
s_add_u32 s{S_T0}, s{S_T0}, s{S_T1}
v_lshlrev_b32 v{V_SV}, 7, v0
s_mov_b64 exec, 0xff
buffer_load_dword v{V_SV+1}, v{V_SV}, {sr(R_V,4)}, s{S_T0} offen offset:{(n % 4) * 1024}
s_mov_b64 exec, -1
""".replace(f"s_add_u32 s{S_T0}, s{S_T0}, s{S_T1}\nv_lshl", f"s_add_u32 s{S_T0}, s{S_T0}, s{S_T1}\ns_add_u32 s{S_T0}, s{S_T0}, {(n // 4) * 4096}\nv_lshl"))
                self.issued.append("vt")
            if o.refresh and n == o.refresh:
                self.code_touch()
        self.pace = 0
        self.c += self.st("B9")
        self.nonce_check()
        self.barrier(["V0", "W0", "W1"])
        self.pump(["W4"], 0)
        if split:
            self.publish_setup(True)
        self.barrier([])
        self.c += self.st("B11")
        assert not self.q
        if split:
            base = list(self.issued)
            A(f"s_cmp_ge_u32 s{S_W}, 2\ns_cbranch_scc1 L_pubs")
            self.barrier(["W2", "W3"])
            self.push(self.job_w(5, both=1))
            self.pump(["W5"], 0)
            self.barrier(["W4", "W5"])
            A("s_branch L_pubd\nL_pubs:")
            self.issued = base
            self.publish(True)
            self.barrier(["W2", "W3"])
            self.push(self.job_w(6, both=-1))
            self.pump(["W6"], 0)
        else:
            self.push(self.job_w(5))
            self.pump(["W5"], 0)
            self.publish_setup(False)
            self.publish(False)
            self.barrier(["W2", "W3"])
            self.push(self.job_w(6))
            self.pump(["W6"], 0)
        if o.earlyflag:
            self.flag()
        self.barrier(["W4", "W5"])
        if not o.earlyflag:
            self.flag()
        A("L_pubd:")
        self.c += self.st("pub")

        def needs(d):
            need = [f"W{d+1}", f"W{d+2}"]
            if d % 4 == 1:
                return need + [f"V{(d-1)//4}", f"P{(d-5)//4}b"]
            return need + [f"P{(d-3)//4}a"]
        for d in range(3, 18, 2):
            if d > 3:
                self.barrier(needs(d))
            if d == 5:
                self.c += self.st("D5")
                self.flags_wait()
                self.c += self.st("polled")
            if d in (5, 9, 13):
                self.push(self.job_p((d - 1) // 4, 0, 1, f"P{(d-1)//4}a", P_LDS))
            if d in (7, 11, 15):
                self.push(self.job_p((d - 3) // 4, 1, 2, f"P{(d-3)//4}b", P_LDS + 6144))
            for q in (d + 4, d + 5):
                if q <= 17:
                    self.push(self.job_w(q))
                if d == 3 and q == 7:
                    self.push(self.job_v(1))
            if d in (5, 9):
                self.push(self.job_v((d - 5) // 4 + 2))
            self.pump(needs(d + 2), o.budget - (1 if d == 3 else 0))
            if d == 3:
                self.flags_sample()
            if d == o.wbat and o.dg_plain & 8:
                A(f"s_lshr_b32 s{S_T0}, s2, 3\ns_or_b32 s{S_T0}, s{S_T0}, s{S_W}\ns_cmp_lg_u32 s{S_T0}, 0\ns_cbranch_scc1 L_nowb\nbuffer_wbl2 sc1\nL_nowb:")
            if d == 11:
                A(f"s_add_u32 s{S_T4}, s{S_W}, 4")
                self.c += gather_scalars(o, S_T4) + gather_lanes(o, V_MO, V_MF)
            if d == o.expoll:
                self.extra_setup()
            if d == max(15, o.expoll):
                self.extra_loads()
        assert not self.q
        self.c += self.st("D17")
        self.extra_sum()
        self.c += self.st("edone")
        if o.own or o.fbar:
            A("s_barrier")
        A(f"s_cmp_ge_u32 s{S_W}, 2\ns_cbranch_scc1 L_fin_l")
        if o.lfirst:
            A(f"s_sleep {o.lfirst}")
        self.c += gather_main(o, "L_gl", V_LIN, V_MO, V_MF)
        A("L_fin_l:")
        if o.stamps:
            A("s_waitcnt vmcnt(0)")
            self.c += self.st("end")
            self.c += self.st.dump(1)
        A("s_endpgm")
        return self.c


X_FL, X_OUT, D_PA, X_LIN, X_L0 = 1, 2, 5, 6, 7
D_VA, D_VA2, D_WA, D_WA2 = 8, 12, 16, 20
C_WA, C_XA, C_PW, C_KA = 24, 32, 35, 37
D_EA = 56
C_AF = [64, 96]
C_BF = [128, 140]
C_ACC = 160
D_OUTM, D_OUTE, D_VW, D_F01, D_F2 = 24, 72, 96, 144, 160
D_V = [176, 188]
D_P = [200, 212]
D_W = [224, 240]


def acc(t, st):
    return C_ACC + (t * 3 + st) * 4


def mfma(d, a, b, c):
    cc = "0" if c is None else vr(c, 4)
    return I(f"v_mfma_f32_16x16x32_bf16 {vr(d,4)}, {vr(a,4)}, {vr(b,4)}, {cc}")


class Compute:
    SETS = [list(range(24, 34)), [45, 46, 47, 48, 49, 50, 51, 52, 53, 54], [55, 58, 59, 60, 61, 62, 63, 1, 2, 3]]
    VHOLD = [D_P[0], D_P[1], D_V[0], D_V[1]]

    def __init__(self, o):
        self.o, self.c = o, []
        self.st = Stamper(o.stamps)
        if o.stp1:
            self.st.only = "cycA"
        if o.stp2:
            self.st.only = "cycB"
        self.tok = 0

    def A(self, s):
        self.c += L(s)

    def anchor(self, ins, after):
        self.tok += 1
        t = f"tok{self.tok}"
        after.swr = after.swr | {t}
        ins.srd = ins.srd | {t}
        return ins

    def bar(self, after=None, drain=False):
        r = L("s_waitcnt lgkmcnt(0)\ns_barrier" if drain else "s_barrier")
        for a in (after or []):
            self.anchor(r[0], a)
        return r

    def p1_reads(self, kb, s, n):
        a = self.SETS[n % 3]
        r = [I(f"ds_read_b128 {vr(C_BF[s],4)}, v{a[8+kb]} offset:0")]
        for t in range(8):
            for i in range(2):
                r.append(I(f"ds_read_b64_tr_b16 {vr(C_AF[s]+4*t+2*i,2)}, v{a[t]} offset:{kb*16384+i*2048}"))
            if t == 0:
                r += [I(f"ds_read_b128 {vr(C_BF[s]+4*st,4)}, v{a[8+kb]} offset:{st*2048}") for st in (1, 2)]
        return r

    def p1_mfmas(self, s, first):
        return [mfma(acc(t, st), C_AF[s] + 4 * t, C_BF[s] + 4 * st, None if first else acc(t, st))
                for t in range(8) for st in range(3)]

    def kfrag(self, kt, p):
        i = p * 3 + kt
        if i < 8:
            return C_AF[0] + 4 * i
        if i < 11:
            return C_BF[0] + 4 * (i - 8)
        return 152

    def sacc(self, kt, st):
        i = st * 3 + kt
        return C_AF[1] + 4 * i if i < 8 else C_BF[1]

    def startup(self):
        o, A = self.o, self.A
        A("L_compute:")
        self.c += self.st("start")
        if o.prio_compute:
            A(f"s_setprio {o.prio_compute}")
        A(f"""
s_cmp_ge_u32 s2, 8
s_cbranch_scc1 L_no_pf
s_getpc_b64 s[{S_EX}:{S_EX+1}]
L_pc:
s_sub_u32 s{S_EX}, s{S_EX}, L_pc-{NAME}
s_subb_u32 s{S_EX+1}, s{S_EX+1}, 0
s_lshl_b32 s{S_T0}, s{S_W}, 13
v_lshlrev_b32 v152, 7, v0
v_add_u32 v152, s{S_T0}, v152
v_min_u32 v152, L_end-{NAME}, v152
global_load_dword v153, v152, s[{S_EX}:{S_EX+1}]
L_no_pf:
""")
        if o.walk:
            self.c += walk_entry("Wc")
        A(f"""
s_lshr_b32 s{S_T0}, s{S_W}, 1
s_and_b32 s{S_T1}, s{S_W}, 1
v_lshrrev_b32 v48, 4, v0
v_bfe_u32 v49, v0, 2, 2
v_and_b32 v50, 3, v0
v_and_b32 v51, 15, v0
v_and_b32 v52, 1, v48
v_lshl_or_b32 v52, v52, 2, v49
v_lshl_add_u32 v53, v48, 3, v49
v_lshlrev_b32 v54, 9, v53
v_lshl_add_u32 v54, v52, 5, v54
v_lshl_add_u32 v54, v50, 3, v54
s_lshl_b32 s{S_T2}, s{S_T1}, 8
v_add_u32 v{C_WA}, s{S_T2}, v54
""")
        for t in range(1, 8):
            A(f"v_xor_b32 v{C_WA+t}, {t<<5}, v{C_WA}")
        A(f"""
v_lshrrev_b32 v54, 1, v51
v_xor_b32 v54, v54, v48
v_lshlrev_b32 v54, 4, v54
v_lshl_add_u32 v54, v51, 7, v54
s_mul_i32 s{S_T2}, s{S_T0}, 6144
s_add_u32 s{S_T2}, s{S_T2}, 32768
v_add_u32 v{C_XA}, s{S_T2}, v54
v_xor_b32 v{C_XA+1}, 64, v{C_XA}
v_lshrrev_b32 v54, 1, v48
v_xor_b32 v54, v54, v51
v_lshlrev_b32 v54, 4, v54
v_lshl_add_u32 v54, v51, 8, v54
v_and_b32 v55, 1, v48
v_lshl_add_u32 v54, v55, 3, v54
s_mul_i32 s{S_T2}, s{S_T0}, 12288
s_add_u32 s{S_T3}, s{S_T2}, {K_LDS}
v_add_u32 v{C_KA}, s{S_T3}, v54
""")
        for pe in range(1, 8):
            A(f"v_xor_b32 v{C_KA+pe}, {pe<<5}, v{C_KA}")
        A(f"""
s_mul_i32 s{S_T3}, s{S_T0}, 3072
s_add_u32 s{S_T3}, s{S_T3}, {P_LDS}
v_lshl_add_u32 v{D_PA}, v0, 4, s{S_T3}
s_mul_i32 s{S_T3}, s{S_T1}, 6144
v_add_u32 v{C_PW}, s{S_T3}, v{D_PA}
s_lshl_b32 s{S_T3}, s{S_T1}, 3
v_add_u32 v{C_PW+1}, s{S_T3}, v{D_PA}
v_xor_b32 v54, v48, v51
v_lshlrev_b32 v54, 4, v54
v_lshl_add_u32 v54, v51, 8, v54
s_lshr_b32 s{S_T3}, s{S_BP}, 2
s_and_b32 s{S_T3}, s{S_T3}, {1 if o.flip else 0}
s_lshl_b32 s{S_T3}, s{S_T3}, 7
v_xor_b32 v54, s{S_T3}, v54
v_add_u32 v{D_VA}, s{S_T2}, v54
v_xor_b32 v{D_VA+1}, 64, v{D_VA}
v_xor_b32 v{D_VA+2}, 128, v{D_VA}
v_xor_b32 v{D_VA+3}, 192, v{D_VA}
v_lshlrev_b32 v54, 8, v53
v_lshl_add_u32 v54, v50, 3, v54
s_lshl_b32 s{S_T3}, s{S_T1}, 2
v_xor_b32 v55, s{S_T3}, v52
v_lshl_add_u32 v54, v55, 5, v54
v_add_u32 v{D_WA}, {W_LDS[0]}, v54
v_xor_b32 v{D_WA+1}, 32, v{D_WA}
v_xor_b32 v{D_WA+2}, 64, v{D_WA}
v_xor_b32 v{D_WA+3}, 96, v{D_WA}
v_lshlrev_b32 v54, 7, v53
v_lshl_add_u32 v54, v50, 3, v54
v_and_b32 v55, 1, v48
v_lshlrev_b32 v55, 1, v55
v_lshrrev_b32 v58, 1, v49
v_or_b32 v55, v55, v58
s_lshl_b32 s{S_T3}, s{S_T1}, 1
v_xor_b32 v55, s{S_T3}, v55
v_lshl_add_u32 v54, v55, 5, v54
v_add_u32 v{D_EA}, {W_LDS[0]}, v54
v_xor_b32 v{D_EA+1}, 32, v{D_EA}
""")
        for t in range(4):
            A(f"v_add_u32 v{D_WA2+t}, {W_LDS[3]-W_LDS[0]}, v{D_WA+t}\nv_add_u32 v{D_VA2+t}, {V_LDS[1]-V_LDS[0]}, v{D_VA+t}")
        A(f"""
v_lshlrev_b32 v{X_LIN}, 4, v0
s_mov_b32 s{S_C0}, 0x3e0293ee
s_mov_b32 s{S_C0+1}, 0x3e0293ee
v_cmp_eq_u32 vcc, 0, v0
v_mov_b32 v54, 0x40000000
v_cndmask_b32 v{X_L0}, v54, 0, vcc
""")
        for k in (1, 2):
            for i in range(10):
                A(f"v_add_u32 v{self.SETS[k][i]}, {A_SLOT[k]}, v{self.SETS[0][i]}")
        A("s_waitcnt lgkmcnt(0)")
        self.c += common_scalars(o) + gather_scalars(o, S_W)
        A(f"""
s_add_u32 s{S_T0}, s{S_GRP}, s{S_J}
s_lshl_b32 s{S_EF}, s{S_T0}, 7
s_lshl_b32 s{S_T1}, s{S_W}, 3
s_add_u32 s{S_EF}, s{S_EF}, s{S_T1}
s_add_u32 s{S_EF}, s{S_EF}, {WS_FLAG + 64}
s_lshl_b32 s{S_T0}, s{S_T0}, 2
s_add_u32 s{S_T0}, s{S_T0}, s{S_W}
s_mul_i32 s{S_ES}, s{S_T0}, 3072
s_add_u32 s{S_ES}, s{S_ES}, {WS_PE}
s_mul_i32 s{S_MS}, s{S_T0}, 6144
s_add_u32 s{S_MS}, s{S_MS}, {WS_PM}
{f's_cmp_eq_u32 s{S_W}, s{S_KQ}' if o.own else ''}
{f's_cselect_b32 s{S_MS}, 0x40000000, s{S_MS}' if o.own else ''}
s_add_u32 s{S_MS+1}, s{S_MS}, 3072
s_lshl_b32 s{S_MF}, s{S_W}, 2
s_add_u32 s{S_MF}, s{S_MF}, s{S_GRP}
s_add_u32 s{S_MF}, s{S_MF}, s{S_JL}
s_lshl_b32 s{S_MF}, s{S_MF}, 9
s_lshl_b32 s{S_T1}, s{S_KQ}, {o.fsh}
s_add_u32 s{S_MF}, s{S_MF}, s{S_T1}
s_add_u32 s{S_MF}, s{S_MF}, {WS_FLAG2}
s_or_b32 s{S_T0}, s2, s{S_W}
s_cmp_lg_u32 s{S_T0}, 0
s_cbranch_scc1 L_no_nonce
s_memrealtime {sr(S_NON,2)}
s_waitcnt lgkmcnt(0)
s_or_b32 s{S_NON}, s{S_NON}, 1
v_mov_b32 v154, s{S_NON}
v_mov_b32 v155, s{S_NON+1}
s_mov_b64 exec, 1
buffer_store_dwordx2 v[154:155], v{X_LIN}, {sr(R_DBG,4)}, 0 offen sc1
s_mov_b64 exec, -1
L_no_nonce:
Wc_begin:
s_barrier
""")
        self.c += self.st("B0")
        self.c += self.st("cyc0")

    def softmax(self, st):
        M, R = 46 + 2 * st, (52, 54, 58)[st]
        T = M + 1
        U0, U1 = (60, 62) if st != 1 else (152, 154)
        v = [self.sacc(kt, st) + r for kt in range(3) for r in range(4)]
        s = f"""
v_max3_f32 v{M}, v{v[0]}, v{v[1]}, v{v[2]}
v_max3_f32 v{T}, v{v[3]}, v{v[4]}, v{v[5]}
v_max3_f32 v{M}, v{M}, v{v[6]}, v{v[7]}
v_max3_f32 v{T}, v{T}, v{v[8]}, v{v[9]}
v_max3_f32 v{M}, v{M}, v{v[10]}, v{v[11]}
v_max_f32 v{M}, v{M}, v{T}
"""
        for sw in ("v_permlane32_swap_b32", "v_permlane16_swap_b32"):
            s += f"v_mov_b32 v{T}, v{M}\n{sw} v{T}, v{M}\nv_max_f32 v{M}, v{M}, v{T}\n"
        s += f"v_mul_f32 v{M}, s{S_C0}, v{M}\n"
        for i in range(0, 12, 2):
            s += f"v_pk_fma_f32 {vr(v[i],2)}, {vr(v[i],2)}, {sr(S_C0,2)}, {vr(M,2)} op_sel_hi:[1,1,0] neg_lo:[0,0,1] neg_hi:[0,0,1]\n"
        for x in v:
            s += f"v_exp_f32 v{x}, v{x}\n"
        s += f"v_pk_add_f32 {vr(U0,2)}, {vr(v[0],2)}, {vr(v[2],2)}\nv_pk_add_f32 {vr(U1,2)}, {vr(v[4],2)}, {vr(v[6],2)}\n"
        s += f"v_pk_add_f32 {vr(U0,2)}, {vr(U0,2)}, {vr(v[8],2)}\nv_pk_add_f32 {vr(U1,2)}, {vr(U1,2)}, {vr(v[10],2)}\n"
        s += f"v_pk_add_f32 {vr(U0,2)}, {vr(U0,2)}, {vr(U1,2)}\nv_add_f32 v{R}, v{U0}, v{U0+1}\n"
        for sw in ("v_permlane32_swap_b32", "v_permlane16_swap_b32"):
            s += f"v_mov_b32 v{R+1}, v{R}\n{sw} v{R+1}, v{R}\nv_add_f32 v{R}, v{R}, v{R+1}\n"
        s += f"v_rcp_f32 v{R}, v{R}\n"
        for i in range(0, 12, 2):
            s += f"v_pk_mul_f32 {vr(v[i],2)}, {vr(v[i],2)}, {vr(R,2)} op_sel_hi:[1,0]\n"
        a, c2 = v[0], v[8]
        for i in range(4):
            s += f"v_cvt_pk_bf16_f32 v{a+i}, v{v[2*i]}, v{v[2*i+1]}\n"
        for i in range(2):
            s += f"v_cvt_pk_bf16_f32 v{c2+i}, v{v[8+2*i]}, v{v[9+2*i]}\n"
        if self.o.dg_n & 2:
            s = "\n".join(l for l in s.split("\n") if "cvt" in l) + "\n"
        return L(s + f"ds_write_b128 v{C_PW}, {vr(a,4)} offset:{st*1024}\nds_write_b64 v{C_PW+1}, {vr(c2,2)} offset:{12288+st*1024}")

    def v_reads(self, ks, dst, buf=0):
        a = (D_VA if buf == 0 else D_VA2) + ks
        return [I(f"ds_read_b128 {vr(dst+4*kt,4)}, v{a} offset:{kt*4096}") for kt in range(3)]

    def step_reads(self, q, step):
        if q < 2:
            so = W_LDS[q] - W_LDS[0]
            return [I(f"ds_read_b64_tr_b16 {vr(D_W[step]+4*(2*kk+t)+2*i,2)}, v{D_EA+t} offset:{so+(2*step+kk)*4096+i*512}")
                    for kk in range(2) for t in range(2) for i in range(2)]
        pos, r4 = divmod(q - 2, 4)
        sl = q % 5
        base, so = (D_WA, W_LDS[sl] - W_LDS[0]) if sl < 3 else (D_WA2, W_LDS[sl] - W_LDS[3])
        w = [I(f"ds_read_b64_tr_b16 {vr(D_W[step]+4*t+2*i,2)}, v{base+t} offset:{so+step*8192+i*1024}")
             for t in range(4) for i in range(2)]
        if q < 4:
            return w
        v = self.v_reads(2 * (r4 & 1) + step, D_V[step], pos % 2)
        return [v[0], w[0], w[1], v[1], v[2]] + w[2:]

    def p_reads(self, f, s):
        return [I(f"ds_read_b128 {vr(D_P[s]+4*st,4)}, v{D_PA} offset:{f*6144+st*1024}") for st in range(3)]

    def vw(self, t, kt):
        return D_VW + (t * 3 + kt) * 4

    def cvt_tile(self, t, f01, f2, h):
        r = []
        for kt in range(3):
            s = self.vw(t, kt)
            d = f01 + 2 * kt if kt < 2 else f2 + 2 * h
            r += L(f"v_cvt_pk_bf16_f32 v{d}, v{s}, v{s+1}\nv_cvt_pk_bf16_f32 v{d+1}, v{s+2}, v{s+3}")
        return r

    def finals(self, outb, fb, ps, nt, first=False):
        return [mfma(outb + (t * 3 + st) * 4, fb + 4 * t, D_P[ps] + 4 * st, None if first else outb + (t * 3 + st) * 4)
                for t in range(nt) for st in range(3)]

    def blocks(self, base, soff):
        val, sto = [], []
        for st in range(3):
            a, b = base + 4 * st, base + 12 + 4 * st
            val += L(f"""
v_cvt_pk_bf16_f32 v{a}, v{a}, v{a+1}
v_cvt_pk_bf16_f32 v{a+1}, v{a+2}, v{a+3}
v_cvt_pk_bf16_f32 v{a+2}, v{b}, v{b+1}
v_cvt_pk_bf16_f32 v{a+3}, v{b+2}, v{b+3}
""")
            sto.append(I(f"buffer_store_dwordx4 {vr(a,4)}, v{X_LIN}, {sr(R_WS,4)}, s{soff} offen offset:{st*1024} sc1"))
        return val, sto

    def main_block(self):
        o = self.o
        b = []
        b += self.p1_reads(0, 0, 0)
        for n in range(9):
            mA = self.p1_mfmas(0, n == 0)
            mB = self.p1_mfmas(1, False)
            if o.dg_n & 1:
                mB = mB[:12]
            b += self.p1_reads(1, 1, n) + mA + self.bar([mA[o.ck1]], drain=True)
            if (o.dg_gap and n == o.dg_gapn) or o.dg_gapall:
                g = self.anchor(I(f"s_sleep {o.dg_gap or o.dg_gapall}"), mA[-1])
                g.note = "chain"
                b.append(g)
                self.anchor(mB[0], g)
            if o.stp1:
                b += [self.anchor(x, mA[-1]) for x in self.st(f"cycA{n}")]
            if n < 8:
                b += self.p1_reads(0, 0, n + 1)
            else:
                for p in range(4):
                    for kt in range(3):
                        for e in range(2):
                            b.append(I(f"ds_read_b64 {vr(self.kfrag(kt,p)+2*e,2)}, v{C_KA+2*p+e} offset:{kt*4096}"))
            b += mB
        b += [self.anchor(x, mB[-1]) for x in self.st("Qdone") + self.st("cyc1")]
        qk = []
        for st in range(3):
            for p in range(4):
                a, c = acc(2 * p, st), acc(2 * p + 1, st)
                b += L(f"""
v_cvt_pk_bf16_f32 v{a}, v{a}, v{a+1}
v_cvt_pk_bf16_f32 v{a+1}, v{a+2}, v{a+3}
v_cvt_pk_bf16_f32 v{a+2}, v{c}, v{c+1}
v_cvt_pk_bf16_f32 v{a+3}, v{c+2}, v{c+3}
""")
            m = [mfma(self.sacc(kt, st), self.kfrag(kt, p), acc(2 * p, st), None if p == 0 else self.sacc(kt, st))
                 for p in range(4) for kt in range(3)]
            qk += m
            b += m
        b += self.bar(qk)
        first = []
        for ks in range(4):
            first += self.v_reads(ks, self.VHOLD[ks])
        w0 = self.step_reads(0, 0)
        b += first[0:3] + w0[0:4] + first[3:6] + w0[4:8] + first[6:12]
        if o.w5first:
            b += self.step_reads(0, 1)
        for st in range(3):
            b += self.softmax(st)
        b += self.bar(drain=True)
        b += self.st("Pw") + self.st("cycP")
        b += gather_lanes(o, X_OUT, X_FL)
        NV = D_OUTE + 12
        EF = [D_OUTM, D_OUTM + 8, D_OUTM + 16]
        for q in range(18):
            pos, r4 = divmod(q - 2, 4) if q >= 2 else (0, -1)
            vwm = []
            for step in range(2):
                if q < 2:
                    vwm.append([mfma(self.vw(2 * q + t, kt), self.VHOLD[2 * step + kk] + 4 * kt, D_W[step] + 4 * (2 * kk + t),
                                     None if (step == 0 and kk == 0) else self.vw(2 * q + t, kt))
                                for kk in range(2) for t in range(2) for kt in range(3)])
                else:
                    ks = 2 * (r4 & 1) + step
                    vb = self.VHOLD[ks] if q in (2, 3) else D_V[step]
                    vwm.append([mfma(self.vw(t, kt), vb + 4 * kt, D_W[step] + 4 * t, None if ks == 0 else self.vw(t, kt))
                                for t in range(4) for kt in range(3)])
            fin, pr = [], []
            if q == 3:
                fin, pr = self.finals(D_OUTE, EF[0], 0, 2, first=True), self.p_reads(0, 0)
            elif q == 4:
                fin = self.finals(D_OUTE, EF[1], 1, 2) + self.finals(D_OUTE, EF[2], 0, 2)
                pr = self.p_reads(1, 1) + self.p_reads(2, 0)
            elif q >= 2 and r4 == 3:
                fin, pr = self.finals(D_OUTM, D_F01, 1, 4, first=(pos == 0)), self.p_reads(0, 1)
            elif q >= 6 and r4 == 0:
                fin, pr = self.finals(D_OUTM, D_F01, 0, 4), self.p_reads(1, 0)
            elif q >= 6 and r4 == 1:
                fin, pr = self.finals(D_OUTM, D_F2, 1, 4), self.p_reads(2, 1)
            if (o.dg_n & 4 and 5 <= q <= 9) or (o.dg_n & 8 and q >= 10):
                fin = fin[:1]
            mA = vwm[0] + fin
            lt = []
            if q == o.exq:
                val, sto = self.blocks(D_OUTE, S_ES)
                lt = val + [self.anchor(sto[0], mA[min(len(mA) - 1, o.exi)])] + sto[1:] + \
                    L(f"buffer_load_dwordx2 {vr(NV,2)}, v{X_L0}, {sr(R_DBG,4)}, 0 offen sc1")
            if q == o.exf:
                lt = L(f"s_waitcnt vmcnt(0)\nbuffer_store_dwordx2 {vr(NV,2)}, v{X_L0}, {sr(R_WS,4)}, s{S_EF} offen sc1")
                self.anchor(lt[0], mA[min(len(mA) - 1, o.dpos - 3)])
                lt[0].wr = {NV, NV + 1}
                lt += L(f"v_readfirstlane_b32 s{S_NON}, v{NV}\nv_readfirstlane_b32 s{S_NON+1}, v{NV+1}")
            r1 = [] if (q == 0 and o.w5first) else self.step_reads(q, 1)
            b += pr + (lt + r1 if (o.exi < 8 and q == o.exq) else r1 + lt) + mA
            if q % 2 == 1:
                b += self.bar([mA[min(o.dpos, len(mA) - 2)]], drain=True)
                if o.stp2:
                    b += [self.anchor(x, mA[-1]) for x in self.st(f"cycB{q}")]
            b += self.step_reads(q + 1, 0) if q < 17 else self.p_reads(1, 0) + self.p_reads(2, 1)
            b += vwm[1]
            if q < 2:
                for t in range(2):
                    b += self.cvt_tile(2 * q + t, EF[q] + 4 * t, EF[2] + 4 * t, q)
            elif r4 & 1:
                for t in range(4):
                    b += self.cvt_tile(t, D_F01 + 4 * t, D_F2 + 4 * t, r4 >> 1)
        f1 = self.finals(D_OUTM, D_F01, 0, 4)
        f2 = self.finals(D_OUTM, D_F2, 1, 4)
        for tp in range(2):
            b += f1[6 * tp:6 * tp + 6] + f2[6 * tp:6 * tp + 6]
        b += [self.anchor(x, f2[-1]) for x in self.st("P2done") + self.st("cyc2")]
        for tp in range(2):
            val, sto = self.blocks(D_OUTM + 24 * tp, S_MS + tp)
            b += val
            if o.own and not o.inblk:
                self.final_stores = getattr(self, "final_stores", []) + sto
            else:
                b += sto
        return b

    def gen(self):
        o = self.o
        self.startup()
        Sched.FILL, Sched.DS_LAT, Sched.DS_SCALE, Sched.WAR_DS, Sched.WAR_MEM, Sched.MFMA_LAT = \
            o.fill, o.dslat, o.dsscale, o.wards, o.warmem, o.mlat
        self.c += schedule(self.main_block())
        print("modelled cycles:", schedule.last_time)
        NV = D_OUTE + 12
        flag = L(f"s_waitcnt vmcnt(0)\nbuffer_store_dwordx2 {vr(NV,2)}, v{X_L0}, {sr(R_WS,4)}, s{S_MF} offen sc1")
        if o.own:
            self.A(f"s_cmp_eq_u32 s{S_W}, s{S_KQ}\ns_cbranch_scc1 L_own")
            self.c += getattr(self, "final_stores", []) + L("s_barrier") + flag + L("s_branch L_ownd\nL_own:")
            for i in range(6):
                self.A(f"ds_write_b128 v{X_LIN}, {vr(D_OUTM + 24 * (i // 3) + 4 * (i % 3), 4)} offset:{OWN_LDS + i * 1024}")
            self.A("s_waitcnt lgkmcnt(0)\ns_barrier")
            if o.lfirst:
                self.A(f"s_sleep {o.lfirst}")
            self.A("L_ownd:")
        else:
            if o.fbar:
                self.A("s_barrier")
            self.c += flag
        self.c += self.st("stored")
        self.c += gather_main(o, "L_gc", X_LIN, X_OUT, X_FL)
        if o.stamps:
            self.A("s_waitcnt vmcnt(0)")
            self.c += self.st("end")
            self.c += self.st.dump(0)
        self.A("s_endpgm\nWc_end:")
        return self.c


DESCR = """;
"""


def generate(o):
    o.pol = o.pol.replace('+', ' ')
    ld, cp = Loader(o), Compute(o)
    body = finalize(prologue(o)) + finalize(ld.gen()) + finalize(cp.gen(), age=o.age)
    if o.walk:
        body = add_stubs(body, [("Wl_begin", "L_compute", "Wl", 4, "Wl_ret"), ("Wc_begin", "Wc_end", "Wc", 4, "Wc_ret")],
                         prefix=f"{NAME}:\n", smart=0)
    hdr = open("concat_heads__gqa_block_cached__gqa_block_cached__near_ridge.s.ref").read().split("\n")
    head = [l for l in hdr if l.startswith(";") and "@launch" not in l]
    s = "\n".join(head) + f"\n; @launch grid=(256,1,1) block=(512,1,1) lds={LDS_BYTES}\n"
    s += DESCR
    s += f'.amdgcn_target "amdgcn-amd-amdhsa--gfx950"\n.text\n.globl {NAME}\n.p2align 8\n.type {NAME},@function\n{NAME}:\n'
    s += text(body) + "\nL_end:\n    s_endpgm\n"
    s += f""".section .rodata,"a"
.p2align 6
.amdhsa_kernel {NAME}
  .amdhsa_next_free_vgpr 256
  .amdhsa_next_free_sgpr 102
  .amdhsa_accum_offset 256
  .amdhsa_group_segment_fixed_size 0
  .amdhsa_kernarg_size 104
  .amdhsa_user_sgpr_count 2
  .amdhsa_user_sgpr_kernarg_segment_ptr 1
  .amdhsa_system_sgpr_workgroup_id_x 1
.end_amdhsa_kernel
"""
    return s, ld.st.names, cp.st.names


if __name__ == "__main__":
    o = Opt()
    out = sys.argv[1]
    for a in sys.argv[2:]:
        k, v = a.split("=")
        cur = getattr(o, k)
        setattr(o, k, (v == "1") if isinstance(cur, bool) else type(cur)(v))
    s, ln, cn = generate(o)
    open(out, "w").write(s)
    if o.stamps:
        open(out + ".names", "w").write(repr((cn, ln, 0, WS_STAMP)))
    print("generated", out, len(s.splitlines()), "lines")
```

```python
import sys
from asmlib import *

NAME = "concat_heads__gqa_block_cached__gqa_block_cached__near_ridge_kernel"


class Opt:
    stamps = False
    stp1 = False
    stp2 = False
    ldexit = False
    walk = False
    refresh = 5
    rot = 2
    rotoff = 5
    kpos = -1
    budget = 11
    budget1 = 5
    budget0 = 99
    flip = True
    cqrot = 1
    w5first = False
    earlyflag = True
    exq = 5
    exi = 10
    exf = 9
    expoll = 13
    inblk = True
    dg_plain = 0
    wbat = 13
    dg_gap = 0
    dg_gapn = 4
    dg_gapall = 0
    dg_n = 0
    kspread = False
    vspread = False
    pace2 = 0
    stag = 0
    blist = '5555bbb'
    pol = ''
    ldfirst = False
    fsh = 3
    vfirst = 0
    fpol = 'sc1'
    ppol = 'sc1'
    dpol = 'sc1'
    lpol = 'sc1'
    eov = 0
    nopk = 0
    qkfirst = False
    own = True
    fill = 5
    dslat = 120
    dsscale = 1.15
    wards = 8
    warmem = 160
    mlat = 56
    ck1 = 22
    dpos = 13
    age = 24
    gsleep = 0
    fbar = False
    lfirst = 0
    prio_loader = 0
    prio_compute = 0


SLOT = 45056
A_SLOT = [0, SLOT, 2 * SLOT]
K_LDS = 3 * SLOT
P_LDS = K_LDS
V_LDS = [0, 110592]
W_LDS = [24576, 45056, 61440, 77824, 94208]
LDS_BYTES = 163840

WS_P = 0
WS_PM = 256 * 18432
WS_PE = WS_PM + 256 * 24576
WS_FLAG = WS_PE + 256 * 12288
WS_FLAG2 = WS_FLAG + 256 * 128
WS_STAMP = WS_FLAG2 + 256 * 512
OWN_LDS = 0
WS_USED = WS_STAMP + 256 * 512

S_X, S_K, S_V, S_WQ, S_WO = 4, 6, 8, 10, 12
S_OUT, S_DBG, S_WS = 14, 16, 18
R_X, R_WQ, R_K, R_V, R_WO, R_WS, R_OUT, R_DBG = 20, 24, 28, 32, 36, 40, 44, 48
S_BR, S_KQ, S_BP, S_JL, S_J, S_CQ, S_W, S_KC = 52, 53, 54, 55, 56, 57, 58, 59
S_T0, S_T1, S_T2, S_T3, S_T4, S_T5 = 60, 61, 62, 63, 64, 65
S_NON = 66
S_GRP = 68
S_CNT = 69
S_EX = 70
S_EI, S_EO = 70, 71
S_C0 = 72
S_ES, S_EF, S_MS = 74, 75, 100
S_F0, S_F1 = 4, 5
S_GI = 6
S_GO, S_FL, S_MF = 10, 11, 12
S_ST = 76
NSTAMP = 12
SPIN_MAX = 500000


def L(s):
    return [I(x) for x in s.strip().split("\n") if x.strip()]


class Stamper:
    def __init__(self, on):
        self.on, self.n, self.names, self.only = on, 0, [], None

    def __call__(self, name):
        if not self.on or (self.only and not name.startswith(self.only) and name not in ("start", "cyc0")):
            return []
        assert self.n < NSTAMP
        r = S_ST + 2 * self.n
        self.n += 1
        self.names.append(name)
        return [I(f"{'s_memtime' if name.startswith('cyc') else 's_memrealtime'} {sr(r,2)}")]

    def dump(self, role):
        if not self.on:
            return []
        tag = "cl"[role]
        o = L(f"""
s_cmp_lg_u32 s{S_W}, 0
s_cbranch_scc1 L_nostamp_{tag}
s_waitcnt lgkmcnt(0)
s_lshl_b32 s{S_T0}, s2, 9
s_add_u32 s{S_T0}, s{S_T0}, {WS_STAMP + role*256}
v_mov_b32 v1, 0
s_mov_b64 exec, 1
""")
        for i in range(self.n):
            o += L(f"""
v_mov_b32 v2, s{S_ST+2*i}
v_mov_b32 v3, s{S_ST+2*i+1}
buffer_store_dwordx2 v[2:3], v1, {sr(R_WS,4)}, s{S_T0} offen offset:{8*i}
s_nop 1
""")
        o += L(f"s_mov_b64 exec, -1\nL_nostamp_{tag}:")
        return o


def srd(r, ptr, size):
    return L(f"""
s_mov_b32 s{r}, s{ptr}
s_and_b32 s{r+1}, s{ptr+1}, 0xffff
s_mov_b32 s{r+2}, {size}
s_mov_b32 s{r+3}, 0x20000
""")


def srd_off(r, ptr, soff, total):
    return L(f"""
s_add_u32 s{r}, s{ptr}, s{soff}
s_addc_u32 s{r+1}, s{ptr+1}, 0
s_and_b32 s{r+1}, s{r+1}, 0xffff
s_sub_u32 s{r+2}, {total}, s{soff}
s_mov_b32 s{r+3}, 0x20000
""")


def walk_entry(tag):
    c = L("s_mov_b64 exec, 0")
    for w in range(3):
        c += L(f"s_cmp_eq_u32 s{S_W}, {w}\ns_cbranch_scc1 {tag}_w{w}")
    c += L(f"s_branch {tag}_w3\n{tag}_ret:\ns_mov_b64 exec, -1")
    return c


def prologue(o):
    return L(f"""
s_and_b32 s{S_T0}, s2, 7
s_lshr_b32 s{S_BR}, s{S_T0}, 2
s_mul_i32 s{S_T1}, s{S_BR}, 40
s_load_dwordx8 s[4:11], s[0:1], s{S_T1}
s_load_dwordx2 s[12:13], s[0:1], s{S_T1} offset:32
s_load_dwordx2 s[14:15], s[0:1], 80
s_load_dwordx4 s[16:19], s[0:1], 88
s_cmp_ge_u32 s2, 256
s_cbranch_scc1 L_end
v_lshrrev_b32 v1, 6, v0
s_and_b32 s{S_KQ}, s{S_T0}, 3
s_lshr_b32 s{S_T2}, s2, 3
v_readfirstlane_b32 s{S_W}, v1
s_lshr_b32 s{S_BP}, s{S_T2}, 2
s_and_b32 s{S_JL}, s{S_T2}, 3
s_lshl_b32 s{S_J}, s{S_KQ}, 2
s_add_u32 s{S_J}, s{S_J}, s{S_JL}
v_and_b32 v0, 63, v0
{f's_xor_b32 s{S_W}, s{S_W}, 4' if o.ldfirst else ''}
s_cmp_lt_u32 s{S_W}, 4
s_cbranch_scc1 L_compute
""")


def common_scalars(o):
    return L(f"""
s_mul_i32 s{S_CQ}, s{S_BP}, {o.cqrot}
s_add_u32 s{S_CQ}, s{S_JL}, s{S_CQ}
s_and_b32 s{S_CQ}, s{S_CQ}, 3
s_lshl_b32 s{S_GRP}, s{S_BR}, 3
s_add_u32 s{S_GRP}, s{S_GRP}, s{S_BP}
s_lshl_b32 s{S_GRP}, s{S_GRP}, 4
s_mul_i32 s{S_T0}, s{S_BR}, 1152
""") + srd_off(R_OUT, S_OUT, S_T0, 1769472) + srd(R_WS, S_WS, WS_USED) + srd(R_DBG, S_DBG, 256)


def gather_scalars(o, m):
    c = L(f"""
s_add_u32 s{S_T0}, s{S_GRP}, s{S_JL}
s_lshl_b32 s{S_T0}, s{S_T0}, 2
s_add_u32 s{S_T0}, s{S_T0}, s{S_KQ}
s_mul_i32 s{S_T0}, s{S_T0}, 6
s_add_u32 s{S_T0}, s{S_T0}, s{m}
s_lshl_b32 s{S_T0}, s{S_T0}, 10
s_add_u32 s{S_T0}, s{S_T0}, {WS_PM}
""")
    for k in range(4):
        if o.own:
            if k < 3:
                c += L(f"""
s_add_u32 s{S_T1}, s{S_KQ}, {k+1}
s_and_b32 s{S_T1}, s{S_T1}, 3
s_mul_i32 s{S_T1}, s{S_T1}, {4*24576}
s_add_u32 s{S_GI+k}, s{S_T0}, s{S_T1}
""")
            else:
                c += L(f"s_lshl_b32 s{S_GI+3}, s{m}, 10")
        else:
            c += L(f"s_add_u32 s{S_GI+k}, s{S_T0}, {k*4*24576}")
    return c + L(f"""
s_cmp_ge_u32 s{m}, 3
s_cselect_b32 s{S_T1}, 1, 0
s_mul_i32 s{S_T2}, s{S_T1}, 3
s_sub_u32 s{S_T2}, s{m}, s{S_T2}
s_lshr_b32 s{S_T3}, s{S_KQ}, 1
s_lshl_b32 s{S_T0}, s{S_BP}, 1
s_add_u32 s{S_T3}, s{S_T3}, s{S_T0}
s_mul_i32 s{S_T3}, s{S_T3}, 48
s_lshl_b32 s{S_T2}, s{S_T2}, 4
s_add_u32 s{S_T3}, s{S_T3}, s{S_T2}
s_mul_i32 s{S_T3}, s{S_T3}, 2304
s_lshl_b32 s{S_T2}, s{S_CQ}, 8
s_add_u32 s{S_T3}, s{S_T3}, s{S_T2}
s_and_b32 s{S_T2}, s{S_KQ}, 1
s_lshl_b32 s{S_T2}, s{S_T2}, 7
s_add_u32 s{S_T3}, s{S_T3}, s{S_T2}
s_lshl_b32 s{S_T1}, s{S_T1}, 6
s_add_u32 s{S_GO}, s{S_T3}, s{S_T1}
s_add_u32 s{S_FL}, s{S_GRP}, s{S_J}
s_lshl_b32 s{S_FL}, s{S_FL}, 9
s_add_u32 s{S_FL}, s{S_FL}, {WS_FLAG2}
""")


def gather_lanes(o, vout, vfl):
    c = L(f"""
v_and_b32 v{vout}, 15, v0
v_mul_u32_u24 v{vout}, 2304, v{vout}
v_bfe_u32 v{vout+1}, v0, 4, 1
v_lshl_add_u32 v{vout}, v{vout+1}, 5, v{vout}
v_lshrrev_b32 v{vout+1}, 5, v0
v_lshl_add_u32 v{vout}, v{vout+1}, 4, v{vout}
v_and_b32 v{vfl}, 3, v0
""")
    if o.own:
        c += L(f"v_min_u32 v{vfl}, 2, v{vfl}\nv_add3_u32 v{vfl}, v{vfl}, s{S_KQ}, 1\nv_and_b32 v{vfl}, 3, v{vfl}")
    return c + L(f"v_lshlrev_b32 v{vfl}, {o.fsh}, v{vfl}")


def unpack_add(dst, src, first, t):
    r = []
    for i in range(4):
        if first:
            r += L(f"v_lshlrev_b32 v{dst+2*i}, 16, v{src+i}\nv_and_b32 v{dst+2*i+1}, 0xffff0000, v{src+i}")
        else:
            tt = t + 2 * (i & 1)
            r += L(f"""
v_lshlrev_b32 v{tt}, 16, v{src+i}
v_and_b32 v{tt+1}, 0xffff0000, v{src+i}
v_pk_add_f32 v[{dst+2*i}:{dst+2*i+1}], v[{dst+2*i}:{dst+2*i+1}], v[{tt}:{tt+1}]
""")
    return r


GB = 96


def gather_main(o, label, vlin, vout, vfl):
    c = []
    n = 3 if o.own else 4
    if o.own:
        c += L(f"v_add_u32 v{GB+24}, s{S_GI+3}, v{vlin}\nds_read_b128 {vr(GB+12,4)}, v{GB+24} offset:{OWN_LDS}")
        c += unpack_add(GB + 16, GB + 12, True, GB + 24)
    c += L(f"""
s_mov_b32 s{S_CNT}, {SPIN_MAX}
{label}:
buffer_load_dwordx2 {vr(GB+28,2)}, v{vfl}, {sr(R_WS,4)}, s{S_FL} offen {o.ppol}
s_sub_u32 s{S_CNT}, s{S_CNT}, 1
s_waitcnt vmcnt(0)
v_cmp_ne_u64 vcc, {sr(S_NON,2)}, {vr(GB+28,2)}
{'s_branch' if o.dg_n & 16 else 's_cbranch_vccz'} {label}d
{f's_sleep {o.gsleep}' if o.gsleep else ''}
s_cmp_lg_u32 s{S_CNT}, 0
s_cbranch_scc1 {label}
{label}d:
""")
    for k in range(n):
        c += L(f"buffer_load_dwordx4 {vr(GB+4*k,4)}, v{vlin}, {sr(R_WS,4)}, s{S_GI+k} offen {o.lpol}")
    for k in range(n):
        c += L(f"s_waitcnt vmcnt({n-1-k})") + unpack_add(GB + 16, GB + 4 * k, k == 0 and not o.own, GB + 24)
    s = GB + 16
    return c + L(f"""
v_cvt_pk_bf16_f32 v{GB}, v{s}, v{s+1}
v_cvt_pk_bf16_f32 v{GB+1}, v{s+2}, v{s+3}
v_cvt_pk_bf16_f32 v{GB+2}, v{s+4}, v{s+5}
v_cvt_pk_bf16_f32 v{GB+3}, v{s+6}, v{s+7}
v_permlane16_swap_b32 v{GB}, v{GB+2}
v_permlane16_swap_b32 v{GB+1}, v{GB+3}
buffer_store_dwordx4 {vr(GB,4)}, v{vout}, {sr(R_OUT,4)}, s{S_GO} offen
""")


V_WQ = 8
V_XO = 16
V_KV = 19
V_WM = 25
V_WE = 29
V_LIN = 33
V_T = 34
V_FL = 60
V_SV = 66
V_W2 = 140
V_EA, V_MO, V_MF = 144, 156, 158


class Loader:
    SB_WQ, SB_X, SB_KV, SB_W, SB_P0, SB_P12 = 72, 73, 74, 75, 100, 101

    def __init__(self, o):
        self.o, self.c, self.issued, self.q = o, [], [], []
        self.pace = 0
        self.st = Stamper(o.stamps)

    def A(self, s):
        self.c += L(s)

    def wait_for(self, tags):
        last = max([i for i, t in enumerate(self.issued) if t in tags], default=-1)
        if last < 0:
            return
        self.A(f"s_waitcnt vmcnt({len(self.issued) - 1 - last})")
        self.issued = self.issued[last + 1:]

    def barrier(self, tags):
        self.wait_for(tags)
        self.A("s_barrier")

    def push(self, *jobs):
        for tag, setup, items in jobs:
            self.q.append([tag, setup, list(items)])

    def pump(self, need, extra):
        while self.q:
            tag, setup, items = self.q[0]
            if any(j[0] in need for j in self.q):
                n = len(items)
            else:
                last = max([i for i, t in enumerate(self.issued) if t in need], default=-1)
                n = min(len(items), extra - (len(self.issued) - 1 - last))
                if n <= 0:
                    break
            if setup:
                self.A(setup)
            prev = None
            for (rsrc, pol, base, lds, voff, soff, half) in items[:n]:
                self.A("s_addk_i32 m0, 0x400" if prev == (base, lds - 1024) else f"s_add_u32 m0, s{base}, {lds}")
                prev = (base, lds)
                if half:
                    self.A("s_mov_b32 exec_hi, 0")
                self.A(f"buffer_load_dwordx4 v{voff}, {sr(rsrc,4)}, {soff} offen {pol} lds")
                if half:
                    self.A("s_mov_b32 exec_hi, -1")
                self.issued.append(tag)
                if self.pace:
                    self.A(f"s_sleep {self.pace}")
            assert len(self.issued) <= 63
            del items[:n]
            if items:
                break
            self.q.pop(0)

    def job_s(self, n):
        o = self.o
        slot = A_SLOT[n % 3]
        if o.rot == 4 and n < 8:
            setup = f"s_xor_b32 s{S_T1}, s{S_KC}, {n}\ns_lshl_b32 s{S_T0}, s{S_T1}, 19\ns_lshl_b32 s{S_T1}, s{S_T1}, 7"
        elif o.rot in (1, 2, 3):
            setup = f"s_lshl_b32 s{S_T0}, s{S_KC}, 19\ns_lshl_b32 s{S_T1}, s{S_KC}, 7" if n == 0 else f"""
s_add_u32 s{S_T1}, s{S_KC}, {n}
s_cmp_ge_u32 s{S_T1}, 9
s_cselect_b32 s{S_T0}, 9, 0
s_sub_u32 s{S_T1}, s{S_T1}, s{S_T0}
s_lshl_b32 s{S_T0}, s{S_T1}, 19
s_lshl_b32 s{S_T1}, s{S_T1}, 7
"""
        else:
            setup = f"s_mov_b32 s{S_T0}, {n << 19}\ns_movk_i32 s{S_T1}, {n << 7}"
        it = [(R_X, o.pol, self.SB_X, slot + 32768 + u * 1024, V_XO + u, f"s{S_T1}", False) for u in range(3)]
        it += [(R_WQ, o.pol, self.SB_WQ, slot + u * 1024, V_WQ + u, f"s{S_T0}", False) for u in range(8)]
        return (f"S{n}", setup, it)

    def job_k(self):
        return ("K", "", [(R_K, self.o.pol, self.SB_KV, K_LDS + u * 1024, V_KV + u, "0", False) for u in range(6)])

    def jjt(self, pos, dst):
        return f"s_add_u32 s{dst}, s{S_JL}, {pos}\ns_and_b32 s{dst}, s{dst}, 3\n"

    def job_v(self, pos):
        return (f"V{pos}", self.jjt(pos, S_T0) + f"s_mul_i32 s{S_T0}, s{S_T0}, 12288",
                [(R_V, self.o.pol, self.SB_KV, V_LDS[pos % 2] + u * 1024, V_KV + u, f"s{S_T0}", False) for u in range(6)])

    def job_w(self, q, both=0):
        if q < 2:
            setup = f"s_mul_i32 s{S_T0}, s{S_JL}, {256*1152}\ns_add_u32 s{S_T0}, s{S_T0}, {q*128*1152 + 1024}"
            vb = V_WE
        else:
            pos, r = divmod(q - 2, 4)
            setup = self.jjt(pos, S_T0) + f"""
s_mul_i32 s{S_T0}, s{S_T0}, {256*1152}
s_add_u32 s{S_T0}, s{S_T0}, {(r&2)*64*1152}
s_add_u32 s{S_T0}, s{S_T0}, s{S_F0 + (r&1)}
"""
            vb = V_WM
        it = [(R_WO, self.o.pol, self.SB_W, W_LDS[q % 5] + u * 1024, vb + u, f"s{S_T0}", False) for u in range(4)]
        if both:
            it += [(R_WO, self.o.pol, self.SB_W, W_LDS[q % 5] + both * 8192 + u * 1024, V_W2 + u, f"s{S_T0}", False) for u in range(4)]
        return (f"W{q}", setup, it)

    def p_block(self, pos):
        return self.jjt(pos, S_T0) + f"""
s_lshl_b32 s{S_T3}, s{S_KQ}, 2
s_add_u32 s{S_T0}, s{S_T0}, s{S_T3}
s_add_u32 s{S_T0}, s{S_T0}, s{S_GRP}
s_mul_i32 s{S_T0}, s{S_T0}, 18432
"""

    def job_p(self, pos, f0, nf, tag, lds):
        sb = self.SB_P0 if nf == 1 else self.SB_P12
        setup = self.p_block(pos) + f"""
s_add_u32 s{S_T0}, s{S_T0}, s{sb}
s_add_u32 s{S_T0}, s{S_T0}, {f0*6144}
s_add_u32 s{S_T1}, s{S_T0}, 1024
s_add_u32 s{S_T2}, s{S_T0}, 2048
"""
        it = [(R_WS, "" if self.o.dg_plain & 4 else "sc1", sb, lds + u * 1024, V_LIN, f"s{S_T0+u}", nf == 1 and u == 1) for u in range(2 if nf == 1 else 3)]
        return (tag, setup, it)

    def code_touch(self):
        self.A(f"""
s_getpc_b64 s[{S_EX}:{S_EX+1}]
L_pcl:
s_sub_u32 s{S_EX}, s{S_EX}, L_pcl-{NAME}
s_subb_u32 s{S_EX+1}, s{S_EX+1}, 0
s_lshl_b32 s{S_T0}, s{S_W}, 13
v_lshlrev_b32 v{V_SV}, 7, v0
v_add_u32 v{V_SV}, s{S_T0}, v{V_SV}
v_min_u32 v{V_SV}, L_end-{NAME}, v{V_SV}
s_cmp_lt_u32 s2, 8
s_cselect_b64 exec, -1, 1
global_load_dword v{V_SV+1}, v{V_SV}, s[{S_EX}:{S_EX+1}]
s_mov_b64 exec, -1
""")
        self.issued.append("code")

    def nonce_issue(self):
        self.A(f"v_mov_b32 v{V_FL}, 0\nbuffer_load_dwordx2 v[{V_FL+2}:{V_FL+3}], v{V_FL}, {sr(R_DBG,4)}, 0 offen sc1")
        self.issued.append("non")

    def nonce_check(self):
        self.wait_for(["non"])
        self.A(f"""
s_mov_b32 s{S_CNT}, {SPIN_MAX}
L_nonce:
v_readfirstlane_b32 s{S_NON}, v{V_FL+2}
v_readfirstlane_b32 s{S_NON+1}, v{V_FL+3}
s_sub_u32 s{S_CNT}, s{S_CNT}, 1
s_cmp_eq_u32 s{S_CNT}, 0
s_cbranch_scc1 L_nonce_done
s_cmp_lg_u32 s{S_NON}, 0
s_cbranch_scc1 L_nonce_done
buffer_load_dwordx2 v[{V_FL+2}:{V_FL+3}], v{V_FL}, {sr(R_DBG,4)}, 0 offen sc1
s_waitcnt vmcnt(0)
s_branch L_nonce
L_nonce_done:
""")

    def flag(self):
        self.wait_for(["pub"])
        self.A(f"""
s_add_u32 s{S_T0}, s{S_GRP}, s{S_J}
s_lshl_b32 s{S_T0}, s{S_T0}, 7
s_lshl_b32 s{S_T1}, s{S_W}, 3
s_add_u32 s{S_T0}, s{S_T0}, s{S_T1}
s_add_u32 s{S_T0}, s{S_T0}, {WS_FLAG}
s_mov_b64 exec, 1
buffer_store_dwordx2 v[{V_FL+2}:{V_FL+3}], v{V_FL}, {sr(R_WS,4)}, s{S_T0} offen {'' if self.o.dg_plain & 2 else 'sc1'}
s_mov_b64 exec, -1
""")
        self.issued.append("flag")

    def publish_setup(self, split):
        self.A(self.p_block(0) + (f"s_and_b32 s{S_T1}, s{S_W}, 1\ns_mul_i32 s{S_T1}, s{S_T1}, 9216" if split else
                                  f"s_mul_i32 s{S_T1}, s{S_W}, 4608") + f"""
s_add_u32 s{S_T0}, s{S_T0}, s{S_T1}
s_add_u32 s{S_T1}, s{S_T1}, {P_LDS}
v_add_u32 v{V_T+4}, s{S_T1}, v{V_LIN}
s_add_u32 s{S_T1}, s{S_T0}, 4096
s_add_u32 s{S_T2}, s{S_T0}, 8192
""")

    def publish(self, split):
        n = 9 if split else 5
        for u in range(n):
            self.A(f"ds_read_b128 {vr(96+4*u,4)}, v{V_T+4} offset:{u*1024}")
        for u in range(n):
            half = not split and u == 4
            if half:
                self.A("s_waitcnt lgkmcnt(0)\ns_mov_b32 exec_hi, 0")
            self.A(f"buffer_store_dwordx4 {vr(96+4*u,4)}, v{V_LIN}, {sr(R_WS,4)}, s{S_T0+u//4} offen offset:{(u%4)*1024} {'' if self.o.dg_plain & 1 else 'sc1'}")
            if half:
                self.A("s_mov_b32 exec_hi, -1")
            self.issued.append("pub")

    def flags_setup(self, split):
        self.A(f"""
{f'v_bfe_u32 v{V_T}, v0, 1, 2' if split else f'v_bfe_u32 v{V_T}, v0, 2, 2'}
{f'v_and_or_b32 v{V_T+1}, v0, 1, 2' if split else f'v_and_b32 v{V_T+1}, 3, v0'}
v_lshlrev_b32 v{V_T}, 7, v{V_T}
v_lshl_add_u32 v{V_T}, v{V_T+1}, 3, v{V_T}
s_lshl_b32 s{S_T5}, s{S_KQ}, 2
s_add_u32 s{S_T5}, s{S_T5}, s{S_GRP}
s_lshl_b32 s{S_T5}, s{S_T5}, 7
s_add_u32 s{S_T5}, s{S_T5}, {WS_FLAG}
""")

    def flags_sample(self):
        self.A(f"buffer_load_dwordx2 v[{V_T+4}:{V_T+5}], v{V_T}, {sr(R_WS,4)}, s{S_T5} offen sc1")
        self.issued.append("smp")

    def flags_wait(self):
        self.wait_for(["smp"])
        self.A(f"""
s_mov_b32 s{S_CNT}, {SPIN_MAX}
L_poll:
v_cmp_ne_u64 vcc, {sr(S_NON,2)}, v[{V_T+4}:{V_T+5}]
s_cbranch_vccz L_polld
s_sub_u32 s{S_CNT}, s{S_CNT}, 1
s_cmp_eq_u32 s{S_CNT}, 0
s_cbranch_scc1 L_polld
buffer_load_dwordx2 v[{V_T+4}:{V_T+5}], v{V_T}, {sr(R_WS,4)}, s{S_T5} offen sc1
s_waitcnt vmcnt(0)
s_branch L_poll
L_polld:
""")

    def extra_setup(self):
        E = V_EA
        self.A(f"""
v_lshrrev_b32 v{E+8}, 2, v0
v_lshlrev_b32 v{E+8}, 7, v{E+8}
v_and_b32 v{E+9}, 3, v0
v_lshl_add_u32 v{E+8}, v{E+9}, 3, v{E+8}
s_lshl_b32 s{S_T4}, s{S_GRP}, 7
s_add_u32 s{S_T4}, s{S_T4}, {WS_FLAG + 64}
s_mul_i32 s{S_T0}, s{S_J}, 48
s_mul_i32 s{S_T1}, s{S_W}, 12
s_add_u32 s{S_T0}, s{S_T0}, s{S_T1}
v_and_b32 v{E+9}, 15, v0
v_min_u32 v{E}, 11, v{E+9}
v_add_u32 v{E}, s{S_T0}, v{E}
v_lshrrev_b32 v{E+2}, 6, v{E}
v_and_b32 v{E+3}, 63, v{E}
v_mul_u32_u24 v{E+4}, 0x56, v{E+2}
v_lshrrev_b32 v{E+4}, 8, v{E+4}
v_mul_u32_u24 v{E+5}, 3, v{E+4}
v_sub_u32 v{E+5}, v{E+2}, v{E+5}
v_lshrrev_b32 v{E+6}, 1, v{E+4}
v_mul_u32_u24 v{E+6}, 48, v{E+6}
v_lshl_add_u32 v{E+6}, v{E+5}, 4, v{E+6}
v_and_b32 v{E+7}, 15, v{E+3}
v_add_u32 v{E+6}, v{E+6}, v{E+7}
v_mul_u32_u24 v{E+1}, 2304, v{E+6}
v_and_b32 v{E+7}, 1, v{E+4}
v_lshl_add_u32 v{E+1}, v{E+7}, 6, v{E+1}
v_lshrrev_b32 v{E+7}, 4, v{E+3}
v_lshl_add_u32 v{E+1}, v{E+7}, 3, v{E+1}
v_lshrrev_b32 v{E+7}, 4, v0
v_and_b32 v{E+2}, 1, v{E+7}
v_lshl_add_u32 v{E+1}, v{E+2}, 2, v{E+1}
v_lshrrev_b32 v{E+2}, 1, v{E+7}
v_lshl_add_u32 v{E+1}, v{E+2}, 5, v{E+1}
v_cmp_gt_u32 vcc, 12, v{E+9}
v_mov_b32 v{E+2}, 0x40000000
v_cndmask_b32 v{E+1}, v{E+2}, v{E+1}, vcc
s_mul_i32 s{S_EO}, s{S_BP}, {96*2304}
s_add_u32 s{S_EO}, s{S_EO}, 1024
v_mul_u32_u24 v{E+7}, {4*12288}, v{E+7}
v_lshl_add_u32 v{E}, v{E}, 4, v{E+7}
s_mul_i32 s{S_EI}, s{S_GRP}, 12288
s_add_u32 s{S_EI}, s{S_EI}, {WS_PE}
s_mov_b32 s{S_CNT}, {SPIN_MAX}
L_polle:
buffer_load_dwordx2 v[{V_T+4}:{V_T+5}], v{E+8}, {sr(R_WS,4)}, s{S_T4} offen sc1
s_sub_u32 s{S_CNT}, s{S_CNT}, 1
s_waitcnt vmcnt(0)
v_cmp_ne_u64 vcc, {sr(S_NON,2)}, v[{V_T+4}:{V_T+5}]
s_cbranch_vccz L_polled
s_sleep 2
s_cmp_lg_u32 s{S_CNT}, 0
s_cbranch_scc1 L_polle
L_polled:
""")
        self.issued = []

    def extra_loads(self):
        for k in range(4):
            self.A(f"buffer_load_dwordx4 {vr(72+4*k,4)}, v{V_EA}, {sr(R_WS,4)}, s{S_EI} offen sc1")
            self.issued.append("ex")
            if k < 3:
                self.A(f"s_add_u32 s{S_EI}, s{S_EI}, 12288")

    def extra_sum(self):
        A = self.A
        self.wait_for(["ex"])
        for k in range(4):
            self.c += unpack_add(48, 72 + 4 * k, k == 0, 56)
        for i in range(4):
            A(f"v_permlane32_swap_b32 v{48+i}, v{52+i}")
        A("""
v_pk_add_f32 v[48:49], v[48:49], v[52:53]
v_pk_add_f32 v[50:51], v[50:51], v[54:55]
v_permlane16_swap_b32 v48, v50
v_permlane16_swap_b32 v49, v51
v_pk_add_f32 v[48:49], v[48:49], v[50:51]
v_cvt_pk_bf16_f32 v56, v48, v49
""")
        A(f"buffer_store_dword v56, v{V_EA+1}, {sr(R_OUT,4)}, s{S_EO} offen")

    def gen(self):
        o = self.o
        A = self.A
        split = not o.w5first
        self.c += self.st("start")
        if o.prio_loader:
            A(f"s_setprio {o.prio_loader}")
        A(f"""
s_sub_u32 s{S_W}, s{S_W}, 4
v_lshrrev_b32 v1, 5, v0
v_and_b32 v2, 31, v0
v_lshlrev_b32 v2, 4, v2
v_lshlrev_b32 v3, 5, v1
v_xor_b32 v2, v2, v3
v_lshl_add_u32 v2, v1, 13, v2
s_lshl_b32 s{S_T0}, s{S_W}, 17
v_add_u32 v{V_WQ}, s{S_T0}, v2
s_movk_i32 s{S_T1}, 0x4000
v_xad_u32 v{V_WQ+1}, v{V_WQ}, 64, s{S_T1}
v_lshrrev_b32 v4, 4, v0
v_and_b32 v5, 7, v0
s_mov_b32 s{S_T2}, 0x8000
v_add_u32 v{V_WQ+2}, s{S_T2}, v{V_WQ}
v_add_u32 v{V_WQ+3}, s{S_T2}, v{V_WQ+1}
v_xor_b32 v{V_WQ+4}, 0x10080, v{V_WQ}
v_xor_b32 v{V_WQ+5}, 0x10080, v{V_WQ+1}
v_add_u32 v{V_WQ+6}, s{S_T2}, v{V_WQ+4}
v_add_u32 v{V_WQ+7}, s{S_T2}, v{V_WQ+5}
v_xor_b32 v5, v5, v4
v_lshlrev_b32 v5, 4, v5
s_and_b32 s{S_T1}, s{S_W}, 1
s_lshl_b32 s{S_T2}, s{S_T1}, 6
v_xor_b32 v5, s{S_T2}, v5
v_lshrrev_b32 v6, 3, v0
v_mul_u32_u24 v6, 1152, v6
s_mul_i32 s{S_T3}, s{S_W}, 27648
v_add3_u32 v{V_XO}, v5, v6, s{S_T3}
v_add_u32 v{V_XO+2}, 18432, v{V_XO}
v_xor_b32 v5, 64, v5
s_add_u32 s{S_T3}, s{S_T3}, 9216
v_add3_u32 v{V_XO+1}, v5, v6, s{S_T3}
s_lshl_b32 s{self.SB_WQ}, s{S_W}, 13
s_mul_i32 s{self.SB_X}, s{S_W}, 3072
s_mul_i32 s{S_T4}, s{S_BP}, 110592
s_lshl_b32 s{S_T5}, s{S_J}, 9
""")
        if o.rot == 1:
            A(f"""
s_lshl_b32 s{S_T1}, s{S_JL}, 1
s_add_u32 s{S_KC}, s{S_BP}, s{S_T1}
s_cmp_ge_u32 s{S_KC}, 9
s_cselect_b32 s{S_T1}, 9, 0
s_sub_u32 s{S_KC}, s{S_KC}, s{S_T1}
""")
        elif o.rot == 3:
            A(f"""
s_add_u32 s{S_KC}, s{S_BP}, s{S_JL}
s_mul_i32 s{S_T1}, s{S_KC}, 0x56
s_lshr_b32 s{S_T1}, s{S_T1}, 8
s_mul_i32 s{S_T1}, s{S_T1}, 3
s_sub_u32 s{S_KC}, s{S_KC}, s{S_T1}
s_mul_i32 s{S_KC}, s{S_KC}, 3
""")
        elif o.rot:
            A(f"s_add_u32 s{S_KC}, s{S_BP}, s{S_JL}\ns_and_b32 s{S_KC}, s{S_KC}, 1")
        if o.rot == 2:
            A(f"s_mul_i32 s{S_KC}, s{S_KC}, {o.rotoff}")
        A("s_waitcnt lgkmcnt(0)")
        self.c += srd_off(R_WQ, S_WQ, S_T5, 4718592)
        self.c += srd_off(R_X, S_X, S_T4, 884736)
        self.c += self.st("karg")
        self.push(self.job_s(0), self.job_s(1), self.job_s(2))
        self.pump(["S0"], o.budget0)
        self.c += self.st("S0iss")
        A(f"""
v_and_b32 v5, 15, v0
v_xor_b32 v5, v5, v4
v_lshlrev_b32 v5, 4, v5
s_and_b32 s{S_T1}, s{S_W}, 1
s_lshl_b32 s{S_T2}, s{S_T1}, 7
v_xor_b32 v5, s{S_T2}, v5
s_mul_i32 s{S_T2}, s{S_T1}, 6144
s_lshr_b32 s{S_T3}, s{S_W}, 1
s_mul_i32 s{S_T3}, s{S_T3}, 196608
s_add_u32 s{S_T2}, s{S_T2}, s{S_T3}
v_lshl_add_u32 v6, v4, 8, s{S_T2}
""")
        for u in range(6):
            cu = (u & 3) << 6
            A(f"v_xor_b32 v7, {cu}, v5\nv_add_u32 v7, v7, v6" if cu else "v_add_u32 v7, v5, v6")
            A(f"v_add_u32 v{V_KV+u}, {u*1024}, v7")
        A(f"""
s_mul_i32 s{self.SB_KV}, s{S_W}, 6144
s_lshl_b32 s{S_T0}, s{S_BP}, 5
s_add_u32 s{S_T1}, s{S_T0}, s{S_J}
s_mul_i32 s{S_T1}, s{S_T1}, 12288
s_lshl_b32 s{S_T4}, s{S_KQ}, 2
s_add_u32 s{S_T4}, s{S_T4}, s{S_T0}
s_mul_i32 s{S_T4}, s{S_T4}, 12288
s_mul_i32 s{S_T5}, s{S_KQ}, {1024*1152}
""")
        self.c += srd_off(R_K, S_K, S_T1, 3145728)
        if o.kpos < 0 and not o.kspread:
            self.push(self.job_k())
            self.pump(["K"], 0)
        self.c += srd_off(R_V, S_V, S_T4, 3145728)
        self.c += srd_off(R_WO, S_WO, S_T5, 4718592)
        self.c += common_scalars(o)
        A(f"""
v_and_b32 v5, 15, v0
v_lshlrev_b32 v6, 1, v4
v_xor_b32 v5, v5, v6
v_lshlrev_b32 v5, 4, v5
v_mul_u32_u24 v6, 1152, v4
s_mul_i32 s{S_T0}, s{S_W}, {16*1152}
v_add_u32 v6, s{S_T0}, v6
v_add_u32 v{V_WM}, v5, v6
v_add_u32 v{V_WM+1}, {4*1152}, v{V_WM}
v_xor_b32 v5, 128, v5
v_add_u32 v{V_WM+2}, v5, v6
v_add_u32 v{V_WM+2}, {8*1152}, v{V_WM+2}
v_add_u32 v{V_WM+3}, {4*1152}, v{V_WM+2}
v_and_b32 v5, 7, v0
v_and_b32 v6, 1, v4
v_lshlrev_b32 v6, 1, v6
v_xor_b32 v5, v5, v6
v_lshlrev_b32 v5, 4, v5
v_lshrrev_b32 v6, 3, v0
v_mul_u32_u24 v6, 1152, v6
s_lshr_b32 s{S_T1}, s{S_BP}, 2
s_and_b32 s{S_T1}, s{S_T1}, {1 if o.flip else 0}
s_mul_i32 s{S_F0}, s{S_T1}, {64*1152}
s_sub_u32 s{S_F1}, {64*1152}, s{S_F0}
s_lshl_b32 s{S_T2}, s{S_CQ}, 8
s_add_u32 s{S_F0}, s{S_F0}, s{S_T2}
s_add_u32 s{S_F1}, s{S_F1}, s{S_T2}
s_lshl_b32 s{S_T1}, s{S_T1}, 1
s_xor_b32 s{S_T1}, s{S_T1}, s{S_W}
s_mul_i32 s{S_T0}, s{S_T1}, {32*1152}
v_add_u32 v6, s{S_T0}, v6
v_add_u32 v{V_WE}, v5, v6
v_add_u32 v{V_WE+2}, {16*1152}, v{V_WE}
v_xor_b32 v5, 64, v5
v_add_u32 v{V_WE+1}, v5, v6
v_add_u32 v{V_WE+1}, {8*1152}, v{V_WE+1}
v_add_u32 v{V_WE+3}, {16*1152}, v{V_WE+1}
v_lshlrev_b32 v{V_LIN}, 4, v0
s_lshl_b32 s{self.SB_W}, s{S_W}, 12
s_mul_i32 s{self.SB_P0}, s{S_W}, 1536
s_mul_i32 s{self.SB_P12}, s{S_W}, 3072
s_cmp_ge_u32 s{S_W}, 2
s_cselect_b32 s{S_T0}, -1, 1
s_mul_i32 s{S_T0}, s{S_T0}, {32*1152}
v_add_u32 v{V_W2}, s{S_T0}, v{V_WM}
v_add_u32 v{V_W2+1}, s{S_T0}, v{V_WM+1}
v_add_u32 v{V_W2+2}, s{S_T0}, v{V_WM+2}
v_add_u32 v{V_W2+3}, s{S_T0}, v{V_WM+3}
""")
        if o.vfirst:
            A(f"""
s_mul_i32 s{S_T0}, s{S_JL}, 12288
s_lshr_b32 s{S_T1}, s{S_W}, 1
s_mul_i32 s{S_T1}, s{S_T1}, 196608
s_add_u32 s{S_T0}, s{S_T0}, s{S_T1}
s_and_b32 s{S_T1}, s{S_W}, 1
s_mul_i32 s{S_T1}, s{S_T1}, 6144
s_add_u32 s{S_T0}, s{S_T0}, s{S_T1}
v_lshlrev_b32 v{V_SV}, 7, v0
s_mov_b32 exec_hi, 0xffff
buffer_load_dword v{V_SV+1}, v{V_SV}, {sr(R_V,4)}, s{S_T0} offen
s_mov_b32 exec_hi, -1
""")
            self.issued.append("vt")
        if o.vfirst >= 2:
            A(f"""
s_mul_i32 s{S_T0}, s{S_JL}, {256*1152}
s_mul_i32 s{S_T1}, s{S_W}, {16*1152}
s_add_u32 s{S_T0}, s{S_T0}, s{S_T1}
s_add_u32 s{S_T0}, s{S_T0}, s{S_F0}
v_bfe_u32 v{V_T+2}, v0, 1, 4
v_lshrrev_b32 v{V_T+3}, 5, v0
v_lshl_add_u32 v{V_T+2}, v{V_T+3}, 7, v{V_T+2}
v_mul_u32_u24 v{V_T+2}, 1152, v{V_T+2}
v_and_b32 v{V_T+3}, 1, v0
v_lshl_add_u32 v{V_T+2}, v{V_T+3}, 7, v{V_T+2}
buffer_load_dword v{V_SV+1}, v{V_T+2}, {sr(R_WO,4)}, s{S_T0} offen
""")
            self.issued.append("vt")
        self.flags_setup(split)
        if o.walk:
            self.c += walk_entry("Wl")
        A("Wl_begin:")
        self.barrier(["S0"])
        self.c += self.st("B0")
        if o.ldexit:
            A("s_endpgm")
        if o.kpos == 2:
            self.push(self.job_k())
        self.pump(["S1"], int(o.blist[0], 16) if o.blist else o.budget1)
        for n in range(0, 9):
            self.barrier([f"S{n+1}"] if n < 8 else ["K"])
            if n == 3:
                self.nonce_issue()
            if n + 3 <= 8:
                self.push(self.job_s(n + 3))
                if o.kpos == n + 3:
                    self.push(self.job_k())
            if o.kspread and n < 6:
                t, su, it = self.job_k()
                self.push((t, su, it[n:n + 1]))
            if n == 6:
                self.pace = o.pace2
                if o.stag:
                    A(f"s_mul_i32 s{S_CNT}, s{S_BP}, {o.stag}\nL_stag:\ns_cmp_eq_u32 s{S_CNT}, 0\ns_cbranch_scc1 L_stagd\ns_sleep 1\ns_sub_u32 s{S_CNT}, s{S_CNT}, 1\ns_branch L_stag\nL_stagd:")
                self.push(self.job_v(0), self.job_w(0))
            if n == 7:
                self.push(self.job_w(1), self.job_w(2))
            if n == 8:
                self.push(self.job_w(3), self.job_w(4))
            self.pump([f"S{n+2}"] if n < 7 else ["K"] if n == 7 else ["V0", "W0", "W1"], (int(o.blist[n + 1], 16) if o.blist else o.budget1) if n < 6 else o.budget)
            if o.vspread and n < 6:
                A(f"""
s_mul_i32 s{S_T0}, s{S_JL}, 12288
s_lshr_b32 s{S_T1}, s{S_W}, 1
s_mul_i32 s{S_T1}, s{S_T1}, 196608
s_add_u32 s{S_T0}, s{S_T0}, s{S_T1}
s_and_b32 s{S_T1}, s{S_W}, 1
s_mul_i32 s{S_T1}, s{S_T1}, 6144
s_add_u32 s{S_T0}, s{S_T0}, s{S_T1}
v_lshlrev_b32 v{V_SV}, 7, v0
s_mov_b64 exec, 0xff
buffer_load_dword v{V_SV+1}, v{V_SV}, {sr(R_V,4)}, s{S_T0} offen offset:{(n % 4) * 1024}
s_mov_b64 exec, -1
""".replace(f"s_add_u32 s{S_T0}, s{S_T0}, s{S_T1}\nv_lshl", f"s_add_u32 s{S_T0}, s{S_T0}, s{S_T1}\ns_add_u32 s{S_T0}, s{S_T0}, {(n // 4) * 4096}\nv_lshl"))
                self.issued.append("vt")
            if o.refresh and n == o.refresh:
                self.code_touch()
        self.pace = 0
        self.c += self.st("B9")
        self.nonce_check()
        self.barrier(["V0", "W0", "W1"])
        self.pump(["W4"], 0)
        if split:
            self.publish_setup(True)
        self.barrier([])
        self.c += self.st("B11")
        assert not self.q
        if split:
            base = list(self.issued)
            A(f"s_cmp_ge_u32 s{S_W}, 2\ns_cbranch_scc1 L_pubs")
            self.barrier(["W2", "W3"])
            self.push(self.job_w(5, both=1))
            self.pump(["W5"], 0)
            self.barrier(["W4", "W5"])
            A("s_branch L_pubd\nL_pubs:")
            self.issued = base
            self.publish(True)
            self.barrier(["W2", "W3"])
            self.push(self.job_w(6, both=-1))
            self.pump(["W6"], 0)
        else:
            self.push(self.job_w(5))
            self.pump(["W5"], 0)
            self.publish_setup(False)
            self.publish(False)
            self.barrier(["W2", "W3"])
            self.push(self.job_w(6))
            self.pump(["W6"], 0)
        if o.earlyflag:
            self.flag()
        self.barrier(["W4", "W5"])
        if not o.earlyflag:
            self.flag()
        A("L_pubd:")
        self.c += self.st("pub")

        def needs(d):
            need = [f"W{d+1}", f"W{d+2}"]
            if d % 4 == 1:
                return need + [f"V{(d-1)//4}", f"P{(d-5)//4}b"]
            return need + [f"P{(d-3)//4}a"]
        for d in range(3, 18, 2):
            if d > 3:
                self.barrier(needs(d))
            if d == 5:
                self.c += self.st("D5")
                self.flags_wait()
                self.c += self.st("polled")
            if d in (5, 9, 13):
                self.push(self.job_p((d - 1) // 4, 0, 1, f"P{(d-1)//4}a", P_LDS))
            if d in (7, 11, 15):
                self.push(self.job_p((d - 3) // 4, 1, 2, f"P{(d-3)//4}b", P_LDS + 6144))
            for q in (d + 4, d + 5):
                if q <= 17:
                    self.push(self.job_w(q))
                if d == 3 and q == 7:
                    self.push(self.job_v(1))
            if d in (5, 9):
                self.push(self.job_v((d - 5) // 4 + 2))
            self.pump(needs(d + 2), o.budget - (1 if d == 3 else 0))
            if d == 3:
                self.flags_sample()
            if d == o.wbat and o.dg_plain & 8:
                A(f"s_lshr_b32 s{S_T0}, s2, 3\ns_or_b32 s{S_T0}, s{S_T0}, s{S_W}\ns_cmp_lg_u32 s{S_T0}, 0\ns_cbranch_scc1 L_nowb\nbuffer_wbl2 sc1\nL_nowb:")
            if d == 11:
                A(f"s_add_u32 s{S_T4}, s{S_W}, 4")
                self.c += gather_scalars(o, S_T4) + gather_lanes(o, V_MO, V_MF)
            if d == o.expoll:
                self.extra_setup()
            if d == max(15, o.expoll):
                self.extra_loads()
        assert not self.q
        self.c += self.st("D17")
        self.extra_sum()
        self.c += self.st("edone")
        if o.own or o.fbar:
            A("s_barrier")
        A(f"s_cmp_ge_u32 s{S_W}, 2\ns_cbranch_scc1 L_fin_l")
        if o.lfirst:
            A(f"s_sleep {o.lfirst}")
        self.c += gather_main(o, "L_gl", V_LIN, V_MO, V_MF)
        A("L_fin_l:")
        if o.stamps:
            A("s_waitcnt vmcnt(0)")
            self.c += self.st("end")
            self.c += self.st.dump(1)
        A("s_endpgm")
        return self.c


X_FL, X_OUT, D_PA, X_LIN, X_L0 = 1, 2, 5, 6, 7
D_VA, D_VA2, D_WA, D_WA2 = 8, 12, 16, 20
C_WA, C_XA, C_KA = 24, 32, 37
C_PW, C_PW2 = 4, 155
D_EA = 56
C_AF = [64, 96]
C_BF = [128, 140]
C_ACC = 160
D_OUTM, D_OUTE, D_VW, D_F01, D_F2 = 24, 72, 96, 144, 160
D_V = [176, 188]
D_P = [200, 212]
D_W = [224, 240]


def acc(t, st):
    return C_ACC + (t * 3 + st) * 4


def mfma(d, a, b, c):
    cc = "0" if c is None else vr(c, 4)
    return I(f"v_mfma_f32_16x16x32_bf16 {vr(d,4)}, {vr(a,4)}, {vr(b,4)}, {cc}")


class Compute:
    SETS = [list(range(24, 34)), [45, 46, 47, 48, 49, 50, 51, 52, 53, 54], [55, 58, 59, 60, 61, 62, 63, 1, 2, 3]]
    VHOLD = [D_P[0], D_P[1], D_V[0], D_V[1]]

    def __init__(self, o):
        self.o, self.c = o, []
        self.st = Stamper(o.stamps)
        if o.stp1:
            self.st.only = "cycA"
        if o.stp2:
            self.st.only = "cycB"
        self.tok = 0

    def A(self, s):
        self.c += L(s)

    def anchor(self, ins, after):
        self.tok += 1
        t = f"tok{self.tok}"
        after.swr = after.swr | {t}
        ins.srd = ins.srd | {t}
        return ins

    def bar(self, after=None, drain=False):
        r = L("s_waitcnt lgkmcnt(0)\ns_barrier" if drain else "s_barrier")
        for a in (after or []):
            self.anchor(r[0], a)
        return r

    def p1_reads(self, kb, s, n):
        a = self.SETS[n % 3]
        r = [I(f"ds_read_b128 {vr(C_BF[s],4)}, v{a[8+kb]} offset:0")]
        for t in range(8):
            for i in range(2):
                r.append(I(f"ds_read_b64_tr_b16 {vr(C_AF[s]+4*t+2*i,2)}, v{a[t]} offset:{kb*16384+i*2048}"))
            if t == 0:
                r += [I(f"ds_read_b128 {vr(C_BF[s]+4*st,4)}, v{a[8+kb]} offset:{st*2048}") for st in (1, 2)]
        return r

    def p1_mfmas(self, s, first):
        return [mfma(acc(t, st), C_AF[s] + 4 * t, C_BF[s] + 4 * st, None if first else acc(t, st))
                for t in range(8) for st in range(3)]

    def kfrag(self, kt, p):
        i = p * 3 + kt
        if i < 8:
            return C_AF[0] + 4 * i
        if i < 11:
            return C_BF[0] + 4 * (i - 8)
        return 156

    def sacc(self, kt, st):
        i = st * 3 + kt
        return C_AF[1] + 4 * i if i < 8 else C_BF[1]

    def startup(self):
        o, A = self.o, self.A
        A("L_compute:")
        self.c += self.st("start")
        if o.prio_compute:
            A(f"s_setprio {o.prio_compute}")
        A(f"""
s_cmp_ge_u32 s2, 8
s_cbranch_scc1 L_no_pf
s_getpc_b64 s[{S_EX}:{S_EX+1}]
L_pc:
s_sub_u32 s{S_EX}, s{S_EX}, L_pc-{NAME}
s_subb_u32 s{S_EX+1}, s{S_EX+1}, 0
s_lshl_b32 s{S_T0}, s{S_W}, 13
v_lshlrev_b32 v152, 7, v0
v_add_u32 v152, s{S_T0}, v152
v_min_u32 v152, L_end-{NAME}, v152
global_load_dword v153, v152, s[{S_EX}:{S_EX+1}]
L_no_pf:
""")
        if o.walk:
            self.c += walk_entry("Wc")
        A(f"""
s_lshr_b32 s{S_T0}, s{S_W}, 1
s_and_b32 s{S_T1}, s{S_W}, 1
v_lshrrev_b32 v48, 4, v0
v_bfe_u32 v49, v0, 2, 2
v_and_b32 v50, 3, v0
v_and_b32 v51, 15, v0
v_and_b32 v52, 1, v48
v_lshl_or_b32 v52, v52, 2, v49
v_lshl_add_u32 v53, v48, 3, v49
v_lshlrev_b32 v54, 9, v53
v_lshl_add_u32 v54, v52, 5, v54
v_lshl_add_u32 v54, v50, 3, v54
s_lshl_b32 s{S_T2}, s{S_T1}, 8
v_add_u32 v{C_WA}, s{S_T2}, v54
""")
        for t in range(1, 8):
            A(f"v_xor_b32 v{C_WA+t}, {t<<5}, v{C_WA}")
        A(f"""
v_lshrrev_b32 v54, 1, v51
v_xor_b32 v54, v54, v48
v_lshlrev_b32 v54, 4, v54
v_lshl_add_u32 v54, v51, 7, v54
s_mul_i32 s{S_T2}, s{S_T0}, 6144
s_add_u32 s{S_T2}, s{S_T2}, 32768
v_add_u32 v{C_XA}, s{S_T2}, v54
v_xor_b32 v{C_XA+1}, 64, v{C_XA}
v_lshrrev_b32 v54, 1, v48
v_xor_b32 v54, v54, v51
v_lshlrev_b32 v54, 4, v54
v_lshl_add_u32 v54, v51, 8, v54
v_and_b32 v55, 1, v48
v_lshl_add_u32 v54, v55, 3, v54
s_mul_i32 s{S_T2}, s{S_T0}, 12288
s_add_u32 s{S_T3}, s{S_T2}, {K_LDS}
v_add_u32 v{C_KA}, s{S_T3}, v54
""")
        for pe in range(1, 8):
            A(f"v_xor_b32 v{C_KA+pe}, {pe<<5}, v{C_KA}")
        A(f"""
s_mul_i32 s{S_T3}, s{S_T0}, 3072
s_add_u32 s{S_T3}, s{S_T3}, {P_LDS}
v_lshl_add_u32 v{D_PA}, v0, 4, s{S_T3}
s_mul_i32 s{S_T3}, s{S_T1}, 6144
v_add_u32 v{C_PW}, s{S_T3}, v{D_PA}
s_lshl_b32 s{S_T3}, s{S_T1}, 3
v_add_u32 v{C_PW2}, s{S_T3}, v{D_PA}
v_xor_b32 v54, v48, v51
v_lshlrev_b32 v54, 4, v54
v_lshl_add_u32 v54, v51, 8, v54
s_lshr_b32 s{S_T3}, s{S_BP}, 2
s_and_b32 s{S_T3}, s{S_T3}, {1 if o.flip else 0}
s_lshl_b32 s{S_T3}, s{S_T3}, 7
v_xor_b32 v54, s{S_T3}, v54
v_add_u32 v{D_VA}, s{S_T2}, v54
v_xor_b32 v{D_VA+1}, 64, v{D_VA}
v_xor_b32 v{D_VA+2}, 128, v{D_VA}
v_xor_b32 v{D_VA+3}, 192, v{D_VA}
v_lshlrev_b32 v54, 8, v53
v_lshl_add_u32 v54, v50, 3, v54
s_lshl_b32 s{S_T3}, s{S_T1}, 2
v_xor_b32 v55, s{S_T3}, v52
v_lshl_add_u32 v54, v55, 5, v54
v_add_u32 v{D_WA}, {W_LDS[0]}, v54
v_xor_b32 v{D_WA+1}, 32, v{D_WA}
v_xor_b32 v{D_WA+2}, 64, v{D_WA}
v_xor_b32 v{D_WA+3}, 96, v{D_WA}
v_lshlrev_b32 v54, 7, v53
v_lshl_add_u32 v54, v50, 3, v54
v_and_b32 v55, 1, v48
v_lshlrev_b32 v55, 1, v55
v_lshrrev_b32 v58, 1, v49
v_or_b32 v55, v55, v58
s_lshl_b32 s{S_T3}, s{S_T1}, 1
v_xor_b32 v55, s{S_T3}, v55
v_lshl_add_u32 v54, v55, 5, v54
v_add_u32 v{D_EA}, {W_LDS[0]}, v54
v_xor_b32 v{D_EA+1}, 32, v{D_EA}
""")
        for t in range(4):
            A(f"v_add_u32 v{D_WA2+t}, {W_LDS[3]-W_LDS[0]}, v{D_WA+t}\nv_add_u32 v{D_VA2+t}, {V_LDS[1]-V_LDS[0]}, v{D_VA+t}")
        A(f"""
v_lshlrev_b32 v{X_LIN}, 4, v0
s_mov_b32 s{S_C0}, 0x3e0293ee
s_mov_b32 s{S_C0+1}, 0x3e0293ee
v_cmp_eq_u32 vcc, 0, v0
v_mov_b32 v54, 0x40000000
v_cndmask_b32 v{X_L0}, v54, 0, vcc
""")
        for k in (1, 2):
            for i in range(10):
                A(f"v_add_u32 v{self.SETS[k][i]}, {A_SLOT[k]}, v{self.SETS[0][i]}")
        A("s_waitcnt lgkmcnt(0)")
        self.c += common_scalars(o) + gather_scalars(o, S_W)
        A(f"""
s_add_u32 s{S_T0}, s{S_GRP}, s{S_J}
s_lshl_b32 s{S_EF}, s{S_T0}, 7
s_lshl_b32 s{S_T1}, s{S_W}, 3
s_add_u32 s{S_EF}, s{S_EF}, s{S_T1}
s_add_u32 s{S_EF}, s{S_EF}, {WS_FLAG + 64}
s_lshl_b32 s{S_T0}, s{S_T0}, 2
s_add_u32 s{S_T0}, s{S_T0}, s{S_W}
s_mul_i32 s{S_ES}, s{S_T0}, 3072
s_add_u32 s{S_ES}, s{S_ES}, {WS_PE}
s_mul_i32 s{S_MS}, s{S_T0}, 6144
s_add_u32 s{S_MS}, s{S_MS}, {WS_PM}
{f's_cmp_eq_u32 s{S_W}, s{S_KQ}' if o.own else ''}
{f's_cselect_b32 s{S_MS}, 0x40000000, s{S_MS}' if o.own else ''}
s_add_u32 s{S_MS+1}, s{S_MS}, 3072
s_lshl_b32 s{S_MF}, s{S_W}, 2
s_add_u32 s{S_MF}, s{S_MF}, s{S_GRP}
s_add_u32 s{S_MF}, s{S_MF}, s{S_JL}
s_lshl_b32 s{S_MF}, s{S_MF}, 9
s_lshl_b32 s{S_T1}, s{S_KQ}, {o.fsh}
s_add_u32 s{S_MF}, s{S_MF}, s{S_T1}
s_add_u32 s{S_MF}, s{S_MF}, {WS_FLAG2}
s_or_b32 s{S_T0}, s2, s{S_W}
s_cmp_lg_u32 s{S_T0}, 0
s_cbranch_scc1 L_no_nonce
s_memrealtime {sr(S_NON,2)}
s_waitcnt lgkmcnt(0)
s_or_b32 s{S_NON}, s{S_NON}, 1
v_mov_b32 v158, s{S_NON}
v_mov_b32 v159, s{S_NON+1}
s_mov_b64 exec, 1
buffer_store_dwordx2 v[158:159], v{X_LIN}, {sr(R_DBG,4)}, 0 offen sc1
s_mov_b64 exec, -1
L_no_nonce:
Wc_begin:
s_barrier
""")
        self.c += self.st("B0")
        self.c += self.st("cyc0")

    def softmax(self, st):
        M, R = 48 + 2 * st, (54, 58, 60)[st]
        T = M + 1
        U0, U1 = ((62, 144), (146, 148), (150, 152))[st]
        v = [self.sacc(kt, st) + r for kt in range(3) for r in range(4)]
        s = f"""
v_max3_f32 v{M}, v{v[0]}, v{v[1]}, v{v[2]}
v_max3_f32 v{T}, v{v[3]}, v{v[4]}, v{v[5]}
v_max3_f32 v{M}, v{M}, v{v[6]}, v{v[7]}
v_max3_f32 v{T}, v{T}, v{v[8]}, v{v[9]}
v_max3_f32 v{M}, v{M}, v{v[10]}, v{v[11]}
v_max_f32 v{M}, v{M}, v{T}
"""
        for sw in ("v_permlane32_swap_b32", "v_permlane16_swap_b32"):
            s += f"v_mov_b32 v{T}, v{M}\n{sw} v{T}, v{M}\nv_max_f32 v{M}, v{M}, v{T}\n"
        s += f"v_mul_f32 v{M}, s{S_C0}, v{M}\n"
        for i in range(0, 12, 2):
            s += f"v_pk_fma_f32 {vr(v[i],2)}, {vr(v[i],2)}, {sr(S_C0,2)}, {vr(M,2)} op_sel_hi:[1,1,0] neg_lo:[0,0,1] neg_hi:[0,0,1]\n"
        for x in v:
            s += f"v_exp_f32 v{x}, v{x}\n"
        s += f"v_pk_add_f32 {vr(U0,2)}, {vr(v[0],2)}, {vr(v[2],2)}\nv_pk_add_f32 {vr(U1,2)}, {vr(v[4],2)}, {vr(v[6],2)}\n"
        s += f"v_pk_add_f32 {vr(U0,2)}, {vr(U0,2)}, {vr(v[8],2)}\nv_pk_add_f32 {vr(U1,2)}, {vr(U1,2)}, {vr(v[10],2)}\n"
        s += f"v_pk_add_f32 {vr(U0,2)}, {vr(U0,2)}, {vr(U1,2)}\nv_add_f32 v{R}, v{U0}, v{U0+1}\n"
        for sw in ("v_permlane32_swap_b32", "v_permlane16_swap_b32"):
            s += f"v_mov_b32 v{R+1}, v{R}\n{sw} v{R+1}, v{R}\nv_add_f32 v{R}, v{R}, v{R+1}\n"
        s += f"v_rcp_f32 v{R}, v{R}\n"
        for i in range(0, 12, 2):
            s += f"v_pk_mul_f32 {vr(v[i],2)}, {vr(v[i],2)}, {vr(R,2)} op_sel_hi:[1,0]\n"
        if self.o.nopk >> st & 1:
            out = []
            for l in s.split("\n"):
                if l.startswith("v_pk_"):
                    ins = I(l)
                    ops = split_ops(l.split(" ", 1)[1])
                    d = min(vregs(ops[0]))
                    if "fma" in l:
                        out += [f"v_fma_f32 v{d+i}, v{d+i}, s{S_C0}, -v{M}" for i in range(2)]
                    elif "mul" in l:
                        out += [f"v_mul_f32 v{d+i}, v{d+i}, v{R}" for i in range(2)]
                    else:
                        x, y = min(vregs(ops[1])), min(vregs(ops[2]))
                        out += [f"v_add_f32 v{d+i}, v{x+i}, v{y+i}" for i in range(2)]
                else:
                    out.append(l)
            s = "\n".join(out)
        a, c2 = v[0], v[8]
        for i in range(4):
            s += f"v_cvt_pk_bf16_f32 v{a+i}, v{v[2*i]}, v{v[2*i+1]}\n"
        for i in range(2):
            s += f"v_cvt_pk_bf16_f32 v{c2+i}, v{v[8+2*i]}, v{v[9+2*i]}\n"
        if self.o.dg_n & 2:
            s = "\n".join(l for l in s.split("\n") if "cvt" in l) + "\n"
        return L(s + f"ds_write_b128 v{C_PW}, {vr(a,4)} offset:{st*1024}\nds_write_b64 v{C_PW2}, {vr(c2,2)} offset:{12288+st*1024}")

    def v_reads(self, ks, dst, buf=0):
        a = (D_VA if buf == 0 else D_VA2) + ks
        return [I(f"ds_read_b128 {vr(dst+4*kt,4)}, v{a} offset:{kt*4096}") for kt in range(3)]

    def step_reads(self, q, step):
        if q < 2:
            so = W_LDS[q] - W_LDS[0]
            return [I(f"ds_read_b64_tr_b16 {vr(D_W[step]+4*(2*kk+t)+2*i,2)}, v{D_EA+t} offset:{so+(2*step+kk)*4096+i*512}")
                    for kk in range(2) for t in range(2) for i in range(2)]
        pos, r4 = divmod(q - 2, 4)
        sl = q % 5
        base, so = (D_WA, W_LDS[sl] - W_LDS[0]) if sl < 3 else (D_WA2, W_LDS[sl] - W_LDS[3])
        w = [I(f"ds_read_b64_tr_b16 {vr(D_W[step]+4*t+2*i,2)}, v{base+t} offset:{so+step*8192+i*1024}")
             for t in range(4) for i in range(2)]
        if q < 4:
            return w
        v = self.v_reads(2 * (r4 & 1) + step, D_V[step], pos % 2)
        return [v[0], w[0], w[1], v[1], v[2]] + w[2:]

    def p_reads(self, f, s):
        return [I(f"ds_read_b128 {vr(D_P[s]+4*st,4)}, v{D_PA} offset:{f*6144+st*1024}") for st in range(3)]

    EACC = [64, 68, 72, 76, 80, 84, 88, 92, 128, 132, 136, 156]

    def vw(self, t, kt, q=9):
        if q < self.o.eov:
            return self.EACC[t * 3 + kt]
        return D_VW + (t * 3 + kt) * 4

    def cvt_tile(self, t, f01, f2, h, q=9):
        r = []
        for kt in range(3):
            s = self.vw(t, kt, q)
            d = f01 + 2 * kt if kt < 2 else f2 + 2 * h
            r += L(f"v_cvt_pk_bf16_f32 v{d}, v{s}, v{s+1}\nv_cvt_pk_bf16_f32 v{d+1}, v{s+2}, v{s+3}")
        return r

    def finals(self, outb, fb, ps, nt, first=False):
        return [mfma(outb + (t * 3 + st) * 4, fb + 4 * t, D_P[ps] + 4 * st, None if first else outb + (t * 3 + st) * 4)
                for t in range(nt) for st in range(3)]

    def blocks(self, base, soff, pol="sc1"):
        val, sto = [], []
        for st in range(3):
            a, b = base + 4 * st, base + 12 + 4 * st
            val += L(f"""
v_cvt_pk_bf16_f32 v{a}, v{a}, v{a+1}
v_cvt_pk_bf16_f32 v{a+1}, v{a+2}, v{a+3}
v_cvt_pk_bf16_f32 v{a+2}, v{b}, v{b+1}
v_cvt_pk_bf16_f32 v{a+3}, v{b+2}, v{b+3}
""")
            sto.append(I(f"buffer_store_dwordx4 {vr(a,4)}, v{X_LIN}, {sr(R_WS,4)}, s{soff} offen offset:{st*1024} {pol}"))
        return val, sto

    def main_block(self):
        o = self.o
        b = []
        b += self.p1_reads(0, 0, 0)
        for n in range(9):
            mA = self.p1_mfmas(0, n == 0)
            mB = self.p1_mfmas(1, False)
            if o.dg_n & 1:
                mB = mB[:12]
            b += self.p1_reads(1, 1, n) + mA + self.bar([mA[o.ck1]], drain=True)
            if (o.dg_gap and n == o.dg_gapn) or o.dg_gapall:
                g = self.anchor(I(f"s_sleep {o.dg_gap or o.dg_gapall}"), mA[-1])
                g.note = "chain"
                b.append(g)
                self.anchor(mB[0], g)
            if o.stp1:
                b += [self.anchor(x, mA[-1]) for x in self.st(f"cycA{n}")]
            if n < 8:
                b += self.p1_reads(0, 0, n + 1)
            else:
                for p in range(4):
                    for kt in range(3):
                        for e in range(2):
                            b.append(I(f"ds_read_b64 {vr(self.kfrag(kt,p)+2*e,2)}, v{C_KA+2*p+e} offset:{kt*4096}"))
            b += mB
        b += [self.anchor(x, mB[-1]) for x in self.st("Qdone") + self.st("cyc1")]
        qk = []
        for st in range(3):
            for p in range(4):
                a, c = acc(2 * p, st), acc(2 * p + 1, st)
                b += L(f"""
v_cvt_pk_bf16_f32 v{a}, v{a}, v{a+1}
v_cvt_pk_bf16_f32 v{a+1}, v{a+2}, v{a+3}
v_cvt_pk_bf16_f32 v{a+2}, v{c}, v{c+1}
v_cvt_pk_bf16_f32 v{a+3}, v{c+2}, v{c+3}
""")
            m = [mfma(self.sacc(kt, st), self.kfrag(kt, p), acc(2 * p, st), None if p == 0 else self.sacc(kt, st))
                 for p in range(4) for kt in range(3)]
            qk += m
            b += m
        b += self.bar(qk)
        first = []
        for ks in range(4):
            first += self.v_reads(ks, self.VHOLD[ks])
        w0 = self.step_reads(0, 0)
        b += first[0:3] + w0[0:4] + first[3:6] + w0[4:8] + first[6:12]
        if o.w5first:
            b += self.step_reads(0, 1)
        EF = [D_OUTM, D_OUTM + 8, D_OUTM + 16]

        def e_mfmas(q, step):
            return [mfma(self.vw(2 * q + t, kt, q), self.VHOLD[2 * step + kk] + 4 * kt, D_W[step] + 4 * (2 * kk + t),
                         None if (step == 0 and kk == 0) else self.vw(2 * q + t, kt, q))
                    for kk in range(2) for t in range(2) for kt in range(3)]
        for q in range(o.eov):
            b += self.step_reads(q, 1) + e_mfmas(q, 0)
            if q == 0:
                b += self.step_reads(1, 0)
            b += e_mfmas(q, 1)
            for t in range(2):
                b += self.cvt_tile(2 * q + t, EF[q] + 4 * t, EF[2] + 4 * t, q, q)
        for st in range(3):
            sm = self.softmax(st)
            if o.qkfirst and st == 0:
                self.anchor(sm[0], qk[-4])
                self.anchor(sm[1], qk[-4])
            b += sm
        b += self.bar(drain=True)
        b += self.st("Pw") + self.st("cycP")
        b += gather_lanes(o, X_OUT, X_FL)
        NV = D_OUTE + 12
        if o.eov == 2:
            b += self.bar() + self.step_reads(2, 0)
        for q in range(o.eov, 18):
            pos, r4 = divmod(q - 2, 4) if q >= 2 else (0, -1)
            vwm = []
            for step in range(2):
                if q < 2:
                    vwm.append([mfma(self.vw(2 * q + t, kt, q), self.VHOLD[2 * step + kk] + 4 * kt, D_W[step] + 4 * (2 * kk + t),
                                     None if (step == 0 and kk == 0) else self.vw(2 * q + t, kt, q))
                                for kk in range(2) for t in range(2) for kt in range(3)])
                else:
                    ks = 2 * (r4 & 1) + step
                    vb = self.VHOLD[ks] if q in (2, 3) else D_V[step]
                    vwm.append([mfma(self.vw(t, kt), vb + 4 * kt, D_W[step] + 4 * t, None if ks == 0 else self.vw(t, kt))
                                for t in range(4) for kt in range(3)])
            fin, pr = [], []
            if q == 3:
                fin, pr = self.finals(D_OUTE, EF[0], 0, 2, first=True), self.p_reads(0, 0)
            elif q == 4:
                fin = self.finals(D_OUTE, EF[1], 1, 2) + self.finals(D_OUTE, EF[2], 0, 2)
                pr = self.p_reads(1, 1) + self.p_reads(2, 0)
            elif q >= 2 and r4 == 3:
                fin, pr = self.finals(D_OUTM, D_F01, 1, 4, first=(pos == 0)), self.p_reads(0, 1)
            elif q >= 6 and r4 == 0:
                fin, pr = self.finals(D_OUTM, D_F01, 0, 4), self.p_reads(1, 0)
            elif q >= 6 and r4 == 1:
                fin, pr = self.finals(D_OUTM, D_F2, 1, 4), self.p_reads(2, 1)
            if (o.dg_n & 4 and 5 <= q <= 9) or (o.dg_n & 8 and q >= 10):
                fin = fin[:1]
            mA = vwm[0] + fin
            lt = []
            if q == o.exq:
                val, sto = self.blocks(D_OUTE, S_ES)
                lt = val + [self.anchor(sto[0], mA[min(len(mA) - 1, o.exi)])] + sto[1:] + \
                    L(f"buffer_load_dwordx2 {vr(NV,2)}, v{X_L0}, {sr(R_DBG,4)}, 0 offen sc1")
            if q == o.exf:
                lt = L(f"s_waitcnt vmcnt(0)\nbuffer_store_dwordx2 {vr(NV,2)}, v{X_L0}, {sr(R_WS,4)}, s{S_EF} offen sc1")
                self.anchor(lt[0], mA[min(len(mA) - 1, o.dpos - 3)])
                lt[0].wr = {NV, NV + 1}
                lt += L(f"v_readfirstlane_b32 s{S_NON}, v{NV}\nv_readfirstlane_b32 s{S_NON+1}, v{NV+1}")
            r1 = [] if (q == 0 and o.w5first) else self.step_reads(q, 1)
            b += pr + (lt + r1 if (o.exi < 8 and q == o.exq) else r1 + lt) + mA
            if q % 2 == 1:
                b += self.bar([mA[min(o.dpos, len(mA) - 2)]], drain=True)
                if o.stp2:
                    b += [self.anchor(x, mA[-1]) for x in self.st(f"cycB{q}")]
            b += self.step_reads(q + 1, 0) if q < 17 else self.p_reads(1, 0) + self.p_reads(2, 1)
            b += vwm[1]
            if q < 2:
                for t in range(2):
                    b += self.cvt_tile(2 * q + t, EF[q] + 4 * t, EF[2] + 4 * t, q, q)
            elif r4 & 1:
                for t in range(4):
                    b += self.cvt_tile(t, D_F01 + 4 * t, D_F2 + 4 * t, r4 >> 1)
        f1 = self.finals(D_OUTM, D_F01, 0, 4)
        f2 = self.finals(D_OUTM, D_F2, 1, 4)
        for tp in range(2):
            b += f1[6 * tp:6 * tp + 6] + f2[6 * tp:6 * tp + 6]
        b += [self.anchor(x, f2[-1]) for x in self.st("P2done") + self.st("cyc2")]
        for tp in range(2):
            val, sto = self.blocks(D_OUTM + 24 * tp, S_MS + tp, o.dpol)
            b += val
            if o.own and not o.inblk:
                self.final_stores = getattr(self, "final_stores", []) + sto
            else:
                b += sto
        return b

    def gen(self):
        o = self.o
        self.startup()
        Sched.FILL, Sched.DS_LAT, Sched.DS_SCALE, Sched.WAR_DS, Sched.WAR_MEM, Sched.MFMA_LAT = \
            o.fill, o.dslat, o.dsscale, o.wards, o.warmem, o.mlat
        self.c += schedule(self.main_block())
        print("modelled cycles:", schedule.last_time)
        NV = D_OUTE + 12
        flag = L(f"s_waitcnt vmcnt(0)\nbuffer_store_dwordx2 {vr(NV,2)}, v{X_L0}, {sr(R_WS,4)}, s{S_MF} offen {o.fpol}")
        if o.own:
            self.A(f"s_cmp_eq_u32 s{S_W}, s{S_KQ}\ns_cbranch_scc1 L_own")
            self.c += getattr(self, "final_stores", []) + L("s_barrier") + flag + L("s_branch L_ownd\nL_own:")
            for i in range(6):
                self.A(f"ds_write_b128 v{X_LIN}, {vr(D_OUTM + 24 * (i // 3) + 4 * (i % 3), 4)} offset:{OWN_LDS + i * 1024}")
            self.A("s_waitcnt lgkmcnt(0)\ns_barrier")
            if o.lfirst:
                self.A(f"s_sleep {o.lfirst}")
            self.A("L_ownd:")
        else:
            if o.fbar:
                self.A("s_barrier")
            self.c += flag
        self.c += self.st("stored")
        self.c += gather_main(o, "L_gc", X_LIN, X_OUT, X_FL)
        if o.stamps:
            self.A("s_waitcnt vmcnt(0)")
            self.c += self.st("end")
            self.c += self.st.dump(0)
        self.A("s_endpgm\nWc_end:")
        return self.c


DESCR = """;
"""


def generate(o):
    for k in ('pol', 'fpol', 'ppol', 'dpol', 'lpol'):
        setattr(o, k, getattr(o, k).replace('+', ' '))
    ld, cp = Loader(o), Compute(o)
    body = finalize(prologue(o)) + finalize(ld.gen()) + finalize(cp.gen(), age=o.age)
    if o.walk:
        body = add_stubs(body, [("Wl_begin", "L_compute", "Wl", 4, "Wl_ret"), ("Wc_begin", "Wc_end", "Wc", 4, "Wc_ret")],
                         prefix=f"{NAME}:\n", smart=0)
    hdr = open("concat_heads__gqa_block_cached__gqa_block_cached__near_ridge.s.ref").read().split("\n")
    head = [l for l in hdr if l.startswith(";") and "@launch" not in l]
    s = "\n".join(head) + f"\n; @launch grid=(256,1,1) block=(512,1,1) lds={LDS_BYTES}\n"
    s += DESCR
    s += f'.amdgcn_target "amdgcn-amd-amdhsa--gfx950"\n.text\n.globl {NAME}\n.p2align 8\n.type {NAME},@function\n{NAME}:\n'
    s += text(body) + "\nL_end:\n    s_endpgm\n"
    s += f""".section .rodata,"a"
.p2align 6
.amdhsa_kernel {NAME}
  .amdhsa_next_free_vgpr 256
  .amdhsa_next_free_sgpr 102
  .amdhsa_accum_offset 256
  .amdhsa_group_segment_fixed_size 0
  .amdhsa_kernarg_size 104
  .amdhsa_user_sgpr_count 2
  .amdhsa_user_sgpr_kernarg_segment_ptr 1
  .amdhsa_system_sgpr_workgroup_id_x 1
.end_amdhsa_kernel
"""
    return s, ld.st.names, cp.st.names


if __name__ == "__main__":
    o = Opt()
    out = sys.argv[1]
    for a in sys.argv[2:]:
        k, v = a.split("=")
        cur = getattr(o, k)
        setattr(o, k, (v == "1") if isinstance(cur, bool) else type(cur)(v))
    s, ln, cn = generate(o)
    open(out, "w").write(s)
    if o.stamps:
        open(out + ".names", "w").write(repr((cn, ln, 0, WS_STAMP)))
    print("generated", out, len(s.splitlines()), "lines")
```

```python
import sys
from asmlib import *

NAME = "concat_heads__gqa_block_cached__gqa_block_cached__near_ridge_kernel"


class Opt:
    stamps = False
    stp1 = False
    stp2 = False
    ldexit = False
    walk = False
    refresh = 5
    rot = 2
    rotoff = 5
    kpos = -1
    budget = 11
    budget1 = 5
    budget0 = 99
    flip = True
    cqrot = 1
    w5first = False
    earlyflag = True
    exq = 5
    exi = 10
    exf = 9
    expoll = 13
    inblk = True
    dg_plain = 0
    wbat = 13
    dg_gap = 0
    dg_gapn = 4
    dg_gapall = 0
    dg_n = 0
    kspread = False
    vspread = False
    pace2 = 0
    stag = 0
    blist = '5555bbb'
    pol = ''
    ldfirst = False
    fsh = 3
    vfirst = 0
    fpol = 'sc1'
    ppol = 'sc1'
    dpol = 'sc1'
    lpol = 'sc1'
    eov = 0
    nopk = 0
    qkfirst = False
    rotmask = 1
    polk = ''
    own = True
    fill = 5
    dslat = 120
    dsscale = 1.15
    wards = 8
    warmem = 160
    mlat = 56
    ck1 = 22
    dpos = 13
    age = 24
    gsleep = 0
    fbar = False
    lfirst = 0
    prio_loader = 0
    prio_compute = 0


SLOT = 45056
A_SLOT = [0, SLOT, 2 * SLOT]
K_LDS = 3 * SLOT
P_LDS = K_LDS
V_LDS = [0, 110592]
W_LDS = [24576, 45056, 61440, 77824, 94208]
LDS_BYTES = 163840

WS_P = 0
WS_PM = 256 * 18432
WS_PE = WS_PM + 256 * 24576
WS_FLAG = WS_PE + 256 * 12288
WS_FLAG2 = WS_FLAG + 256 * 128
WS_STAMP = WS_FLAG2 + 256 * 512
OWN_LDS = 0
WS_USED = WS_STAMP + 256 * 512

S_X, S_K, S_V, S_WQ, S_WO = 4, 6, 8, 10, 12
S_OUT, S_DBG, S_WS = 14, 16, 18
R_X, R_WQ, R_K, R_V, R_WO, R_WS, R_OUT, R_DBG = 20, 24, 28, 32, 36, 40, 44, 48
S_BR, S_KQ, S_BP, S_JL, S_J, S_CQ, S_W, S_KC = 52, 53, 54, 55, 56, 57, 58, 59
S_T0, S_T1, S_T2, S_T3, S_T4, S_T5 = 60, 61, 62, 63, 64, 65
S_NON = 66
S_GRP = 68
S_CNT = 69
S_EX = 70
S_EI, S_EO = 70, 71
S_C0 = 72
S_ES, S_EF, S_MS = 74, 75, 100
S_F0, S_F1 = 4, 5
S_GI = 6
S_GO, S_FL, S_MF = 10, 11, 12
S_ST = 76
NSTAMP = 12
SPIN_MAX = 500000


def L(s):
    return [I(x) for x in s.strip().split("\n") if x.strip()]


class Stamper:
    def __init__(self, on):
        self.on, self.n, self.names, self.only = on, 0, [], None

    def __call__(self, name):
        if not self.on or (self.only and not name.startswith(self.only) and name not in ("start", "cyc0")):
            return []
        assert self.n < NSTAMP
        r = S_ST + 2 * self.n
        self.n += 1
        self.names.append(name)
        return [I(f"{'s_memtime' if name.startswith('cyc') else 's_memrealtime'} {sr(r,2)}")]

    def dump(self, role):
        if not self.on:
            return []
        tag = "cl"[role]
        o = L(f"""
s_cmp_lg_u32 s{S_W}, 0
s_cbranch_scc1 L_nostamp_{tag}
s_waitcnt lgkmcnt(0)
s_lshl_b32 s{S_T0}, s2, 9
s_add_u32 s{S_T0}, s{S_T0}, {WS_STAMP + role*256}
v_mov_b32 v1, 0
s_mov_b64 exec, 1
""")
        for i in range(self.n):
            o += L(f"""
v_mov_b32 v2, s{S_ST+2*i}
v_mov_b32 v3, s{S_ST+2*i+1}
buffer_store_dwordx2 v[2:3], v1, {sr(R_WS,4)}, s{S_T0} offen offset:{8*i}
s_nop 1
""")
        o += L(f"s_mov_b64 exec, -1\nL_nostamp_{tag}:")
        return o


def srd(r, ptr, size):
    return L(f"""
s_mov_b32 s{r}, s{ptr}
s_and_b32 s{r+1}, s{ptr+1}, 0xffff
s_mov_b32 s{r+2}, {size}
s_mov_b32 s{r+3}, 0x20000
""")


def srd_off(r, ptr, soff, total):
    return L(f"""
s_add_u32 s{r}, s{ptr}, s{soff}
s_addc_u32 s{r+1}, s{ptr+1}, 0
s_and_b32 s{r+1}, s{r+1}, 0xffff
s_sub_u32 s{r+2}, {total}, s{soff}
s_mov_b32 s{r+3}, 0x20000
""")


def walk_entry(tag):
    c = L("s_mov_b64 exec, 0")
    for w in range(3):
        c += L(f"s_cmp_eq_u32 s{S_W}, {w}\ns_cbranch_scc1 {tag}_w{w}")
    c += L(f"s_branch {tag}_w3\n{tag}_ret:\ns_mov_b64 exec, -1")
    return c


def prologue(o):
    return L(f"""
s_and_b32 s{S_T0}, s2, 7
s_lshr_b32 s{S_BR}, s{S_T0}, 2
s_mul_i32 s{S_T1}, s{S_BR}, 40
s_load_dwordx8 s[4:11], s[0:1], s{S_T1}
s_load_dwordx2 s[12:13], s[0:1], s{S_T1} offset:32
s_load_dwordx2 s[14:15], s[0:1], 80
s_load_dwordx4 s[16:19], s[0:1], 88
s_cmp_ge_u32 s2, 256
s_cbranch_scc1 L_end
v_lshrrev_b32 v1, 6, v0
s_and_b32 s{S_KQ}, s{S_T0}, 3
s_lshr_b32 s{S_T2}, s2, 3
v_readfirstlane_b32 s{S_W}, v1
s_lshr_b32 s{S_BP}, s{S_T2}, 2
s_and_b32 s{S_JL}, s{S_T2}, 3
s_lshl_b32 s{S_J}, s{S_KQ}, 2
s_add_u32 s{S_J}, s{S_J}, s{S_JL}
v_and_b32 v0, 63, v0
{f's_xor_b32 s{S_W}, s{S_W}, 4' if o.ldfirst else ''}
s_cmp_lt_u32 s{S_W}, 4
s_cbranch_scc1 L_compute
""")


def common_scalars(o):
    return L(f"""
s_mul_i32 s{S_CQ}, s{S_BP}, {o.cqrot}
s_add_u32 s{S_CQ}, s{S_JL}, s{S_CQ}
s_and_b32 s{S_CQ}, s{S_CQ}, 3
s_lshl_b32 s{S_GRP}, s{S_BR}, 3
s_add_u32 s{S_GRP}, s{S_GRP}, s{S_BP}
s_lshl_b32 s{S_GRP}, s{S_GRP}, 4
s_mul_i32 s{S_T0}, s{S_BR}, 1152
""") + srd_off(R_OUT, S_OUT, S_T0, 1769472) + srd(R_WS, S_WS, WS_USED) + srd(R_DBG, S_DBG, 256)


def gather_scalars(o, m):
    c = L(f"""
s_add_u32 s{S_T0}, s{S_GRP}, s{S_JL}
s_lshl_b32 s{S_T0}, s{S_T0}, 2
s_add_u32 s{S_T0}, s{S_T0}, s{S_KQ}
s_mul_i32 s{S_T0}, s{S_T0}, 6
s_add_u32 s{S_T0}, s{S_T0}, s{m}
s_lshl_b32 s{S_T0}, s{S_T0}, 10
s_add_u32 s{S_T0}, s{S_T0}, {WS_PM}
""")
    for k in range(4):
        if o.own:
            if k < 3:
                c += L(f"""
s_add_u32 s{S_T1}, s{S_KQ}, {k+1}
s_and_b32 s{S_T1}, s{S_T1}, 3
s_mul_i32 s{S_T1}, s{S_T1}, {4*24576}
s_add_u32 s{S_GI+k}, s{S_T0}, s{S_T1}
""")
            else:
                c += L(f"s_lshl_b32 s{S_GI+3}, s{m}, 10")
        else:
            c += L(f"s_add_u32 s{S_GI+k}, s{S_T0}, {k*4*24576}")
    return c + L(f"""
s_cmp_ge_u32 s{m}, 3
s_cselect_b32 s{S_T1}, 1, 0
s_mul_i32 s{S_T2}, s{S_T1}, 3
s_sub_u32 s{S_T2}, s{m}, s{S_T2}
s_lshr_b32 s{S_T3}, s{S_KQ}, 1
s_lshl_b32 s{S_T0}, s{S_BP}, 1
s_add_u32 s{S_T3}, s{S_T3}, s{S_T0}
s_mul_i32 s{S_T3}, s{S_T3}, 48
s_lshl_b32 s{S_T2}, s{S_T2}, 4
s_add_u32 s{S_T3}, s{S_T3}, s{S_T2}
s_mul_i32 s{S_T3}, s{S_T3}, 2304
s_lshl_b32 s{S_T2}, s{S_CQ}, 8
s_add_u32 s{S_T3}, s{S_T3}, s{S_T2}
s_and_b32 s{S_T2}, s{S_KQ}, 1
s_lshl_b32 s{S_T2}, s{S_T2}, 7
s_add_u32 s{S_T3}, s{S_T3}, s{S_T2}
s_lshl_b32 s{S_T1}, s{S_T1}, 6
s_add_u32 s{S_GO}, s{S_T3}, s{S_T1}
s_add_u32 s{S_FL}, s{S_GRP}, s{S_J}
s_lshl_b32 s{S_FL}, s{S_FL}, 9
s_add_u32 s{S_FL}, s{S_FL}, {WS_FLAG2}
""")


def gather_lanes(o, vout, vfl):
    c = L(f"""
v_and_b32 v{vout}, 15, v0
v_mul_u32_u24 v{vout}, 2304, v{vout}
v_bfe_u32 v{vout+1}, v0, 4, 1
v_lshl_add_u32 v{vout}, v{vout+1}, 5, v{vout}
v_lshrrev_b32 v{vout+1}, 5, v0
v_lshl_add_u32 v{vout}, v{vout+1}, 4, v{vout}
v_and_b32 v{vfl}, 3, v0
""")
    if o.own:
        c += L(f"v_min_u32 v{vfl}, 2, v{vfl}\nv_add3_u32 v{vfl}, v{vfl}, s{S_KQ}, 1\nv_and_b32 v{vfl}, 3, v{vfl}")
    return c + L(f"v_lshlrev_b32 v{vfl}, {o.fsh}, v{vfl}")


def unpack_add(dst, src, first, t):
    r = []
    for i in range(4):
        if first:
            r += L(f"v_lshlrev_b32 v{dst+2*i}, 16, v{src+i}\nv_and_b32 v{dst+2*i+1}, 0xffff0000, v{src+i}")
        else:
            tt = t + 2 * (i & 1)
            r += L(f"""
v_lshlrev_b32 v{tt}, 16, v{src+i}
v_and_b32 v{tt+1}, 0xffff0000, v{src+i}
v_pk_add_f32 v[{dst+2*i}:{dst+2*i+1}], v[{dst+2*i}:{dst+2*i+1}], v[{tt}:{tt+1}]
""")
    return r


GB = 96


def gather_main(o, label, vlin, vout, vfl):
    c = []
    n = 3 if o.own else 4
    if o.own:
        c += L(f"v_add_u32 v{GB+24}, s{S_GI+3}, v{vlin}\nds_read_b128 {vr(GB+12,4)}, v{GB+24} offset:{OWN_LDS}")
        c += unpack_add(GB + 16, GB + 12, True, GB + 24)
    c += L(f"""
s_mov_b32 s{S_CNT}, {SPIN_MAX}
{label}:
buffer_load_dwordx2 {vr(GB+28,2)}, v{vfl}, {sr(R_WS,4)}, s{S_FL} offen {o.ppol}
s_sub_u32 s{S_CNT}, s{S_CNT}, 1
s_waitcnt vmcnt(0)
v_cmp_ne_u64 vcc, {sr(S_NON,2)}, {vr(GB+28,2)}
{'s_branch' if o.dg_n & 16 else 's_cbranch_vccz'} {label}d
{f's_sleep {o.gsleep}' if o.gsleep else ''}
s_cmp_lg_u32 s{S_CNT}, 0
s_cbranch_scc1 {label}
{label}d:
""")
    for k in range(n):
        c += L(f"buffer_load_dwordx4 {vr(GB+4*k,4)}, v{vlin}, {sr(R_WS,4)}, s{S_GI+k} offen {o.lpol}")
    for k in range(n):
        c += L(f"s_waitcnt vmcnt({n-1-k})") + unpack_add(GB + 16, GB + 4 * k, k == 0 and not o.own, GB + 24)
    s = GB + 16
    return c + L(f"""
v_cvt_pk_bf16_f32 v{GB}, v{s}, v{s+1}
v_cvt_pk_bf16_f32 v{GB+1}, v{s+2}, v{s+3}
v_cvt_pk_bf16_f32 v{GB+2}, v{s+4}, v{s+5}
v_cvt_pk_bf16_f32 v{GB+3}, v{s+6}, v{s+7}
v_permlane16_swap_b32 v{GB}, v{GB+2}
v_permlane16_swap_b32 v{GB+1}, v{GB+3}
buffer_store_dwordx4 {vr(GB,4)}, v{vout}, {sr(R_OUT,4)}, s{S_GO} offen
""")


V_WQ = 8
V_XO = 16
V_KV = 19
V_WM = 25
V_WE = 29
V_LIN = 33
V_T = 34
V_FL = 60
V_SV = 66
V_W2 = 140
V_EA, V_MO, V_MF = 144, 156, 158


class Loader:
    SB_WQ, SB_X, SB_KV, SB_W, SB_P0, SB_P12 = 72, 73, 74, 75, 100, 101

    def __init__(self, o):
        self.o, self.c, self.issued, self.q = o, [], [], []
        self.pace = 0
        self.st = Stamper(o.stamps)

    def A(self, s):
        self.c += L(s)

    def wait_for(self, tags):
        last = max([i for i, t in enumerate(self.issued) if t in tags], default=-1)
        if last < 0:
            return
        self.A(f"s_waitcnt vmcnt({len(self.issued) - 1 - last})")
        self.issued = self.issued[last + 1:]

    def barrier(self, tags):
        self.wait_for(tags)
        self.A("s_barrier")

    def push(self, *jobs):
        for tag, setup, items in jobs:
            self.q.append([tag, setup, list(items)])

    def pump(self, need, extra):
        while self.q:
            tag, setup, items = self.q[0]
            if any(j[0] in need for j in self.q):
                n = len(items)
            else:
                last = max([i for i, t in enumerate(self.issued) if t in need], default=-1)
                n = min(len(items), extra - (len(self.issued) - 1 - last))
                if n <= 0:
                    break
            if setup:
                self.A(setup)
            prev = None
            for (rsrc, pol, base, lds, voff, soff, half) in items[:n]:
                self.A("s_addk_i32 m0, 0x400" if prev == (base, lds - 1024) else f"s_add_u32 m0, s{base}, {lds}")
                prev = (base, lds)
                if half:
                    self.A("s_mov_b32 exec_hi, 0")
                self.A(f"buffer_load_dwordx4 v{voff}, {sr(rsrc,4)}, {soff} offen {pol} lds")
                if half:
                    self.A("s_mov_b32 exec_hi, -1")
                self.issued.append(tag)
                if self.pace:
                    self.A(f"s_sleep {self.pace}")
            assert len(self.issued) <= 63
            del items[:n]
            if items:
                break
            self.q.pop(0)

    def job_s(self, n):
        o = self.o
        slot = A_SLOT[n % 3]
        if o.rot == 4 and n < 8:
            setup = f"s_xor_b32 s{S_T1}, s{S_KC}, {n}\ns_lshl_b32 s{S_T0}, s{S_T1}, 19\ns_lshl_b32 s{S_T1}, s{S_T1}, 7"
        elif o.rot in (1, 2, 3):
            setup = f"s_lshl_b32 s{S_T0}, s{S_KC}, 19\ns_lshl_b32 s{S_T1}, s{S_KC}, 7" if n == 0 else f"""
s_add_u32 s{S_T1}, s{S_KC}, {n}
s_cmp_ge_u32 s{S_T1}, 9
s_cselect_b32 s{S_T0}, 9, 0
s_sub_u32 s{S_T1}, s{S_T1}, s{S_T0}
s_lshl_b32 s{S_T0}, s{S_T1}, 19
s_lshl_b32 s{S_T1}, s{S_T1}, 7
"""
        else:
            setup = f"s_mov_b32 s{S_T0}, {n << 19}\ns_movk_i32 s{S_T1}, {n << 7}"
        it = [(R_X, o.pol, self.SB_X, slot + 32768 + u * 1024, V_XO + u, f"s{S_T1}", False) for u in range(3)]
        it += [(R_WQ, o.pol, self.SB_WQ, slot + u * 1024, V_WQ + u, f"s{S_T0}", False) for u in range(8)]
        return (f"S{n}", setup, it)

    def job_k(self):
        return ("K", "", [(R_K, self.o.polk or self.o.pol, self.SB_KV, K_LDS + u * 1024, V_KV + u, "0", False) for u in range(6)])

    def jjt(self, pos, dst):
        return f"s_add_u32 s{dst}, s{S_JL}, {pos}\ns_and_b32 s{dst}, s{dst}, 3\n"

    def job_v(self, pos):
        return (f"V{pos}", self.jjt(pos, S_T0) + f"s_mul_i32 s{S_T0}, s{S_T0}, 12288",
                [(R_V, self.o.pol, self.SB_KV, V_LDS[pos % 2] + u * 1024, V_KV + u, f"s{S_T0}", False) for u in range(6)])

    def job_w(self, q, both=0):
        if q < 2:
            setup = f"s_mul_i32 s{S_T0}, s{S_JL}, {256*1152}\ns_add_u32 s{S_T0}, s{S_T0}, {q*128*1152 + 1024}"
            vb = V_WE
        else:
            pos, r = divmod(q - 2, 4)
            setup = self.jjt(pos, S_T0) + f"""
s_mul_i32 s{S_T0}, s{S_T0}, {256*1152}
s_add_u32 s{S_T0}, s{S_T0}, {(r&2)*64*1152}
s_add_u32 s{S_T0}, s{S_T0}, s{S_F0 + (r&1)}
"""
            vb = V_WM
        it = [(R_WO, self.o.pol, self.SB_W, W_LDS[q % 5] + u * 1024, vb + u, f"s{S_T0}", False) for u in range(4)]
        if both:
            it += [(R_WO, self.o.pol, self.SB_W, W_LDS[q % 5] + both * 8192 + u * 1024, V_W2 + u, f"s{S_T0}", False) for u in range(4)]
        return (f"W{q}", setup, it)

    def p_block(self, pos):
        return self.jjt(pos, S_T0) + f"""
s_lshl_b32 s{S_T3}, s{S_KQ}, 2
s_add_u32 s{S_T0}, s{S_T0}, s{S_T3}
s_add_u32 s{S_T0}, s{S_T0}, s{S_GRP}
s_mul_i32 s{S_T0}, s{S_T0}, 18432
"""

    def job_p(self, pos, f0, nf, tag, lds):
        sb = self.SB_P0 if nf == 1 else self.SB_P12
        setup = self.p_block(pos) + f"""
s_add_u32 s{S_T0}, s{S_T0}, s{sb}
s_add_u32 s{S_T0}, s{S_T0}, {f0*6144}
s_add_u32 s{S_T1}, s{S_T0}, 1024
s_add_u32 s{S_T2}, s{S_T0}, 2048
"""
        it = [(R_WS, "" if self.o.dg_plain & 4 else "sc1", sb, lds + u * 1024, V_LIN, f"s{S_T0+u}", nf == 1 and u == 1) for u in range(2 if nf == 1 else 3)]
        return (tag, setup, it)

    def code_touch(self):
        self.A(f"""
s_getpc_b64 s[{S_EX}:{S_EX+1}]
L_pcl:
s_sub_u32 s{S_EX}, s{S_EX}, L_pcl-{NAME}
s_subb_u32 s{S_EX+1}, s{S_EX+1}, 0
s_lshl_b32 s{S_T0}, s{S_W}, 13
v_lshlrev_b32 v{V_SV}, 7, v0
v_add_u32 v{V_SV}, s{S_T0}, v{V_SV}
v_min_u32 v{V_SV}, L_end-{NAME}, v{V_SV}
s_cmp_lt_u32 s2, 8
s_cselect_b64 exec, -1, 1
global_load_dword v{V_SV+1}, v{V_SV}, s[{S_EX}:{S_EX+1}]
s_mov_b64 exec, -1
""")
        self.issued.append("code")

    def nonce_issue(self):
        self.A(f"v_mov_b32 v{V_FL}, 0\nbuffer_load_dwordx2 v[{V_FL+2}:{V_FL+3}], v{V_FL}, {sr(R_DBG,4)}, 0 offen sc1")
        self.issued.append("non")

    def nonce_check(self):
        self.wait_for(["non"])
        self.A(f"""
s_mov_b32 s{S_CNT}, {SPIN_MAX}
L_nonce:
v_readfirstlane_b32 s{S_NON}, v{V_FL+2}
v_readfirstlane_b32 s{S_NON+1}, v{V_FL+3}
s_sub_u32 s{S_CNT}, s{S_CNT}, 1
s_cmp_eq_u32 s{S_CNT}, 0
s_cbranch_scc1 L_nonce_done
s_cmp_lg_u32 s{S_NON}, 0
s_cbranch_scc1 L_nonce_done
buffer_load_dwordx2 v[{V_FL+2}:{V_FL+3}], v{V_FL}, {sr(R_DBG,4)}, 0 offen sc1
s_waitcnt vmcnt(0)
s_branch L_nonce
L_nonce_done:
""")

    def flag(self):
        self.wait_for(["pub"])
        self.A(f"""
s_add_u32 s{S_T0}, s{S_GRP}, s{S_J}
s_lshl_b32 s{S_T0}, s{S_T0}, 7
s_lshl_b32 s{S_T1}, s{S_W}, 3
s_add_u32 s{S_T0}, s{S_T0}, s{S_T1}
s_add_u32 s{S_T0}, s{S_T0}, {WS_FLAG}
s_mov_b64 exec, 1
buffer_store_dwordx2 v[{V_FL+2}:{V_FL+3}], v{V_FL}, {sr(R_WS,4)}, s{S_T0} offen {'' if self.o.dg_plain & 2 else 'sc1'}
s_mov_b64 exec, -1
""")
        self.issued.append("flag")

    def publish_setup(self, split):
        self.A(self.p_block(0) + (f"s_and_b32 s{S_T1}, s{S_W}, 1\ns_mul_i32 s{S_T1}, s{S_T1}, 9216" if split else
                                  f"s_mul_i32 s{S_T1}, s{S_W}, 4608") + f"""
s_add_u32 s{S_T0}, s{S_T0}, s{S_T1}
s_add_u32 s{S_T1}, s{S_T1}, {P_LDS}
v_add_u32 v{V_T+4}, s{S_T1}, v{V_LIN}
s_add_u32 s{S_T1}, s{S_T0}, 4096
s_add_u32 s{S_T2}, s{S_T0}, 8192
""")

    def publish(self, split):
        n = 9 if split else 5
        for u in range(n):
            self.A(f"ds_read_b128 {vr(96+4*u,4)}, v{V_T+4} offset:{u*1024}")
        for u in range(n):
            half = not split and u == 4
            if half:
                self.A("s_waitcnt lgkmcnt(0)\ns_mov_b32 exec_hi, 0")
            self.A(f"buffer_store_dwordx4 {vr(96+4*u,4)}, v{V_LIN}, {sr(R_WS,4)}, s{S_T0+u//4} offen offset:{(u%4)*1024} {'' if self.o.dg_plain & 1 else 'sc1'}")
            if half:
                self.A("s_mov_b32 exec_hi, -1")
            self.issued.append("pub")

    def flags_setup(self, split):
        self.A(f"""
{f'v_bfe_u32 v{V_T}, v0, 1, 2' if split else f'v_bfe_u32 v{V_T}, v0, 2, 2'}
{f'v_and_or_b32 v{V_T+1}, v0, 1, 2' if split else f'v_and_b32 v{V_T+1}, 3, v0'}
v_lshlrev_b32 v{V_T}, 7, v{V_T}
v_lshl_add_u32 v{V_T}, v{V_T+1}, 3, v{V_T}
s_lshl_b32 s{S_T5}, s{S_KQ}, 2
s_add_u32 s{S_T5}, s{S_T5}, s{S_GRP}
s_lshl_b32 s{S_T5}, s{S_T5}, 7
s_add_u32 s{S_T5}, s{S_T5}, {WS_FLAG}
""")

    def flags_sample(self):
        self.A(f"buffer_load_dwordx2 v[{V_T+4}:{V_T+5}], v{V_T}, {sr(R_WS,4)}, s{S_T5} offen sc1")
        self.issued.append("smp")

    def flags_wait(self):
        self.wait_for(["smp"])
        self.A(f"""
s_mov_b32 s{S_CNT}, {SPIN_MAX}
L_poll:
v_cmp_ne_u64 vcc, {sr(S_NON,2)}, v[{V_T+4}:{V_T+5}]
s_cbranch_vccz L_polld
s_sub_u32 s{S_CNT}, s{S_CNT}, 1
s_cmp_eq_u32 s{S_CNT}, 0
s_cbranch_scc1 L_polld
buffer_load_dwordx2 v[{V_T+4}:{V_T+5}], v{V_T}, {sr(R_WS,4)}, s{S_T5} offen sc1
s_waitcnt vmcnt(0)
s_branch L_poll
L_polld:
""")

    def extra_setup(self):
        E = V_EA
        self.A(f"""
v_lshrrev_b32 v{E+8}, 2, v0
v_lshlrev_b32 v{E+8}, 7, v{E+8}
v_and_b32 v{E+9}, 3, v0
v_lshl_add_u32 v{E+8}, v{E+9}, 3, v{E+8}
s_lshl_b32 s{S_T4}, s{S_GRP}, 7
s_add_u32 s{S_T4}, s{S_T4}, {WS_FLAG + 64}
s_mul_i32 s{S_T0}, s{S_J}, 48
s_mul_i32 s{S_T1}, s{S_W}, 12
s_add_u32 s{S_T0}, s{S_T0}, s{S_T1}
v_and_b32 v{E+9}, 15, v0
v_min_u32 v{E}, 11, v{E+9}
v_add_u32 v{E}, s{S_T0}, v{E}
v_lshrrev_b32 v{E+2}, 6, v{E}
v_and_b32 v{E+3}, 63, v{E}
v_mul_u32_u24 v{E+4}, 0x56, v{E+2}
v_lshrrev_b32 v{E+4}, 8, v{E+4}
v_mul_u32_u24 v{E+5}, 3, v{E+4}
v_sub_u32 v{E+5}, v{E+2}, v{E+5}
v_lshrrev_b32 v{E+6}, 1, v{E+4}
v_mul_u32_u24 v{E+6}, 48, v{E+6}
v_lshl_add_u32 v{E+6}, v{E+5}, 4, v{E+6}
v_and_b32 v{E+7}, 15, v{E+3}
v_add_u32 v{E+6}, v{E+6}, v{E+7}
v_mul_u32_u24 v{E+1}, 2304, v{E+6}
v_and_b32 v{E+7}, 1, v{E+4}
v_lshl_add_u32 v{E+1}, v{E+7}, 6, v{E+1}
v_lshrrev_b32 v{E+7}, 4, v{E+3}
v_lshl_add_u32 v{E+1}, v{E+7}, 3, v{E+1}
v_lshrrev_b32 v{E+7}, 4, v0
v_and_b32 v{E+2}, 1, v{E+7}
v_lshl_add_u32 v{E+1}, v{E+2}, 2, v{E+1}
v_lshrrev_b32 v{E+2}, 1, v{E+7}
v_lshl_add_u32 v{E+1}, v{E+2}, 5, v{E+1}
v_cmp_gt_u32 vcc, 12, v{E+9}
v_mov_b32 v{E+2}, 0x40000000
v_cndmask_b32 v{E+1}, v{E+2}, v{E+1}, vcc
s_mul_i32 s{S_EO}, s{S_BP}, {96*2304}
s_add_u32 s{S_EO}, s{S_EO}, 1024
v_mul_u32_u24 v{E+7}, {4*12288}, v{E+7}
v_lshl_add_u32 v{E}, v{E}, 4, v{E+7}
s_mul_i32 s{S_EI}, s{S_GRP}, 12288
s_add_u32 s{S_EI}, s{S_EI}, {WS_PE}
s_mov_b32 s{S_CNT}, {SPIN_MAX}
L_polle:
buffer_load_dwordx2 v[{V_T+4}:{V_T+5}], v{E+8}, {sr(R_WS,4)}, s{S_T4} offen sc1
s_sub_u32 s{S_CNT}, s{S_CNT}, 1
s_waitcnt vmcnt(0)
v_cmp_ne_u64 vcc, {sr(S_NON,2)}, v[{V_T+4}:{V_T+5}]
s_cbranch_vccz L_polled
s_sleep 2
s_cmp_lg_u32 s{S_CNT}, 0
s_cbranch_scc1 L_polle
L_polled:
""")
        self.issued = []

    def extra_loads(self):
        for k in range(4):
            self.A(f"buffer_load_dwordx4 {vr(72+4*k,4)}, v{V_EA}, {sr(R_WS,4)}, s{S_EI} offen sc1")
            self.issued.append("ex")
            if k < 3:
                self.A(f"s_add_u32 s{S_EI}, s{S_EI}, 12288")

    def extra_sum(self):
        A = self.A
        self.wait_for(["ex"])
        for k in range(4):
            self.c += unpack_add(48, 72 + 4 * k, k == 0, 56)
        for i in range(4):
            A(f"v_permlane32_swap_b32 v{48+i}, v{52+i}")
        A("""
v_pk_add_f32 v[48:49], v[48:49], v[52:53]
v_pk_add_f32 v[50:51], v[50:51], v[54:55]
v_permlane16_swap_b32 v48, v50
v_permlane16_swap_b32 v49, v51
v_pk_add_f32 v[48:49], v[48:49], v[50:51]
v_cvt_pk_bf16_f32 v56, v48, v49
""")
        A(f"buffer_store_dword v56, v{V_EA+1}, {sr(R_OUT,4)}, s{S_EO} offen")

    def gen(self):
        o = self.o
        A = self.A
        split = not o.w5first
        self.c += self.st("start")
        if o.prio_loader:
            A(f"s_setprio {o.prio_loader}")
        A(f"""
s_sub_u32 s{S_W}, s{S_W}, 4
v_lshrrev_b32 v1, 5, v0
v_and_b32 v2, 31, v0
v_lshlrev_b32 v2, 4, v2
v_lshlrev_b32 v3, 5, v1
v_xor_b32 v2, v2, v3
v_lshl_add_u32 v2, v1, 13, v2
s_lshl_b32 s{S_T0}, s{S_W}, 17
v_add_u32 v{V_WQ}, s{S_T0}, v2
s_movk_i32 s{S_T1}, 0x4000
v_xad_u32 v{V_WQ+1}, v{V_WQ}, 64, s{S_T1}
v_lshrrev_b32 v4, 4, v0
v_and_b32 v5, 7, v0
s_mov_b32 s{S_T2}, 0x8000
v_add_u32 v{V_WQ+2}, s{S_T2}, v{V_WQ}
v_add_u32 v{V_WQ+3}, s{S_T2}, v{V_WQ+1}
v_xor_b32 v{V_WQ+4}, 0x10080, v{V_WQ}
v_xor_b32 v{V_WQ+5}, 0x10080, v{V_WQ+1}
v_add_u32 v{V_WQ+6}, s{S_T2}, v{V_WQ+4}
v_add_u32 v{V_WQ+7}, s{S_T2}, v{V_WQ+5}
v_xor_b32 v5, v5, v4
v_lshlrev_b32 v5, 4, v5
s_and_b32 s{S_T1}, s{S_W}, 1
s_lshl_b32 s{S_T2}, s{S_T1}, 6
v_xor_b32 v5, s{S_T2}, v5
v_lshrrev_b32 v6, 3, v0
v_mul_u32_u24 v6, 1152, v6
s_mul_i32 s{S_T3}, s{S_W}, 27648
v_add3_u32 v{V_XO}, v5, v6, s{S_T3}
v_add_u32 v{V_XO+2}, 18432, v{V_XO}
v_xor_b32 v5, 64, v5
s_add_u32 s{S_T3}, s{S_T3}, 9216
v_add3_u32 v{V_XO+1}, v5, v6, s{S_T3}
s_lshl_b32 s{self.SB_WQ}, s{S_W}, 13
s_mul_i32 s{self.SB_X}, s{S_W}, 3072
s_mul_i32 s{S_T4}, s{S_BP}, 110592
s_lshl_b32 s{S_T5}, s{S_J}, 9
""")
        if o.rot == 1:
            A(f"""
s_lshl_b32 s{S_T1}, s{S_JL}, 1
s_add_u32 s{S_KC}, s{S_BP}, s{S_T1}
s_cmp_ge_u32 s{S_KC}, 9
s_cselect_b32 s{S_T1}, 9, 0
s_sub_u32 s{S_KC}, s{S_KC}, s{S_T1}
""")
        elif o.rot == 3:
            A(f"""
s_add_u32 s{S_KC}, s{S_BP}, s{S_JL}
s_mul_i32 s{S_T1}, s{S_KC}, 0x56
s_lshr_b32 s{S_T1}, s{S_T1}, 8
s_mul_i32 s{S_T1}, s{S_T1}, 3
s_sub_u32 s{S_KC}, s{S_KC}, s{S_T1}
s_mul_i32 s{S_KC}, s{S_KC}, 3
""")
        elif o.rot:
            A(f"s_add_u32 s{S_KC}, s{S_BP}, s{S_JL}\ns_and_b32 s{S_KC}, s{S_KC}, {o.rotmask if o.rot == 4 else 1}")
        if o.rot == 2:
            A(f"s_mul_i32 s{S_KC}, s{S_KC}, {o.rotoff}")
        A("s_waitcnt lgkmcnt(0)")
        self.c += srd_off(R_WQ, S_WQ, S_T5, 4718592)
        self.c += srd_off(R_X, S_X, S_T4, 884736)
        self.c += self.st("karg")
        self.push(self.job_s(0), self.job_s(1), self.job_s(2))
        self.pump(["S0"], o.budget0)
        self.c += self.st("S0iss")
        A(f"""
v_and_b32 v5, 15, v0
v_xor_b32 v5, v5, v4
v_lshlrev_b32 v5, 4, v5
s_and_b32 s{S_T1}, s{S_W}, 1
s_lshl_b32 s{S_T2}, s{S_T1}, 7
v_xor_b32 v5, s{S_T2}, v5
s_mul_i32 s{S_T2}, s{S_T1}, 6144
s_lshr_b32 s{S_T3}, s{S_W}, 1
s_mul_i32 s{S_T3}, s{S_T3}, 196608
s_add_u32 s{S_T2}, s{S_T2}, s{S_T3}
v_lshl_add_u32 v6, v4, 8, s{S_T2}
""")
        for u in range(6):
            cu = (u & 3) << 6
            A(f"v_xor_b32 v7, {cu}, v5\nv_add_u32 v7, v7, v6" if cu else "v_add_u32 v7, v5, v6")
            A(f"v_add_u32 v{V_KV+u}, {u*1024}, v7")
        A(f"""
s_mul_i32 s{self.SB_KV}, s{S_W}, 6144
s_lshl_b32 s{S_T0}, s{S_BP}, 5
s_add_u32 s{S_T1}, s{S_T0}, s{S_J}
s_mul_i32 s{S_T1}, s{S_T1}, 12288
s_lshl_b32 s{S_T4}, s{S_KQ}, 2
s_add_u32 s{S_T4}, s{S_T4}, s{S_T0}
s_mul_i32 s{S_T4}, s{S_T4}, 12288
s_mul_i32 s{S_T5}, s{S_KQ}, {1024*1152}
""")
        self.c += srd_off(R_K, S_K, S_T1, 3145728)
        if o.kpos < 0 and not o.kspread:
            self.push(self.job_k())
            self.pump(["K"], 0)
        self.c += srd_off(R_V, S_V, S_T4, 3145728)
        self.c += srd_off(R_WO, S_WO, S_T5, 4718592)
        self.c += common_scalars(o)
        A(f"""
v_and_b32 v5, 15, v0
v_lshlrev_b32 v6, 1, v4
v_xor_b32 v5, v5, v6
v_lshlrev_b32 v5, 4, v5
v_mul_u32_u24 v6, 1152, v4
s_mul_i32 s{S_T0}, s{S_W}, {16*1152}
v_add_u32 v6, s{S_T0}, v6
v_add_u32 v{V_WM}, v5, v6
v_add_u32 v{V_WM+1}, {4*1152}, v{V_WM}
v_xor_b32 v5, 128, v5
v_add_u32 v{V_WM+2}, v5, v6
v_add_u32 v{V_WM+2}, {8*1152}, v{V_WM+2}
v_add_u32 v{V_WM+3}, {4*1152}, v{V_WM+2}
v_and_b32 v5, 7, v0
v_and_b32 v6, 1, v4
v_lshlrev_b32 v6, 1, v6
v_xor_b32 v5, v5, v6
v_lshlrev_b32 v5, 4, v5
v_lshrrev_b32 v6, 3, v0
v_mul_u32_u24 v6, 1152, v6
s_lshr_b32 s{S_T1}, s{S_BP}, 2
s_and_b32 s{S_T1}, s{S_T1}, {1 if o.flip else 0}
s_mul_i32 s{S_F0}, s{S_T1}, {64*1152}
s_sub_u32 s{S_F1}, {64*1152}, s{S_F0}
s_lshl_b32 s{S_T2}, s{S_CQ}, 8
s_add_u32 s{S_F0}, s{S_F0}, s{S_T2}
s_add_u32 s{S_F1}, s{S_F1}, s{S_T2}
s_lshl_b32 s{S_T1}, s{S_T1}, 1
s_xor_b32 s{S_T1}, s{S_T1}, s{S_W}
s_mul_i32 s{S_T0}, s{S_T1}, {32*1152}
v_add_u32 v6, s{S_T0}, v6
v_add_u32 v{V_WE}, v5, v6
v_add_u32 v{V_WE+2}, {16*1152}, v{V_WE}
v_xor_b32 v5, 64, v5
v_add_u32 v{V_WE+1}, v5, v6
v_add_u32 v{V_WE+1}, {8*1152}, v{V_WE+1}
v_add_u32 v{V_WE+3}, {16*1152}, v{V_WE+1}
v_lshlrev_b32 v{V_LIN}, 4, v0
s_lshl_b32 s{self.SB_W}, s{S_W}, 12
s_mul_i32 s{self.SB_P0}, s{S_W}, 1536
s_mul_i32 s{self.SB_P12}, s{S_W}, 3072
s_cmp_ge_u32 s{S_W}, 2
s_cselect_b32 s{S_T0}, -1, 1
s_mul_i32 s{S_T0}, s{S_T0}, {32*1152}
v_add_u32 v{V_W2}, s{S_T0}, v{V_WM}
v_add_u32 v{V_W2+1}, s{S_T0}, v{V_WM+1}
v_add_u32 v{V_W2+2}, s{S_T0}, v{V_WM+2}
v_add_u32 v{V_W2+3}, s{S_T0}, v{V_WM+3}
""")
        if o.vfirst:
            A(f"""
s_mul_i32 s{S_T0}, s{S_JL}, 12288
s_lshr_b32 s{S_T1}, s{S_W}, 1
s_mul_i32 s{S_T1}, s{S_T1}, 196608
s_add_u32 s{S_T0}, s{S_T0}, s{S_T1}
s_and_b32 s{S_T1}, s{S_W}, 1
s_mul_i32 s{S_T1}, s{S_T1}, 6144
s_add_u32 s{S_T0}, s{S_T0}, s{S_T1}
v_lshlrev_b32 v{V_SV}, 7, v0
s_mov_b32 exec_hi, 0xffff
buffer_load_dword v{V_SV+1}, v{V_SV}, {sr(R_V,4)}, s{S_T0} offen
s_mov_b32 exec_hi, -1
""")
            self.issued.append("vt")
        if o.vfirst >= 2:
            A(f"""
s_mul_i32 s{S_T0}, s{S_JL}, {256*1152}
s_mul_i32 s{S_T1}, s{S_W}, {16*1152}
s_add_u32 s{S_T0}, s{S_T0}, s{S_T1}
s_add_u32 s{S_T0}, s{S_T0}, s{S_F0}
v_bfe_u32 v{V_T+2}, v0, 1, 4
v_lshrrev_b32 v{V_T+3}, 5, v0
v_lshl_add_u32 v{V_T+2}, v{V_T+3}, 7, v{V_T+2}
v_mul_u32_u24 v{V_T+2}, 1152, v{V_T+2}
v_and_b32 v{V_T+3}, 1, v0
v_lshl_add_u32 v{V_T+2}, v{V_T+3}, 7, v{V_T+2}
buffer_load_dword v{V_SV+1}, v{V_T+2}, {sr(R_WO,4)}, s{S_T0} offen
""")
            self.issued.append("vt")
        self.flags_setup(split)
        if o.walk:
            self.c += walk_entry("Wl")
        A("Wl_begin:")
        self.barrier(["S0"])
        self.c += self.st("B0")
        if o.ldexit:
            A("s_endpgm")
        if o.kpos == 2:
            self.push(self.job_k())
        self.pump(["S1"], int(o.blist[0], 16) if o.blist else o.budget1)
        for n in range(0, 9):
            self.barrier([f"S{n+1}"] if n < 8 else ["K"])
            if n == 3:
                self.nonce_issue()
            if n + 3 <= 8:
                self.push(self.job_s(n + 3))
                if o.kpos == n + 3:
                    self.push(self.job_k())
            if o.kspread and n < 6:
                t, su, it = self.job_k()
                self.push((t, su, it[n:n + 1]))
            if n == 6:
                self.pace = o.pace2
                if o.stag:
                    A(f"s_mul_i32 s{S_CNT}, s{S_BP}, {o.stag}\nL_stag:\ns_cmp_eq_u32 s{S_CNT}, 0\ns_cbranch_scc1 L_stagd\ns_sleep 1\ns_sub_u32 s{S_CNT}, s{S_CNT}, 1\ns_branch L_stag\nL_stagd:")
                self.push(self.job_v(0), self.job_w(0))
            if n == 7:
                self.push(self.job_w(1), self.job_w(2))
            if n == 8:
                self.push(self.job_w(3), self.job_w(4))
            self.pump([f"S{n+2}"] if n < 7 else ["K"] if n == 7 else ["V0", "W0", "W1"], (int(o.blist[n + 1], 16) if o.blist else o.budget1) if n < 6 else o.budget)
            if o.vspread and n < 6:
                A(f"""
s_mul_i32 s{S_T0}, s{S_JL}, 12288
s_lshr_b32 s{S_T1}, s{S_W}, 1
s_mul_i32 s{S_T1}, s{S_T1}, 196608
s_add_u32 s{S_T0}, s{S_T0}, s{S_T1}
s_and_b32 s{S_T1}, s{S_W}, 1
s_mul_i32 s{S_T1}, s{S_T1}, 6144
s_add_u32 s{S_T0}, s{S_T0}, s{S_T1}
v_lshlrev_b32 v{V_SV}, 7, v0
s_mov_b64 exec, 0xff
buffer_load_dword v{V_SV+1}, v{V_SV}, {sr(R_V,4)}, s{S_T0} offen offset:{(n % 4) * 1024}
s_mov_b64 exec, -1
""".replace(f"s_add_u32 s{S_T0}, s{S_T0}, s{S_T1}\nv_lshl", f"s_add_u32 s{S_T0}, s{S_T0}, s{S_T1}\ns_add_u32 s{S_T0}, s{S_T0}, {(n // 4) * 4096}\nv_lshl"))
                self.issued.append("vt")
            if o.refresh and n == o.refresh:
                self.code_touch()
        self.pace = 0
        self.c += self.st("B9")
        self.nonce_check()
        self.barrier(["V0", "W0", "W1"])
        self.pump(["W4"], 0)
        if split:
            self.publish_setup(True)
        self.barrier([])
        self.c += self.st("B11")
        assert not self.q
        if split:
            base = list(self.issued)
            A(f"s_cmp_ge_u32 s{S_W}, 2\ns_cbranch_scc1 L_pubs")
            self.barrier(["W2", "W3"])
            self.push(self.job_w(5, both=1))
            self.pump(["W5"], 0)
            self.barrier(["W4", "W5"])
            A("s_branch L_pubd\nL_pubs:")
            self.issued = base
            self.publish(True)
            self.barrier(["W2", "W3"])
            self.push(self.job_w(6, both=-1))
            self.pump(["W6"], 0)
        else:
            self.push(self.job_w(5))
            self.pump(["W5"], 0)
            self.publish_setup(False)
            self.publish(False)
            self.barrier(["W2", "W3"])
            self.push(self.job_w(6))
            self.pump(["W6"], 0)
        if o.earlyflag:
            self.flag()
        self.barrier(["W4", "W5"])
        if not o.earlyflag:
            self.flag()
        A("L_pubd:")
        self.c += self.st("pub")

        def needs(d):
            need = [f"W{d+1}", f"W{d+2}"]
            if d % 4 == 1:
                return need + [f"V{(d-1)//4}", f"P{(d-5)//4}b"]
            return need + [f"P{(d-3)//4}a"]
        for d in range(3, 18, 2):
            if d > 3:
                self.barrier(needs(d))
            if d == 5:
                self.c += self.st("D5")
                self.flags_wait()
                self.c += self.st("polled")
            if d in (5, 9, 13):
                self.push(self.job_p((d - 1) // 4, 0, 1, f"P{(d-1)//4}a", P_LDS))
            if d in (7, 11, 15):
                self.push(self.job_p((d - 3) // 4, 1, 2, f"P{(d-3)//4}b", P_LDS + 6144))
            for q in (d + 4, d + 5):
                if q <= 17:
                    self.push(self.job_w(q))
                if d == 3 and q == 7:
                    self.push(self.job_v(1))
            if d in (5, 9):
                self.push(self.job_v((d - 5) // 4 + 2))
            self.pump(needs(d + 2), o.budget - (1 if d == 3 else 0))
            if d == 3:
                self.flags_sample()
            if d == o.wbat and o.dg_plain & 8:
                A(f"s_lshr_b32 s{S_T0}, s2, 3\ns_or_b32 s{S_T0}, s{S_T0}, s{S_W}\ns_cmp_lg_u32 s{S_T0}, 0\ns_cbranch_scc1 L_nowb\nbuffer_wbl2 sc1\nL_nowb:")
            if d == 11:
                A(f"s_add_u32 s{S_T4}, s{S_W}, 4")
                self.c += gather_scalars(o, S_T4) + gather_lanes(o, V_MO, V_MF)
            if d == o.expoll:
                self.extra_setup()
            if d == max(15, o.expoll):
                self.extra_loads()
        assert not self.q
        self.c += self.st("D17")
        self.extra_sum()
        self.c += self.st("edone")
        if o.own or o.fbar:
            A("s_barrier")
        A(f"s_cmp_ge_u32 s{S_W}, 2\ns_cbranch_scc1 L_fin_l")
        if o.lfirst:
            A(f"s_sleep {o.lfirst}")
        self.c += gather_main(o, "L_gl", V_LIN, V_MO, V_MF)
        A("L_fin_l:")
        if o.stamps:
            A("s_waitcnt vmcnt(0)")
            self.c += self.st("end")
            self.c += self.st.dump(1)
        A("s_endpgm")
        return self.c


X_FL, X_OUT, D_PA, X_LIN, X_L0 = 1, 2, 5, 6, 7
D_VA, D_VA2, D_WA, D_WA2 = 8, 12, 16, 20
C_WA, C_XA, C_KA = 24, 32, 37
C_PW, C_PW2 = 4, 155
D_EA = 56
C_AF = [64, 96]
C_BF = [128, 140]
C_ACC = 160
D_OUTM, D_OUTE, D_VW, D_F01, D_F2 = 24, 72, 96, 144, 160
D_V = [176, 188]
D_P = [200, 212]
D_W = [224, 240]


def acc(t, st):
    return C_ACC + (t * 3 + st) * 4


def mfma(d, a, b, c):
    cc = "0" if c is None else vr(c, 4)
    return I(f"v_mfma_f32_16x16x32_bf16 {vr(d,4)}, {vr(a,4)}, {vr(b,4)}, {cc}")


class Compute:
    SETS = [list(range(24, 34)), [45, 46, 47, 48, 49, 50, 51, 52, 53, 54], [55, 58, 59, 60, 61, 62, 63, 1, 2, 3]]
    VHOLD = [D_P[0], D_P[1], D_V[0], D_V[1]]

    def __init__(self, o):
        self.o, self.c = o, []
        self.st = Stamper(o.stamps)
        if o.stp1:
            self.st.only = "cycA"
        if o.stp2:
            self.st.only = "cycB"
        self.tok = 0

    def A(self, s):
        self.c += L(s)

    def anchor(self, ins, after):
        self.tok += 1
        t = f"tok{self.tok}"
        after.swr = after.swr | {t}
        ins.srd = ins.srd | {t}
        return ins

    def bar(self, after=None, drain=False):
        r = L("s_waitcnt lgkmcnt(0)\ns_barrier" if drain else "s_barrier")
        for a in (after or []):
            self.anchor(r[0], a)
        return r

    def p1_reads(self, kb, s, n):
        a = self.SETS[n % 3]
        r = [I(f"ds_read_b128 {vr(C_BF[s],4)}, v{a[8+kb]} offset:0")]
        for t in range(8):
            for i in range(2):
                r.append(I(f"ds_read_b64_tr_b16 {vr(C_AF[s]+4*t+2*i,2)}, v{a[t]} offset:{kb*16384+i*2048}"))
            if t == 0:
                r += [I(f"ds_read_b128 {vr(C_BF[s]+4*st,4)}, v{a[8+kb]} offset:{st*2048}") for st in (1, 2)]
        return r

    def p1_mfmas(self, s, first):
        return [mfma(acc(t, st), C_AF[s] + 4 * t, C_BF[s] + 4 * st, None if first else acc(t, st))
                for t in range(8) for st in range(3)]

    def kfrag(self, kt, p):
        i = p * 3 + kt
        if i < 8:
            return C_AF[0] + 4 * i
        if i < 11:
            return C_BF[0] + 4 * (i - 8)
        return 156

    def sacc(self, kt, st):
        i = st * 3 + kt
        return C_AF[1] + 4 * i if i < 8 else C_BF[1]

    def startup(self):
        o, A = self.o, self.A
        A("L_compute:")
        self.c += self.st("start")
        if o.prio_compute:
            A(f"s_setprio {o.prio_compute}")
        A(f"""
s_cmp_ge_u32 s2, 8
s_cbranch_scc1 L_no_pf
s_getpc_b64 s[{S_EX}:{S_EX+1}]
L_pc:
s_sub_u32 s{S_EX}, s{S_EX}, L_pc-{NAME}
s_subb_u32 s{S_EX+1}, s{S_EX+1}, 0
s_lshl_b32 s{S_T0}, s{S_W}, 13
v_lshlrev_b32 v152, 7, v0
v_add_u32 v152, s{S_T0}, v152
v_min_u32 v152, L_end-{NAME}, v152
global_load_dword v153, v152, s[{S_EX}:{S_EX+1}]
L_no_pf:
""")
        if o.walk:
            self.c += walk_entry("Wc")
        A(f"""
s_lshr_b32 s{S_T0}, s{S_W}, 1
s_and_b32 s{S_T1}, s{S_W}, 1
v_lshrrev_b32 v48, 4, v0
v_bfe_u32 v49, v0, 2, 2
v_and_b32 v50, 3, v0
v_and_b32 v51, 15, v0
v_and_b32 v52, 1, v48
v_lshl_or_b32 v52, v52, 2, v49
v_lshl_add_u32 v53, v48, 3, v49
v_lshlrev_b32 v54, 9, v53
v_lshl_add_u32 v54, v52, 5, v54
v_lshl_add_u32 v54, v50, 3, v54
s_lshl_b32 s{S_T2}, s{S_T1}, 8
v_add_u32 v{C_WA}, s{S_T2}, v54
""")
        for t in range(1, 8):
            A(f"v_xor_b32 v{C_WA+t}, {t<<5}, v{C_WA}")
        A(f"""
v_lshrrev_b32 v54, 1, v51
v_xor_b32 v54, v54, v48
v_lshlrev_b32 v54, 4, v54
v_lshl_add_u32 v54, v51, 7, v54
s_mul_i32 s{S_T2}, s{S_T0}, 6144
s_add_u32 s{S_T2}, s{S_T2}, 32768
v_add_u32 v{C_XA}, s{S_T2}, v54
v_xor_b32 v{C_XA+1}, 64, v{C_XA}
v_lshrrev_b32 v54, 1, v48
v_xor_b32 v54, v54, v51
v_lshlrev_b32 v54, 4, v54
v_lshl_add_u32 v54, v51, 8, v54
v_and_b32 v55, 1, v48
v_lshl_add_u32 v54, v55, 3, v54
s_mul_i32 s{S_T2}, s{S_T0}, 12288
s_add_u32 s{S_T3}, s{S_T2}, {K_LDS}
v_add_u32 v{C_KA}, s{S_T3}, v54
""")
        for pe in range(1, 8):
            A(f"v_xor_b32 v{C_KA+pe}, {pe<<5}, v{C_KA}")
        A(f"""
s_mul_i32 s{S_T3}, s{S_T0}, 3072
s_add_u32 s{S_T3}, s{S_T3}, {P_LDS}
v_lshl_add_u32 v{D_PA}, v0, 4, s{S_T3}
s_mul_i32 s{S_T3}, s{S_T1}, 6144
v_add_u32 v{C_PW}, s{S_T3}, v{D_PA}
s_lshl_b32 s{S_T3}, s{S_T1}, 3
v_add_u32 v{C_PW2}, s{S_T3}, v{D_PA}
v_xor_b32 v54, v48, v51
v_lshlrev_b32 v54, 4, v54
v_lshl_add_u32 v54, v51, 8, v54
s_lshr_b32 s{S_T3}, s{S_BP}, 2
s_and_b32 s{S_T3}, s{S_T3}, {1 if o.flip else 0}
s_lshl_b32 s{S_T3}, s{S_T3}, 7
v_xor_b32 v54, s{S_T3}, v54
v_add_u32 v{D_VA}, s{S_T2}, v54
v_xor_b32 v{D_VA+1}, 64, v{D_VA}
v_xor_b32 v{D_VA+2}, 128, v{D_VA}
v_xor_b32 v{D_VA+3}, 192, v{D_VA}
v_lshlrev_b32 v54, 8, v53
v_lshl_add_u32 v54, v50, 3, v54
s_lshl_b32 s{S_T3}, s{S_T1}, 2
v_xor_b32 v55, s{S_T3}, v52
v_lshl_add_u32 v54, v55, 5, v54
v_add_u32 v{D_WA}, {W_LDS[0]}, v54
v_xor_b32 v{D_WA+1}, 32, v{D_WA}
v_xor_b32 v{D_WA+2}, 64, v{D_WA}
v_xor_b32 v{D_WA+3}, 96, v{D_WA}
v_lshlrev_b32 v54, 7, v53
v_lshl_add_u32 v54, v50, 3, v54
v_and_b32 v55, 1, v48
v_lshlrev_b32 v55, 1, v55
v_lshrrev_b32 v58, 1, v49
v_or_b32 v55, v55, v58
s_lshl_b32 s{S_T3}, s{S_T1}, 1
v_xor_b32 v55, s{S_T3}, v55
v_lshl_add_u32 v54, v55, 5, v54
v_add_u32 v{D_EA}, {W_LDS[0]}, v54
v_xor_b32 v{D_EA+1}, 32, v{D_EA}
""")
        for t in range(4):
            A(f"v_add_u32 v{D_WA2+t}, {W_LDS[3]-W_LDS[0]}, v{D_WA+t}\nv_add_u32 v{D_VA2+t}, {V_LDS[1]-V_LDS[0]}, v{D_VA+t}")
        A(f"""
v_lshlrev_b32 v{X_LIN}, 4, v0
s_mov_b32 s{S_C0}, 0x3e0293ee
s_mov_b32 s{S_C0+1}, 0x3e0293ee
v_cmp_eq_u32 vcc, 0, v0
v_mov_b32 v54, 0x40000000
v_cndmask_b32 v{X_L0}, v54, 0, vcc
""")
        for k in (1, 2):
            for i in range(10):
                A(f"v_add_u32 v{self.SETS[k][i]}, {A_SLOT[k]}, v{self.SETS[0][i]}")
        A("s_waitcnt lgkmcnt(0)")
        self.c += common_scalars(o) + gather_scalars(o, S_W)
        A(f"""
s_add_u32 s{S_T0}, s{S_GRP}, s{S_J}
s_lshl_b32 s{S_EF}, s{S_T0}, 7
s_lshl_b32 s{S_T1}, s{S_W}, 3
s_add_u32 s{S_EF}, s{S_EF}, s{S_T1}
s_add_u32 s{S_EF}, s{S_EF}, {WS_FLAG + 64}
s_lshl_b32 s{S_T0}, s{S_T0}, 2
s_add_u32 s{S_T0}, s{S_T0}, s{S_W}
s_mul_i32 s{S_ES}, s{S_T0}, 3072
s_add_u32 s{S_ES}, s{S_ES}, {WS_PE}
s_mul_i32 s{S_MS}, s{S_T0}, 6144
s_add_u32 s{S_MS}, s{S_MS}, {WS_PM}
{f's_cmp_eq_u32 s{S_W}, s{S_KQ}' if o.own else ''}
{f's_cselect_b32 s{S_MS}, 0x40000000, s{S_MS}' if o.own else ''}
s_add_u32 s{S_MS+1}, s{S_MS}, 3072
s_lshl_b32 s{S_MF}, s{S_W}, 2
s_add_u32 s{S_MF}, s{S_MF}, s{S_GRP}
s_add_u32 s{S_MF}, s{S_MF}, s{S_JL}
s_lshl_b32 s{S_MF}, s{S_MF}, 9
s_lshl_b32 s{S_T1}, s{S_KQ}, {o.fsh}
s_add_u32 s{S_MF}, s{S_MF}, s{S_T1}
s_add_u32 s{S_MF}, s{S_MF}, {WS_FLAG2}
s_or_b32 s{S_T0}, s2, s{S_W}
s_cmp_lg_u32 s{S_T0}, 0
s_cbranch_scc1 L_no_nonce
s_memrealtime {sr(S_NON,2)}
s_waitcnt lgkmcnt(0)
s_or_b32 s{S_NON}, s{S_NON}, 1
v_mov_b32 v158, s{S_NON}
v_mov_b32 v159, s{S_NON+1}
s_mov_b64 exec, 1
buffer_store_dwordx2 v[158:159], v{X_LIN}, {sr(R_DBG,4)}, 0 offen sc1
s_mov_b64 exec, -1
L_no_nonce:
Wc_begin:
s_barrier
""")
        self.c += self.st("B0")
        self.c += self.st("cyc0")

    def softmax(self, st):
        M, R = 48 + 2 * st, (54, 58, 60)[st]
        T = M + 1
        U0, U1 = ((62, 144), (146, 148), (150, 152))[st]
        v = [self.sacc(kt, st) + r for kt in range(3) for r in range(4)]
        s = f"""
v_max3_f32 v{M}, v{v[0]}, v{v[1]}, v{v[2]}
v_max3_f32 v{T}, v{v[3]}, v{v[4]}, v{v[5]}
v_max3_f32 v{M}, v{M}, v{v[6]}, v{v[7]}
v_max3_f32 v{T}, v{T}, v{v[8]}, v{v[9]}
v_max3_f32 v{M}, v{M}, v{v[10]}, v{v[11]}
v_max_f32 v{M}, v{M}, v{T}
"""
        for sw in ("v_permlane32_swap_b32", "v_permlane16_swap_b32"):
            s += f"v_mov_b32 v{T}, v{M}\n{sw} v{T}, v{M}\nv_max_f32 v{M}, v{M}, v{T}\n"
        s += f"v_mul_f32 v{M}, s{S_C0}, v{M}\n"
        for i in range(0, 12, 2):
            s += f"v_pk_fma_f32 {vr(v[i],2)}, {vr(v[i],2)}, {sr(S_C0,2)}, {vr(M,2)} op_sel_hi:[1,1,0] neg_lo:[0,0,1] neg_hi:[0,0,1]\n"
        for x in v:
            s += f"v_exp_f32 v{x}, v{x}\n"
        s += f"v_pk_add_f32 {vr(U0,2)}, {vr(v[0],2)}, {vr(v[2],2)}\nv_pk_add_f32 {vr(U1,2)}, {vr(v[4],2)}, {vr(v[6],2)}\n"
        s += f"v_pk_add_f32 {vr(U0,2)}, {vr(U0,2)}, {vr(v[8],2)}\nv_pk_add_f32 {vr(U1,2)}, {vr(U1,2)}, {vr(v[10],2)}\n"
        s += f"v_pk_add_f32 {vr(U0,2)}, {vr(U0,2)}, {vr(U1,2)}\nv_add_f32 v{R}, v{U0}, v{U0+1}\n"
        for sw in ("v_permlane32_swap_b32", "v_permlane16_swap_b32"):
            s += f"v_mov_b32 v{R+1}, v{R}\n{sw} v{R+1}, v{R}\nv_add_f32 v{R}, v{R}, v{R+1}\n"
        s += f"v_rcp_f32 v{R}, v{R}\n"
        for i in range(0, 12, 2):
            s += f"v_pk_mul_f32 {vr(v[i],2)}, {vr(v[i],2)}, {vr(R,2)} op_sel_hi:[1,0]\n"
        if self.o.nopk >> st & 1:
            out = []
            for l in s.split("\n"):
                if l.startswith("v_pk_"):
                    ins = I(l)
                    ops = split_ops(l.split(" ", 1)[1])
                    d = min(vregs(ops[0]))
                    if "fma" in l:
                        out += [f"v_fma_f32 v{d+i}, v{d+i}, s{S_C0}, -v{M}" for i in range(2)]
                    elif "mul" in l:
                        out += [f"v_mul_f32 v{d+i}, v{d+i}, v{R}" for i in range(2)]
                    else:
                        x, y = min(vregs(ops[1])), min(vregs(ops[2]))
                        out += [f"v_add_f32 v{d+i}, v{x+i}, v{y+i}" for i in range(2)]
                else:
                    out.append(l)
            s = "\n".join(out)
        a, c2 = v[0], v[8]
        for i in range(4):
            s += f"v_cvt_pk_bf16_f32 v{a+i}, v{v[2*i]}, v{v[2*i+1]}\n"
        for i in range(2):
            s += f"v_cvt_pk_bf16_f32 v{c2+i}, v{v[8+2*i]}, v{v[9+2*i]}\n"
        if self.o.dg_n & 2:
            s = "\n".join(l for l in s.split("\n") if "cvt" in l) + "\n"
        return L(s + f"ds_write_b128 v{C_PW}, {vr(a,4)} offset:{st*1024}\nds_write_b64 v{C_PW2}, {vr(c2,2)} offset:{12288+st*1024}")

    def v_reads(self, ks, dst, buf=0):
        a = (D_VA if buf == 0 else D_VA2) + ks
        return [I(f"ds_read_b128 {vr(dst+4*kt,4)}, v{a} offset:{kt*4096}") for kt in range(3)]

    def step_reads(self, q, step):
        if q < 2:
            so = W_LDS[q] - W_LDS[0]
            return [I(f"ds_read_b64_tr_b16 {vr(D_W[step]+4*(2*kk+t)+2*i,2)}, v{D_EA+t} offset:{so+(2*step+kk)*4096+i*512}")
                    for kk in range(2) for t in range(2) for i in range(2)]
        pos, r4 = divmod(q - 2, 4)
        sl = q % 5
        base, so = (D_WA, W_LDS[sl] - W_LDS[0]) if sl < 3 else (D_WA2, W_LDS[sl] - W_LDS[3])
        w = [I(f"ds_read_b64_tr_b16 {vr(D_W[step]+4*t+2*i,2)}, v{base+t} offset:{so+step*8192+i*1024}")
             for t in range(4) for i in range(2)]
        if q < 4:
            return w
        v = self.v_reads(2 * (r4 & 1) + step, D_V[step], pos % 2)
        return [v[0], w[0], w[1], v[1], v[2]] + w[2:]

    def p_reads(self, f, s):
        return [I(f"ds_read_b128 {vr(D_P[s]+4*st,4)}, v{D_PA} offset:{f*6144+st*1024}") for st in range(3)]

    EACC = [64, 68, 72, 76, 80, 84, 88, 92, 128, 132, 136, 156]

    def vw(self, t, kt, q=9):
        if q < self.o.eov:
            return self.EACC[t * 3 + kt]
        return D_VW + (t * 3 + kt) * 4

    def cvt_tile(self, t, f01, f2, h, q=9):
        r = []
        for kt in range(3):
            s = self.vw(t, kt, q)
            d = f01 + 2 * kt if kt < 2 else f2 + 2 * h
            r += L(f"v_cvt_pk_bf16_f32 v{d}, v{s}, v{s+1}\nv_cvt_pk_bf16_f32 v{d+1}, v{s+2}, v{s+3}")
        return r

    def finals(self, outb, fb, ps, nt, first=False):
        return [mfma(outb + (t * 3 + st) * 4, fb + 4 * t, D_P[ps] + 4 * st, None if first else outb + (t * 3 + st) * 4)
                for t in range(nt) for st in range(3)]

    def blocks(self, base, soff, pol="sc1"):
        val, sto = [], []
        for st in range(3):
            a, b = base + 4 * st, base + 12 + 4 * st
            val += L(f"""
v_cvt_pk_bf16_f32 v{a}, v{a}, v{a+1}
v_cvt_pk_bf16_f32 v{a+1}, v{a+2}, v{a+3}
v_cvt_pk_bf16_f32 v{a+2}, v{b}, v{b+1}
v_cvt_pk_bf16_f32 v{a+3}, v{b+2}, v{b+3}
""")
            sto.append(I(f"buffer_store_dwordx4 {vr(a,4)}, v{X_LIN}, {sr(R_WS,4)}, s{soff} offen offset:{st*1024} {pol}"))
        return val, sto

    def main_block(self):
        o = self.o
        b = []
        b += self.p1_reads(0, 0, 0)
        for n in range(9):
            mA = self.p1_mfmas(0, n == 0)
            mB = self.p1_mfmas(1, False)
            if o.dg_n & 1:
                mB = mB[:12]
            b += self.p1_reads(1, 1, n) + mA + self.bar([mA[o.ck1]], drain=True)
            if (o.dg_gap and n == o.dg_gapn) or o.dg_gapall:
                g = self.anchor(I(f"s_sleep {o.dg_gap or o.dg_gapall}"), mA[-1])
                g.note = "chain"
                b.append(g)
                self.anchor(mB[0], g)
            if o.stp1:
                b += [self.anchor(x, mA[-1]) for x in self.st(f"cycA{n}")]
            if n < 8:
                b += self.p1_reads(0, 0, n + 1)
            else:
                for p in range(4):
                    for kt in range(3):
                        for e in range(2):
                            b.append(I(f"ds_read_b64 {vr(self.kfrag(kt,p)+2*e,2)}, v{C_KA+2*p+e} offset:{kt*4096}"))
            b += mB
        b += [self.anchor(x, mB[-1]) for x in self.st("Qdone") + self.st("cyc1")]
        qk = []
        for st in range(3):
            for p in range(4):
                a, c = acc(2 * p, st), acc(2 * p + 1, st)
                b += L(f"""
v_cvt_pk_bf16_f32 v{a}, v{a}, v{a+1}
v_cvt_pk_bf16_f32 v{a+1}, v{a+2}, v{a+3}
v_cvt_pk_bf16_f32 v{a+2}, v{c}, v{c+1}
v_cvt_pk_bf16_f32 v{a+3}, v{c+2}, v{c+3}
""")
            m = [mfma(self.sacc(kt, st), self.kfrag(kt, p), acc(2 * p, st), None if p == 0 else self.sacc(kt, st))
                 for p in range(4) for kt in range(3)]
            qk += m
            b += m
        b += self.bar(qk)
        first = []
        for ks in range(4):
            first += self.v_reads(ks, self.VHOLD[ks])
        w0 = self.step_reads(0, 0)
        b += first[0:3] + w0[0:4] + first[3:6] + w0[4:8] + first[6:12]
        if o.w5first:
            b += self.step_reads(0, 1)
        EF = [D_OUTM, D_OUTM + 8, D_OUTM + 16]

        def e_mfmas(q, step):
            return [mfma(self.vw(2 * q + t, kt, q), self.VHOLD[2 * step + kk] + 4 * kt, D_W[step] + 4 * (2 * kk + t),
                         None if (step == 0 and kk == 0) else self.vw(2 * q + t, kt, q))
                    for kk in range(2) for t in range(2) for kt in range(3)]
        for q in range(o.eov):
            b += self.step_reads(q, 1) + e_mfmas(q, 0)
            if q == 0:
                b += self.step_reads(1, 0)
            b += e_mfmas(q, 1)
            for t in range(2):
                b += self.cvt_tile(2 * q + t, EF[q] + 4 * t, EF[2] + 4 * t, q, q)
        for st in range(3):
            sm = self.softmax(st)
            if o.qkfirst and st == 0:
                self.anchor(sm[0], qk[-4])
                self.anchor(sm[1], qk[-4])
            b += sm
        b += self.bar(drain=True)
        b += self.st("Pw") + self.st("cycP")
        b += gather_lanes(o, X_OUT, X_FL)
        NV = D_OUTE + 12
        if o.eov == 2:
            b += self.bar() + self.step_reads(2, 0)
        for q in range(o.eov, 18):
            pos, r4 = divmod(q - 2, 4) if q >= 2 else (0, -1)
            vwm = []
            for step in range(2):
                if q < 2:
                    vwm.append([mfma(self.vw(2 * q + t, kt, q), self.VHOLD[2 * step + kk] + 4 * kt, D_W[step] + 4 * (2 * kk + t),
                                     None if (step == 0 and kk == 0) else self.vw(2 * q + t, kt, q))
                                for kk in range(2) for t in range(2) for kt in range(3)])
                else:
                    ks = 2 * (r4 & 1) + step
                    vb = self.VHOLD[ks] if q in (2, 3) else D_V[step]
                    vwm.append([mfma(self.vw(t, kt), vb + 4 * kt, D_W[step] + 4 * t, None if ks == 0 else self.vw(t, kt))
                                for t in range(4) for kt in range(3)])
            fin, pr = [], []
            if q == 3:
                fin, pr = self.finals(D_OUTE, EF[0], 0, 2, first=True), self.p_reads(0, 0)
            elif q == 4:
                fin = self.finals(D_OUTE, EF[1], 1, 2) + self.finals(D_OUTE, EF[2], 0, 2)
                pr = self.p_reads(1, 1) + self.p_reads(2, 0)
            elif q >= 2 and r4 == 3:
                fin, pr = self.finals(D_OUTM, D_F01, 1, 4, first=(pos == 0)), self.p_reads(0, 1)
            elif q >= 6 and r4 == 0:
                fin, pr = self.finals(D_OUTM, D_F01, 0, 4), self.p_reads(1, 0)
            elif q >= 6 and r4 == 1:
                fin, pr = self.finals(D_OUTM, D_F2, 1, 4), self.p_reads(2, 1)
            if (o.dg_n & 4 and 5 <= q <= 9) or (o.dg_n & 8 and q >= 10):
                fin = fin[:1]
            mA = vwm[0] + fin
            lt = []
            if q == o.exq:
                val, sto = self.blocks(D_OUTE, S_ES)
                lt = val + [self.anchor(sto[0], mA[min(len(mA) - 1, o.exi)])] + sto[1:] + \
                    L(f"buffer_load_dwordx2 {vr(NV,2)}, v{X_L0}, {sr(R_DBG,4)}, 0 offen sc1")
            if q == o.exf:
                lt = L(f"s_waitcnt vmcnt(0)\nbuffer_store_dwordx2 {vr(NV,2)}, v{X_L0}, {sr(R_WS,4)}, s{S_EF} offen sc1")
                self.anchor(lt[0], mA[min(len(mA) - 1, o.dpos - 3)])
                lt[0].wr = {NV, NV + 1}
                lt += L(f"v_readfirstlane_b32 s{S_NON}, v{NV}\nv_readfirstlane_b32 s{S_NON+1}, v{NV+1}")
            r1 = [] if (q == 0 and o.w5first) else self.step_reads(q, 1)
            b += pr + (lt + r1 if (o.exi < 8 and q == o.exq) else r1 + lt) + mA
            if q % 2 == 1:
                b += self.bar([mA[min(o.dpos, len(mA) - 2)]], drain=True)
                if o.stp2:
                    b += [self.anchor(x, mA[-1]) for x in self.st(f"cycB{q}")]
            b += self.step_reads(q + 1, 0) if q < 17 else self.p_reads(1, 0) + self.p_reads(2, 1)
            b += vwm[1]
            if q < 2:
                for t in range(2):
                    b += self.cvt_tile(2 * q + t, EF[q] + 4 * t, EF[2] + 4 * t, q, q)
            elif r4 & 1:
                for t in range(4):
                    b += self.cvt_tile(t, D_F01 + 4 * t, D_F2 + 4 * t, r4 >> 1)
        f1 = self.finals(D_OUTM, D_F01, 0, 4)
        f2 = self.finals(D_OUTM, D_F2, 1, 4)
        for tp in range(2):
            b += f1[6 * tp:6 * tp + 6] + f2[6 * tp:6 * tp + 6]
        b += [self.anchor(x, f2[-1]) for x in self.st("P2done") + self.st("cyc2")]
        for tp in range(2):
            val, sto = self.blocks(D_OUTM + 24 * tp, S_MS + tp, o.dpol)
            b += val
            if o.own and not o.inblk:
                self.final_stores = getattr(self, "final_stores", []) + sto
            else:
                b += sto
        return b

    def gen(self):
        o = self.o
        self.startup()
        Sched.FILL, Sched.DS_LAT, Sched.DS_SCALE, Sched.WAR_DS, Sched.WAR_MEM, Sched.MFMA_LAT = \
            o.fill, o.dslat, o.dsscale, o.wards, o.warmem, o.mlat
        self.c += schedule(self.main_block())
        print("modelled cycles:", schedule.last_time)
        NV = D_OUTE + 12
        flag = L(f"s_waitcnt vmcnt(0)\nbuffer_store_dwordx2 {vr(NV,2)}, v{X_L0}, {sr(R_WS,4)}, s{S_MF} offen {o.fpol}")
        if o.own:
            self.A(f"s_cmp_eq_u32 s{S_W}, s{S_KQ}\ns_cbranch_scc1 L_own")
            self.c += getattr(self, "final_stores", []) + L("s_barrier") + flag + L("s_branch L_ownd\nL_own:")
            for i in range(6):
                self.A(f"ds_write_b128 v{X_LIN}, {vr(D_OUTM + 24 * (i // 3) + 4 * (i % 3), 4)} offset:{OWN_LDS + i * 1024}")
            self.A("s_waitcnt lgkmcnt(0)\ns_barrier")
            if o.lfirst:
                self.A(f"s_sleep {o.lfirst}")
            self.A("L_ownd:")
        else:
            if o.fbar:
                self.A("s_barrier")
            self.c += flag
        self.c += self.st("stored")
        self.c += gather_main(o, "L_gc", X_LIN, X_OUT, X_FL)
        if o.stamps:
            self.A("s_waitcnt vmcnt(0)")
            self.c += self.st("end")
            self.c += self.st.dump(0)
        self.A("s_endpgm\nWc_end:")
        return self.c


DESCR = """;
"""


def generate(o):
    for k in ('pol', 'fpol', 'ppol', 'dpol', 'lpol'):
        setattr(o, k, getattr(o, k).replace('+', ' '))
    ld, cp = Loader(o), Compute(o)
    body = finalize(prologue(o)) + finalize(ld.gen()) + finalize(cp.gen(), age=o.age)
    if o.walk:
        body = add_stubs(body, [("Wl_begin", "L_compute", "Wl", 4, "Wl_ret"), ("Wc_begin", "Wc_end", "Wc", 4, "Wc_ret")],
                         prefix=f"{NAME}:\n", smart=0)
    hdr = open("concat_heads__gqa_block_cached__gqa_block_cached__near_ridge.s.ref").read().split("\n")
    head = [l for l in hdr if l.startswith(";") and "@launch" not in l]
    s = "\n".join(head) + f"\n; @launch grid=(256,1,1) block=(512,1,1) lds={LDS_BYTES}\n"
    s += DESCR
    s += f'.amdgcn_target "amdgcn-amd-amdhsa--gfx950"\n.text\n.globl {NAME}\n.p2align 8\n.type {NAME},@function\n{NAME}:\n'
    s += text(body) + "\nL_end:\n    s_endpgm\n"
    s += f""".section .rodata,"a"
.p2align 6
.amdhsa_kernel {NAME}
  .amdhsa_next_free_vgpr 256
  .amdhsa_next_free_sgpr 102
  .amdhsa_accum_offset 256
  .amdhsa_group_segment_fixed_size 0
  .amdhsa_kernarg_size 104
  .amdhsa_user_sgpr_count 2
  .amdhsa_user_sgpr_kernarg_segment_ptr 1
  .amdhsa_system_sgpr_workgroup_id_x 1
.end_amdhsa_kernel
"""
    return s, ld.st.names, cp.st.names


if __name__ == "__main__":
    o = Opt()
    out = sys.argv[1]
    for a in sys.argv[2:]:
        k, v = a.split("=")
        cur = getattr(o, k)
        setattr(o, k, (v == "1") if isinstance(cur, bool) else type(cur)(v))
    s, ln, cn = generate(o)
    open(out, "w").write(s)
    if o.stamps:
        open(out + ".names", "w").write(repr((cn, ln, 0, WS_STAMP)))
    print("generated", out, len(s.splitlines()), "lines")
```
